```python
import torch

def _softmax(x, axis=-1):
    return torch.softmax(x, dim=axis)
def _gelu(x):
    return torch.nn.functional.gelu(x, approximate="tanh")
def _silu(x):
    return torch.nn.functional.silu(x)
def _sigmoid(x):
    return torch.sigmoid(x)
def _layernorm(x, axis=-1, eps=1e-5):
    m = x.mean(dim=axis, keepdim=True)
    v = x.var(dim=axis, keepdim=True, unbiased=False)
    return (x - m) / torch.sqrt(v + eps)
def _scatter_add(tgt, idx, src, axis=0):
    return tgt.clone().index_add_(axis, idx, src)
def _segment_sum(src, seg, n):
    out = torch.zeros((n,) + src.shape[1:], dtype=src.dtype)
    return out.index_add_(0, seg, src)
def _pad(x, pw):
    flat = tuple(v for pair in reversed(pw) for v in pair)
    return torch.nn.functional.pad(x, flat)

kernel_name = 'sequential_preLN__ssm_conv_s4d__mixer_channel_mlp__prompt'

def setup_inputs():

    _w = (lambda a: (lambda t: t.to(torch.bfloat16) if t.is_floating_point() else t)(torch.as_tensor(a)))
    def _A_setup():
        Bsz, L, D, N = 1, 2048, 512, 128
        return {
            "u": _w((lambda *s: torch.randn(*s, dtype=torch.bfloat16) * 0.05)(Bsz, L, D)),
            "log_A_real": _w((lambda *s: torch.randn(*s, dtype=torch.bfloat16) * 3.2)(D, N) * 0.5),
            "A_imag": _w((lambda *s: torch.randn(*s, dtype=torch.bfloat16) * 0.05)(D, N) * 3.14),
            "C_real": _w((lambda *s: torch.randn(*s, dtype=torch.bfloat16) * 0.1)(D, N) / N ** 0.5),
            "C_imag": _w((lambda *s: torch.randn(*s, dtype=torch.bfloat16) * 0.1)(D, N) / N ** 0.5),
            "log_dt": _w((lambda *s: torch.randn(*s, dtype=torch.bfloat16) * 0.05)(D) * 0.5 - 4.0),
            "D_skip": _w((lambda *s: torch.randn(*s, dtype=torch.bfloat16) * 0.05)(D)),
        }
    _A_in = _A_setup()

    def _B_setup():
        B, S, D, F = 1, 2048, 512, 1792
        return {
            "x": _w((lambda *s: torch.randn(*s, dtype=torch.bfloat16) * 0.05)(B, S, D)),
            "w1": _w((lambda *s: torch.randn(*s, dtype=torch.bfloat16) * 1.6)(D, F) * (D ** -0.5)),
            "b1": _w((lambda *s: torch.randn(*s, dtype=torch.bfloat16) * 0.8)(F)),
            "w2": _w((lambda *s: torch.randn(*s, dtype=torch.bfloat16) * 0.05)(F, D) * (F ** -0.5)),
            "b2": _w((lambda *s: torch.randn(*s, dtype=torch.bfloat16) * 0.05)(D)),
        }
    _B_in = _B_setup()

    return {
        "A_u": _A_in["u"],
        "A_log_A_real": _A_in["log_A_real"],
        "A_A_imag": _A_in["A_imag"],
        "A_C_real": _A_in["C_real"],
        "A_C_imag": _A_in["C_imag"],
        "A_log_dt": _A_in["log_dt"],
        "A_D_skip": _A_in["D_skip"],
        "B_x": _B_in["x"],
        "B_w1": _B_in["w1"],
        "B_b1": _B_in["b1"],
        "B_w2": _B_in["w2"],
        "B_b2": _B_in["b2"],
    }

def reference(A_u, A_log_A_real, A_A_imag, A_C_real, A_C_imag, A_log_dt, A_D_skip, B_x, B_w1, B_b1, B_w2, B_b2):
    def _A_ref(u, log_A_real, A_imag, C_real, C_imag, log_dt, D_skip):
        L = u.shape[1]
        dt = torch.exp(log_dt)
        A = -torch.exp(log_A_real) + 1j * A_imag
        C = (C_real + 1j * C_imag) * dt[:, None]
        pos = (lambda x, dt: x.to(dt))(torch.arange(L), log_dt.dtype)
        P = torch.exp((A * dt[:, None])[:, :, None] * pos[None, None, :])
        K = 2.0 * torch.einsum("dn,dnl->dl", C, P).real
        L2 = 2 * L
        u_t = (lambda x, *d: x.permute(*d))(u, 0, 2, 1)
        Kf = (lambda x, *a, **k: torch.fft.rfft(x.float(), *a, **k))(K, L2)
        Uf = (lambda x, *a, **k: torch.fft.rfft(x.float(), *a, **k))(u_t, L2)
        y = (lambda x, *a, **k: torch.fft.irfft(x, *a, **k).to(torch.bfloat16))(Uf * Kf[None, :, :], L2)[:, :, :L]
        y = (lambda x, *d: x.permute(*d))(y, 0, 2, 1)
        return y + u * D_skip[None, None, :]

    def _B_ref(x, w1, b1, w2, b2):
        y = _layernorm(x, axis=-1)
        h = _gelu(torch.einsum("bsd,df->bsf", y, w1) + b1)
        return torch.einsum("bsf,fd->bsd", h, w2) + b2

    x = A_u
    h = x + _A_ref(_layernorm(x, axis=-1), A_log_A_real, A_A_imag, A_C_real, A_C_imag, A_log_dt, A_D_skip)
    h2 = h + _B_ref(_layernorm(h, axis=-1), B_w1, B_b1, B_w2, B_b2)
    return h2
```

```python
import re

TRANS = ("v_exp_f32", "v_log_f32", "v_rcp_f32", "v_rsq_f32", "v_sqrt_f32", "v_sin_f32", "v_cos_f32")
REG = re.compile(r"^(-|abs\()?([vas])(?:(\d+)|\[(\d+):(\d+)\])\)?$")


def regs_of(tok):
    tok = tok.strip()
    if tok in ("vcc",): return {("s", "vcc")}
    if tok in ("exec",): return {("s", "exec")}
    if tok == "m0": return {("s", "m0")}
    m = REG.match(tok)
    if not m: return set()
    k = m.group(2)
    if m.group(3) is not None: return {(k, int(m.group(3)))}
    return {(k, i) for i in range(int(m.group(4)), int(m.group(5)) + 1)}


class Ins:
    def __init__(self, text):
        self.text = text
        t = text.split(";")[0].strip()
        self.is_ins = bool(t) and not t.endswith(":") and not t.startswith(".")
        self.kind = None; self.w = set(); self.r = set(); self.states = 0
        self.srcC = set(); self.srcAB = set(); self.dpp = False; self.wide_store = set(); self.op = ""
        if not self.is_ins: return
        parts = t.split(None, 1)
        op = parts[0]; self.op = op
        rest = parts[1] if len(parts) > 1 else ""
        ops = []; cur = ""; depth = 0
        for ch in rest:
            if ch == "[": depth += 1
            if ch == "]": depth -= 1
            if ch == "," and depth == 0: ops.append(cur); cur = ""
            else: cur += ch
        ops.append(cur)
        last = ops[-1].strip().split()
        mods = " ".join(last[1:]) if last else ""
        if last: ops[-1] = last[0]
        ops = [o.strip() for o in ops if o.strip()]
        self.states = 1
        R = [regs_of(o) for o in ops]
        if op == "s_nop":
            self.kind = "nop"; self.states = int(ops[0], 0) + 1
        elif op.startswith("v_mfma"):
            self.kind = "mfma"; self.passes = 8 if "32x32" in op else 4
            self.w = R[0]; self.srcAB = R[1] | R[2]; self.srcC = R[3]; self.r = self.srcAB | self.srcC
        elif op.startswith("v_"):
            self.kind = "valu"
            base = op.replace("_e32", "").replace("_e64", "").replace("_dpp", "").replace("_sdwa", "")
            self.base = base
            self.trans = base in TRANS
            self.dot = base.startswith("v_dot")
            self.dpp = any(k in mods for k in ("quad_perm", "row_", "wave_"))
            self.w = set(R[0]); self.r = set().union(*R[1:]) if len(R) > 1 else set()
            if base.startswith("v_permlane") or base == "v_swap_b32":
                self.w = R[0] | R[1]; self.r = R[0] | R[1]
            if base in ("v_fmac_f32", "v_dot2c_f32_bf16", "v_writelane_b32") or self.dpp: self.r |= R[0]
            if base in ("v_add_co_u32", "v_addc_co_u32", "v_sub_co_u32"):
                self.w = R[0] | R[1]; self.r = set().union(*R[2:])
            if self.dot:
                self.srcAB = R[1] | R[2]; self.srcC = R[3] if len(R) > 3 else R[0]
        elif op.startswith("ds_"):
            self.kind = "ds"
            if op.startswith("ds_read") or op.startswith("ds_bpermute") or op.startswith("ds_swizzle"):
                self.w = R[0]; self.r = set().union(*R[1:])
            else:
                self.r = set().union(*R)
        elif op.startswith("buffer_") or op.startswith("global_"):
            self.kind = "vmem"
            self.lds = " lds" in (" " + mods) or "load_lds" in op
            if "load" in op and not self.lds:
                self.w = R[0]; self.r = set().union(*R[1:])
            else:
                self.r = set().union(*R) if R else set()
                if "store" in op and ("x4" in op or "x3" in op):
                    self.wide_store = R[0] if op.startswith("buffer_") else R[1]
            if self.lds: self.r |= {("s", "m0")}
        elif op.startswith("s_"):
            self.kind = "salu"
            if op.startswith(("s_cmp", "s_cbranch", "s_branch", "s_waitcnt", "s_barrier", "s_endpgm", "s_sleep", "s_setprio", "s_setpc", "s_bitcmp")):
                self.r = set().union(*R) if R else set()
            else:
                self.w = set(R[0]); self.r = set().union(*R[1:]) if len(R) > 1 else set()
                if "saveexec" in op: self.w |= {("s", "exec")}
        else:
            raise ValueError("unknown instruction: " + text)


def need(p, c):
    n = 0
    vec = lambda s: {x for x in s if x[0] in "va"}
    sca = lambda s: {x for x in s if x[0] == "s"}
    if p.kind == "valu":
        pw = vec(p.w); ps = sca(p.w)
        if c.kind == "mfma" and pw & c.r: n = max(n, 3 if p.dot else 2)
        if c.kind == "valu":
            if p.trans and pw & c.r: n = max(n, 1)
            if c.dpp and pw & c.r: n = max(n, 2)
            if c.base.startswith("v_permlane") and pw & c.r: n = max(n, 2)
            if c.base in ("v_readlane_b32", "v_readfirstlane_b32") and pw & c.r: n = max(n, 1)
            cr = set(c.r)
            if ps & cr: n = max(n, 4 if c.base in ("v_readlane_b32", "v_writelane_b32") else 2)
            if p.dot:
                if c.dot and c.base == p.base:
                    if pw & c.srcAB: n = max(n, 3)
                elif pw & (c.r | c.w): n = max(n, 3)
        if c.kind in ("ds", "vmem") and p.dot and pw & (c.r | c.w): n = max(n, 3)
        if c.kind == "vmem" and ps & c.r: n = max(n, 5)
        if c.kind == "salu" and ps & c.r and ("s", "vcc") not in ps: n = max(n, 1)
    if p.kind == "mfma":
        big = 12 if p.passes == 8 else 8
        if c.kind == "mfma":
            if p.w & c.srcAB: n = max(n, big)
            if p.w & c.srcC and not (p.w == c.srcC and p.passes == c.passes): n = max(n, big - 2)
            if p.w & c.w and not (p.w == c.w and p.passes == c.passes): n = max(n, big)
            if p.w == c.w and not c.srcC: n = max(n, 0)
        elif c.kind in ("valu", "ds", "vmem"):
            if p.w & (c.r | c.w): n = max(n, big)
            if c.kind == "valu" and p.srcC & c.w: n = max(n, 7 if p.passes == 8 else 3)
    if p.kind == "salu" and ("s", "m0") in p.w and c.kind == "vmem" and c.lds: n = max(n, 1)
    if p.kind == "vmem" and p.wide_store & c.w:
        n = max(n, 2 if c.kind in ("valu", "mfma") else 1)
    return n


def fix(lines, verbose=False):
    out = []; hist = []
    added = 0
    for ln in lines:
        ins = Ins(ln)
        if not ins.is_ins:
            out.append(ln); continue
        dist = 0; pad = 0
        for p in reversed(hist):
            if dist >= 20: break
            k = need(p, ins) - dist
            if k > pad: pad = k; why = p
            dist += p.states
        if pad > 0:
            nop = Ins(f"  s_nop {pad - 1}")
            out.append(f"  s_nop {pad - 1}"); hist.append(nop); added += pad
            if verbose: print(f"pad {pad}: [{why.text.strip()}] -> [{ln.strip()}]")
        out.append(ln); hist.append(ins)
        if ins.op in ("s_branch", "s_endpgm", "s_setpc_b64"): hist = []
    return out, added
```

```python
import sys, math, struct
sys.path.insert(0, "exp")
import hz

KN = "sequential_preLN__ssm_conv_s4d__mixer_channel_mlp__prompt"
OPT = dict(stamps=False)
for a in sys.argv[2:]:
    k, _, v = a.partition("=")
    OPT[k] = int(v) if v else True

def f2u(x): return struct.unpack("<I", struct.pack("<f", x))[0]
def hx(x): return "0x%08x" % f2u(x)
def bf16_rne(x):
    u = f2u(x); return ((u + 0x7FFF + ((u >> 16) & 1)) >> 16) & 0xFFFF
def bf16_val(h): return struct.unpack("<f", struct.pack("<I", h << 16))[0]

OB1, OB2, ZB, HRB, HB, STAMP = 0x100000, 0x300000, 0x500000, 0x700000, 0x900000, 0x1100000
WS_SIZE = 0x1200000
LA, LB, LC = 0, 65536, 131072
TB = LB
TROW, TCH = 544, 34816
UB = LC + 4096; USZ = 4576
KB = UB + 2 * USZ; KCOPY = 4160; KSZ = 2 * KCOPY
STAT1 = KB + 2 * KSZ
RED = LC
LDS_SIZE = 163840
LOG2E = 1.4426950408889634
K1 = 2.0 * math.sqrt(2.0 / math.pi) * LOG2E
K2 = K1 * 0.044715
SS = -(K2 ** (1.0 / 3.0))
GC = K1 / abs(SS)
C0 = 1.5 * 2.0 ** -8
EPS = 1e-5
MASK = 0x70007000
SPIN = 20000

L = []
vmq = []; lgq = []
def e(s): L.append("  " + s)
def lab(s): L.append(s + ":")
def vm(s, tag=None): e(s); vmq.append(tag)
def ds(s, tag=None): e(s); lgq.append(tag)
def cnt(q, tag):
    idx = max(i for i, t in enumerate(q) if t == tag)
    return len(q) - 1 - idx
def wvm(tag): e("s_waitcnt vmcnt(%d)" % min(cnt(vmq, tag), 63))
def wlg(tag): e("s_waitcnt lgkmcnt(%d)" % min(cnt(lgq, tag), 15))
def wlg0(): e("s_waitcnt lgkmcnt(0)")
def V(a, n=1): return f"v{a}" if n == 1 else f"v[{a}:{a+n-1}]"
def A(a, n=1): return f"a{a}" if n == 1 else f"a[{a}:{a+n-1}]"
def S(a, n=1): return f"s{a}" if n == 1 else f"s[{a}:{a+n-1}]"
nstamp = [0]; stamp_names = []
def stamp(name):
    if not OPT["stamps"]: return
    e("s_memrealtime s[20:21]"); e("s_waitcnt lgkmcnt(0)")
    e(f"v_writelane_b32 v31, s20, {nstamp[0]}")
    nstamp[0] += 1; stamp_names.append(name)
def weave(main, fill, start=0, end=None):
    n = (len(main) if end is None else end) - start; k = 0
    for i, m in enumerate(main):
        m()
        if i >= start and i - start < n:
            t = (i - start + 1) * len(fill) // n
            for f in fill[k:t]: f()
            k = t
tail = []

sP, sW = 3, 6
SX, SLA, SAI, SCR, SCI, SLDT, SDSK = 8, 10, 12, 14, 16, 18, 20
SW1, SB1, SW2, SB2, SOUT, SWS = 24, 26, 28, 30, 32, 34
RWS, RW1, RW2, RWH = 36, 40, 44, 48
sLDT, sDSK, sE = 52, 53, 54
sTAG = 56
sO8 = 60
sKS, sWR = 68, 75
sOB1, sOB2, sZ0, sZ1, sHR0, sHR1, sHa, sHb = 82, 83, 84, 85, 86, 87, 88, 89
sCNT, sI, sB, sG, sT0, sT1, sM0, sG1a, sG1b, sTH = 90, 91, 92, 93, 94, 95, 96, 97, 98, 99
sW1a, sW1b = 100, 101
sPERMLO, sPERMHI = 22, 23
vL, vL16, vOBS, vDMA, vZS, vTR0, vTR1, vMASK, vONES = 1, 2, 3, 4, 5, 6, 7, 8, 9

lab_name = KN + "_kernel"
hdr = open("cdna_kernels/" + KN + ".s.ref").read().split("; Override launch")[0]
pre = hdr + f"; @launch grid=(256,1,1) block=(256,1,1) lds={LDS_SIZE}\n" + \
    f'.amdgcn_target "amdgcn-amd-amdhsa--gfx950"\n.text\n.globl {lab_name}\n.p2align 8\n.type {lab_name},@function\n{lab_name}:\n'

e("s_cmp_ge_u32 s2, 256"); e("s_cbranch_scc1 L_end")
e("s_load_dwordx16 s[8:23], s[0:1], 0")
e("s_load_dwordx2 s[34:35], s[0:1], 112")
e("s_load_dwordx8 s[24:31], s[0:1], 64")
e("s_load_dwordx2 s[32:33], s[0:1], 96")
e("s_getpc_b64 s[36:37]"); lab("L_pc")
e("s_mov_b32 s38, L_end-L_pc"); e("s_mov_b32 s39, 0x20000")
e("v_lshlrev_b32 v10, 7, v0")
vm("buffer_load_dword v11, v10, s[36:39], 0 offen", "pf")
e("s_and_b32 s3, s2, 7"); e("s_lshl_b32 s3, s3, 5"); e("s_lshr_b32 s7, s2, 3"); e("s_add_u32 s3, s3, s7")
e("v_lshrrev_b32 v12, 6, v0"); e("v_and_b32 v1, 63, v0")
e("v_readfirstlane_b32 s6, v12")
e("s_lshl_b32 s7, s3, 13")
e("v_lshrrev_b32 v13, 5, v0"); e("v_and_b32 v14, 31, v0")
e("v_lshlrev_b32 v14, 4, v14"); e("v_lshl_add_u32 v13, v13, 10, v14"); e("v_add_u32 v13, s7, v13")
e("v_lshrrev_b32 v14, 1, v0"); e("v_and_b32 v15, 1, v0")
e("v_lshlrev_b32 v16, 3, v14"); e("v_lshl_add_u32 v16, v15, 12, v16"); e("v_add_u32 v16, s7, v16")
e("s_lshl_b32 s4, s3, 9"); e("v_lshl_add_u32 v17, v0, 1, s4")
for r in range(48, 52): e(f"v_mov_b32 v{r}, 0")
e("v_lshlrev_b32 v2, 4, v1"); e("v_lshl_add_u32 v3, v12, 11, v2")
for r in range(56, 60): e(f"v_mov_b32 v{r}, 0")
for r in range(60, 64): e(f"v_mov_b32 v{r}, -1")
e("s_lshl_b32 s5, s3, 2")
e(f"s_add_u32 s{sOB1}, s7, {OB1}"); e(f"s_add_u32 s{sOB2}, s7, {OB2}")
if OPT["stamps"]: e("v_mov_b32 v31, 0")
e("s_waitcnt lgkmcnt(0)")
vm(f"global_load_dwordx4 v[32:35], v13, {S(SX,2)}", "xs")
vm(f"global_load_dwordx4 v[36:39], v13, {S(SX,2)} offset:512", "xs")
e(f"s_load_dword s{sE}, {S(SWS,2)}, 0")
e(f"s_load_dword s{sLDT}, {S(SLDT,2)}, s5")
e(f"s_load_dword s{sDSK}, {S(SDSK,2)}, s5")
for i in range(4): vm(f"global_load_dwordx2 {V(40+2*i,2)}, v16, {S(SX,2)} offset:{1024*i}", "xg")
for i, p in enumerate((SLA, SAI, SCR, SCI)): vm(f"global_load_short_d16_hi v{48+i}, v17, {S(p,2)}", "par")
e(f"s_mov_b32 s{RWS}, s{SWS}"); e(f"s_mov_b32 s{RWS+1}, s{SWS+1}"); e(f"s_mov_b32 s{RWS+2}, {WS_SIZE}"); e(f"s_mov_b32 s{RWS+3}, 0x20000")
for k in range(2): vm(f"buffer_store_dwordx4 v[56:59], v3, {S(RWS,4)}, s{sOB1} offen offset:{1024*k} sc1", "clr")
for k in range(2): vm(f"buffer_store_dwordx4 v[60:63], v3, {S(RWS,4)}, s{sOB2} offen offset:{1024*k} sc1", "clr")
stamp("issued")
e(f"s_and_b32 s{sI}, s3, 15"); e(f"s_lshr_b32 s{sG}, s3, 4"); e(f"s_and_b32 s{sB}, s{sG}, 1"); e(f"s_lshr_b32 s{sTH}, s{sI}, 3")
e(f"s_cmp_lt_u32 s{sI}, 14")
e(f"s_cselect_b32 s{RW1+2}, {512*1792*2}, 0"); e(f"s_cselect_b32 s{RWH+2}, {WS_SIZE}, 0")
e(f"s_mov_b32 s{RW1}, s{SW1}"); e(f"s_mov_b32 s{RW1+1}, s{SW1+1}"); e(f"s_mov_b32 s{RW1+3}, 0x20000")
e(f"s_mov_b32 s{RWH}, s{SWS}"); e(f"s_mov_b32 s{RWH+1}, s{SWS+1}"); e(f"s_mov_b32 s{RWH+3}, 0x20000")
e(f"s_mov_b32 s{RW2}, s{SW2}"); e(f"s_mov_b32 s{RW2+1}, s{SW2+1}"); e(f"s_mov_b32 s{RW2+2}, {1792*512*2}"); e(f"s_mov_b32 s{RW2+3}, 0x20000")
e("v_bfe_u32 v18, v1, 4, 1"); e("v_lshlrev_b32 v18, 2, v18"); e("v_and_b32 v19, 7, v1"); e("v_xor_b32 v18, v18, v19")
e("v_lshlrev_b32 v18, 4, v18"); e("v_lshrrev_b32 v19, 3, v1")
e(f"v_lshl_add_u32 v{vDMA}, v19, 10, v18")
e("v_mul_u32_u24 v20, 3584, v19"); e("v_add_u32 v20, v20, v18")
for i in range(1, 4): e(f"v_add_u32 v{20+i}, {i*(28672-1024)}, v20")
e(f"s_mul_i32 s4, s6, {128*3584}"); e(f"s_lshl_b32 s5, s{sI}, 8"); e("s_add_u32 s4, s4, s5")
e(f"s_lshl_b32 s5, s{sB}, 7"); e(f"s_add_u32 s{sW1a}, s4, s5"); e("s_xor_b32 s5, s5, 128"); e(f"s_add_u32 s{sW1b}, s4, s5")
e(f"s_lshl_b32 s{sM0}, s6, 14")

def dma_w1(sreg, region, g0, g1, tag):
    out = []
    for g in range(g0, g1):
        def head(g=g):
            e(f"s_add_u32 m0, s{sM0}, {region + 4096*g}")
            e(f"s_add_u32 s{sT0}, s{sreg}, {g*4*28672}")
        for i in range(4):
            def f(g=g, i=i, head=head):
                if i == 0: head()
                vm(f"buffer_load_dwordx4 v{20+i}, {S(RW1,4)}, s{sT0} offen offset:{1024*i} lds", tag)
            out.append(f)
    return out
for f in dma_w1(sW1a, LA, 0, 2, "w1a"): f()

e("v_cmp_gt_u32 vcc, 30, v1"); e(f"s_lshr_b32 s7, s6, 1")
e(f"s_and_b32 s5, s6, 1")
e(f"s_mul_i32 s4, s7, {USZ}"); e(f"s_add_u32 s4, s4, {UB}")
e(f"v_add_u32 v24, s4, v2"); e(f"v_mov_b32 v25, {STAT1+128}"); e("v_cndmask_b32 v24, v25, v24, vcc")
ds("ds_write_b128 v24, v[56:59]")
e("v_cmp_gt_u32 vcc, 4, v1")
e(f"s_mul_i32 s{sT0}, s6, {KCOPY}"); e(f"s_add_u32 s{sT0}, s{sT0}, {KB+4096}")
e(f"v_add_u32 v24, s{sT0}, v2"); e("v_cndmask_b32 v24, v25, v24, vcc")
ds("ds_write_b128 v24, v[56:59]")
vB, vA = 10, 24
e("v_and_b32 v18, 15, v1"); e("v_lshrrev_b32 v19, 4, v1")
e("s_lshl_b32 s%d, s5, 8" % sT0); e(f"s_sub_u32 s4, s4, s{sT0}"); e("s_add_u32 s4, s4, 256")
e("v_lshlrev_b32 v28, 4, v19")
e("v_lshl_add_u32 v10, v18, 5, v28"); e("v_add_u32 v10, s4, v10")
e(f"s_mul_i32 s4, s7, {KSZ}"); e(f"s_add_u32 s4, s4, {KB}")
e(f"s_sub_u32 s{sT1}, s4, s{sT0}"); e(f"s_add_u32 s{sT1}, s{sT1}, {2*(2031-256*7-96)}")
e("v_lshlrev_b32 v29, 1, v18"); e("v_sub_u32 v27, v28, v29"); e(f"v_add_u32 v27, s{sT1}, v27")
e("v_and_b32 v29, 1, v18"); e("v_xor_b32 v29, 1, v29"); e(f"v_mul_u32_u24 v29, {KCOPY+2}, v29"); e("v_add_u32 v27, v27, v29")
for b2 in range(3): e(f"v_add_u32 v{24+b2}, {1024*(3-b2)}, v27")
vKW = 12
e("v_and_b32 v29, 7, v18"); e("v_lshrrev_b32 v30, 3, v18"); e("v_lshl_add_u32 v29, v29, 1, v30")
e("v_lshlrev_b32 v29, 5, v29"); e("v_lshl_add_u32 v29, v19, 3, v29")
e(f"s_lshl_b32 s{sT0}, s5, 11"); e(f"s_sub_u32 s4, s4, s{sT0}"); e(f"s_add_u32 s4, s4, {2*(2044-768)}")
e("v_sub_u32 v12, s4, v29")
e(f"s_mul_i32 s4, s7, {TCH}"); e(f"s_add_u32 s4, s4, {TB}")
e("v_and_b32 v29, 127, v0"); e("v_lshl_add_u32 v96, v29, 2, s4")
for r in range(1, 8): e(f"v_add_u32 v{96+r}, {r*TROW}, v96")
e("v_add_u32 v28, s4, v28")
e(f"v_mov_b32 v30, {TROW}")
e("v_mad_u32_u24 v104, v18, v30, v28")
e("v_cvt_f32_u32 v29, v18")
e(f"s_mov_b32 s4, {hx(0.125)}"); e("s_cmp_eq_u32 s5, 0")
for t, (sc0, b0, b1) in enumerate(((1.0, 16, 37), (0.5, 51, 45), (0.25, 32, 48), (0.25, 40, 56))):
    e(f"s_cselect_b32 s{sT0}, {hx(sc0)}, s4")
    e(f"s_cselect_b32 s{sT1}, {b0}, {b1}")
    e(f"v_mul_f32 v109, s{sT0}, v29"); e("v_rndne_f32 v109, v109"); e("v_cvt_u32_f32 v109, v109")
    if t == 1:
        e("v_cmp_lt_u32 vcc, 4, v109"); e("v_add_u32 v110, 3, v109"); e("v_cndmask_b32 v109, v109, v110, vcc")
    e(f"v_add_u32 v109, s{sT1}, v109"); e(f"v_mad_u32_u24 v{105+t}, v109, v30, v28")
e("v_lshrrev_b32 v29, 5, v0"); e(f"v_lshlrev_b32 v29, 3, v29"); e(f"v_add_u32 v29, {STAT1}, v29")
e("v_and_b32 v30, 16, v0"); e("v_cmp_ne_u32 vcc, 0, v30"); e(f"v_mov_b32 v30, {STAT1+128}"); e("v_cndmask_b32 v13, v30, v29, vcc")
e(f"v_lshlrev_b32 v15, 5, v15"); e(f"v_add_u32 v15, {STAT1}, v15")
e(f"v_mov_b32 v{vMASK}, {hex(MASK)}"); e(f"v_mov_b32 v{vONES}, 0x3f803f80")
e("v_mov_b32 v52, 0"); e("v_mov_b32 v53, 0")
e("v_and_b32 v29, 1, v0"); e("v_lshlrev_b32 v29, 4, v29"); e("v_lshl_add_u32 v14, v14, 13, v29")
e(f"v_lshlrev_b32 v16, 3, v0"); e(f"v_add_u32 v16, {UB+480}, v16")
e("s_and_b32 s4, s3, 0xc0"); e(f"s_and_b32 s{sT0}, s3, 1"); e(f"s_lshl_b32 s{sT0}, s{sT0}, 5"); e(f"s_add_u32 s4, s4, s{sT0}")
e(f"s_bfe_u32 s{sT0}, s3, 0x50001"); e(f"s_add_u32 s4, s4, s{sT0}"); e("s_lshl_b32 s4, s4, 5")
e(f"s_add_u32 s{sG1a}, s4, {OB1}"); e(f"s_add_u32 s{sG1b}, s4, {OB1 + 128*8192}")
e(f"s_mov_b32 s{sPERMLO}, 0x05040100"); e(f"s_mov_b32 s{sPERMHI}, 0x07060302")

wlg0()
wvm("xs")
stamp("x_in")
for i in range(8):
    e(f"v_dot2c_f32_bf16 v52, v{32+i}, v{vONES}"); e(f"v_dot2c_f32_bf16 v53, v{32+i}, v{32+i}")
tagops = [f"s_add_u32 s{sE}, s{sE}, 1", f"s_mov_b32 s{sE+1}, s{sE}"]
for j, r in enumerate((4, 7, 10, 13)):
    tagops += [f"s_lshr_b64 s[4:5], s[{sE}:{sE+1}], {r}", f"s_and_b32 s{sTAG+j}, s4, {hex(MASK)}"]
tagops += [f"s_cmp_eq_u32 s{sTAG}, s{sTAG+1}", "s_cselect_b32 s4, 0x1000, 0", f"s_xor_b32 s{sTAG+1}, s{sTAG+1}, s4"]
for t in tagops[:3]: e(t)
k = 3
for d in ("quad_perm:[1,0,3,2]", "quad_perm:[2,3,0,1]", "row_half_mirror", "row_mirror", "row_bcast:15 row_mask:0xa"):
    e(f"v_add_f32 v52, v52, v52 {d}"); e(f"v_add_f32 v53, v53, v53 {d}")
    for t in tagops[k:k+2]: e(t)
    k += 2
e(f"v_mul_f32 v52, {hx(1/512)}, v52")
e(f"v_mul_f32 v53, {hx(1/512)}, v53")
e("v_fma_f32 v53, -v52, v52, v53")
e("v_max_f32 v53, 0, v53")
e(f"v_add_f32 v53, {hx(EPS)}, v53")
e("v_rsq_f32 v53, v53")
wvm("xg")
e("v_lshlrev_b32 v64, 16, v40")
e(f"v_mul_f32 v54, {hx(1/16)}, v53")
e(f"v_mul_f32 v52, v52, v54"); e(f"v_sub_f32 v55, {hx(C0)}, v52")
ds("ds_write_b64 v13, v[54:55]")
e("v_and_b32 v65, 0xffff0000, v40")
for d in range(1, 8):
    e(f"v_lshlrev_b32 v{64+2*d}, 16, v{40+d}"); e(f"v_and_b32 v{65+2*d}, 0xffff0000, v{40+d}")
e("s_waitcnt vmcnt(%d) lgkmcnt(0)" % cnt(vmq, "clr"))
e("s_barrier")
ds("ds_read_b128 v[32:35], v15", "st"); ds("ds_read_b128 v[36:39], v15 offset:16", "st")
e(f"s_mov_b32 s4, {hx(-C0)}")
wlg0()
for d in range(8):
    i = d >> 1
    e(f"v_pk_fma_f32 {V(64+2*d,2)}, {V(64+2*d,2)}, {V(32+2*i,2)}, {V(32+2*i,2)} op_sel:[0,0,1] op_sel_hi:[1,0,1]")
for d in range(8): e(f"v_pk_add_f32 {V(64+2*d,2)}, {V(64+2*d,2)}, s[4:5] op_sel_hi:[1,0]")
for par in range(2):
    for i in range(4): e(f"v_cvt_pk_bf16_f32 v{40+4*par+i}, v{64+2*(2*i+par)}, v{65+2*(2*i+par)}")
    for i in range(4): e(f"v_bfi_b32 v{40+4*par+i}, v{vMASK}, s{sTAG+i}, v{40+4*par+i}")
    vm(f"buffer_store_dwordx4 {V(40+4*par,4)}, v3, {S(RWS,4)}, s{sOB1} offen offset:{1024*par} sc1", "ob1")
stamp("u_out")
for f in dma_w1(sW1a, LA, 2, 4, "w1a"): f()

e("s_lshr_b32 s7, s6, 1"); e("s_cmp_eq_u32 s7, 0"); e("s_cselect_b32 s4, 16, 0")
e(f"s_lshl_b32 s{sLDT}, s{sLDT}, s4"); e(f"s_and_b32 s{sLDT}, s{sLDT}, 0xffff0000")
e(f"s_lshl_b32 s{sDSK}, s{sDSK}, s4"); e(f"s_and_b32 s{sDSK}, s{sDSK}, 0xffff0000")
e(f"v_mov_b32 v32, {hx(LOG2E)}")
e(f"v_mul_f32 v33, s{sLDT}, v32"); e("v_mul_f32 v34, v48, v32")
e("v_exp_f32 v33, v33"); e("v_exp_f32 v34, v34")
e("v_and_b32 v30, 127, v0")
e("v_cvt_pk_bf16_f32 v33, v33, v34")
e("v_cmp_eq_u32 vcc, 0, v30")
e("v_and_b32 v34, 0xffff0000, v33"); e("v_lshlrev_b32 v33, 16, v33")
e("v_mul_f32 v34, v34, v33"); e("v_mul_f32 v35, v49, v33")
e(f"v_mul_f32 v34, {hx(-LOG2E)}, v34"); e("v_mul_f32 v35, 0.15915494, v35")
e(f"v_mul_f32 v36, {hx(32.0)}, v33")
e(f"v_mov_b32 v30, {hx(16.0)}"); e(f"v_mul_f32 v30, s{sDSK}, v30"); e("v_cndmask_b32 v30, 0, v30, vcc")
ZP = lambda p: 128 + 2 * p
ZT = lambda t: 160 + 2 * t
CE, CO, Z32 = 176, 178, 180
e(f"v_pk_mul_f32 {V(CE,2)}, v[50:51], v[36:37] op_sel_hi:[1,0]")
anch = ((1, ZP(1)), (16, ZP(16)), (256, ZT(1)))
for k, (p, d) in enumerate(anch):
    if p == 1:
        e(f"v_exp_f32 v{38+k}, v34"); e(f"v_fract_f32 v{42+k}, v35")
    else:
        e(f"v_mul_f32 v{38+k}, {hx(p)}, v34"); e(f"v_mul_f32 v{42+k}, {hx(p)}, v35")
        e(f"v_exp_f32 v{38+k}, v{38+k}"); e(f"v_fract_f32 v{42+k}, v{42+k}")
for k, (p, d) in enumerate(anch):
    e(f"v_cos_f32 v{d}, v{42+k}"); e(f"v_sin_f32 v{d+1}, v{42+k}")
e(f"v_mov_b32 v{ZP(0)}, 1.0"); e(f"v_mov_b32 v{ZP(0)+1}, 0")
for k, (p, d) in enumerate(anch):
    s0 = 38 + k
    e(f"v_pk_mul_f32 {V(d,2)}, {V(d,2)}, {V(s0 & ~1,2)} op_sel:[0,{s0&1}] op_sel_hi:[1,{s0&1}]")
def cmuls(lst):
    for d, a, b in lst: e(f"v_pk_mul_f32 {V(d,2)}, {V(a,2)}, {V(b,2)} op_sel_hi:[1,0]")
    for d, a, b in lst: e(f"v_pk_fma_f32 {V(d,2)}, {V(a,2)}, {V(b,2)}, {V(d,2)} op_sel:[1,1,0] op_sel_hi:[0,1,1] neg_lo:[1,0,0]")
rot = [0]
def put(r, jj, a, b, neg=False):
    t = 44 + 2 * (rot[0] % 2); rot[0] += 1
    n = "-" if neg else ""
    e(f"v_cvt_pk_bf16_f32 v{t}, v{a}, {n}v{a+1}"); e(f"v_cvt_pk_bf16_f32 v{t+1}, v{b}, {n}v{b+1}")
    ds(f"ds_write2st64_b32 v{96+r}, v{t}, v{t+1} offset0:{17*jj} offset1:{17*(jj+1)}")
cmuls([(ZP(2), ZP(1), ZP(1)), (Z32, ZP(16), ZP(16)), (CO, CE, ZP(16)), (ZT(2), ZT(1), ZT(1))])
cmuls([(ZP(3), ZP(2), ZP(1)), (ZP(4), ZP(2), ZP(2)), (ZT(3), ZT(2), ZT(1)), (ZT(4), ZT(2), ZT(2))])
put(0, 0, CE, CO, True)
cur = (CE, CO)
def left(r):
    global cur
    nx = (184, 186) if cur[0] == CE else (CE, CO)
    cmuls([(nx[0], cur[0], Z32), (nx[1], cur[1], Z32)]); put(r, 0, nx[0], nx[1], True); cur = nx
cmuls([(ZP(5), ZP(4), ZP(1)), (ZP(6), ZP(4), ZP(2)), (ZP(7), ZP(4), ZP(3)), (ZP(8), ZP(4), ZP(4))])
left(1)
cmuls([(ZT(5), ZT(4), ZT(1)), (ZT(6), ZT(4), ZT(2)), (ZT(7), ZT(4), ZT(3))])
put(0, 2, ZP(0), ZP(8))
left(2)
for r in (1, 3, 5):
    cmuls([(ZP(8+r), ZP(8), ZP(r)), (ZP(9+r), ZP(8), ZP(r+1))]); put(r, 2, ZP(r), ZP(8+r)); put(r+1, 2, ZP(r+1), ZP(9+r))
    left(3 + r // 2)
T0, T1 = 188, 190
cmuls([(ZP(15), ZP(8), ZP(7)), (T1, ZT(1), ZP(10))]); put(7, 2, ZP(7), ZP(15)); put(3, 6, ZT(1), T1)
left(6)
for i in range(1, 5):
    cmuls([(T0, ZT(1), ZP(2*i)), (T1, ZT(1), ZP(min(10+2*i, 16)))] if i < 4 else [(T0, ZT(1), ZP(8))]); put(3+i, 6, T0, T1)
left(7)
put(0, 4, ZT(2), ZT(3))
for i in range(1, 5): cmuls([(T0, ZT(2), ZP(4*i)), (T1, ZT(3), ZP(4*i))]); put(i, 4, T0, T1)
put(5, 4, ZT(4), ZT(5))
for i in range(1, 3): cmuls([(T0, ZT(4), ZP(8*i)), (T1, ZT(5), ZP(8*i))]); put(5+i, 4, T0, T1)
put(0, 6, ZT(6), ZT(7))
for i in range(1, 3): cmuls([(T0, ZT(6), ZP(8*i)), (T1, ZT(7), ZP(8*i))]); put(i, 6, T0, T1)
wlg0(); e("s_barrier")
stamp("tables")
def h1_loads():
    vm(f"buffer_load_dwordx4 v[32:35], v14, {S(RWS,4)}, s{sG1a} offen sc1", "h1")
    vm(f"buffer_load_dwordx4 v[36:39], v14, {S(RWS,4)}, s{sG1b} offen sc1", "h1")
h1_loads()
order = [(ks, t) for ks in range(8) for t in range(4)]
AF = lambda n: 160 + 4 * (n % 24)
def rdB(ks): ds(f"ds_read_b128 {V(128+4*ks,4)}, v104 offset:{64*ks}", ("kb", ks))
def rdA(n): ks, t = order[n]; ds(f"ds_read_b128 {V(AF(n),4)}, v{105+t} offset:{64*ks}", ("ka", n))
def rd(n):
    if n < 32:
        if n % 4 == 0: rdB(n // 4)
        rdA(n)
for n in range(8): rd(n)
for n, (ks, t) in enumerate(order):
    wlg(("ka", n))
    e(f"v_mfma_f32_16x16x32_bf16 {V(64+4*t,4)}, {V(AF(n),4)}, {V(128+4*ks,4)}, {V(64+4*t,4) if ks else 0}")
    rd(n + 8)
e("v_add_f32 v64, v64, v30")
for t in range(4):
    a = 64 + 4 * t; o = 512 * (3 - t); p = 40 + 4 * (t & 1)
    e(f"v_cvt_pk_bf16_f32 v{p}, v{a+3}, v{a+2}"); e(f"v_cvt_pk_bf16_f32 v{p+1}, v{a+1}, v{a}"); e(f"v_cvt_pk_bf16_f32 v{p+2}, v{a+2}, v{a+1}")
    ds(f"ds_write_b64 v12, {V(p,2)} offset:{o}")
    ds(f"ds_write_b16 v12, v{p} offset:{o+KCOPY+2}")
    ds(f"ds_write_b32 v12, v{p+2} offset:{o+KCOPY+4}")
    ds(f"ds_write_b16_d16_hi v12, v{p+1} offset:{o+KCOPY+8}")
wlg0(); e("s_barrier")
stamp("K_done")
FA = lambda st, d1: 128 + 64 * (st & 1) + 4 * d1
FB = lambda st, sg: 160 + 64 * (st & 1) + 4 * sg
def rdCA(st, d1, hf):
    o = 128 * (1 - (d1 & 1)) + 16 * (3 - st) + 2 * hf
    ds(f"ds_read2_b32 {V(FA(st,d1)+2*hf,2)}, v{vA+(d1>>1)} offset0:{o} offset1:{o+1}", ("ca", st))
def rdCB(st, sg): ds(f"ds_read_b128 {V(FB(st,sg),4)}, v{vB} offset:{512*sg+64*(3-st)}", ("cb", st, sg))
for d1 in range(8):
    for hf in range(2): rdCA(0, d1, hf)

e(f"s_lshr_b32 s4, s3, 2"); e("s_lshl_b32 s4, s4, 15"); e("s_and_b32 s5, s3, 3"); e("s_lshl_b32 s5, s5, 7"); e("s_add_u32 s4, s4, s5")
e(f"s_add_u32 s{sZ0}, s4, {ZB}"); e(f"s_add_u32 s{sZ1}, s4, {ZB+4096}"); e(f"s_add_u32 s{sHR0}, s4, {HRB}"); e(f"s_add_u32 s{sHR1}, s4, {HRB+4096}")
e(f"s_lshl_b32 s4, s{sG}, 2"); e("s_add_u32 s4, s4, s6"); e("s_mul_i32 s4, s4, 114688")
e(f"s_lshl_b32 s5, s{sI}, 13"); e("s_add_u32 s4, s4, s5"); e(f"s_add_u32 s4, s4, {HB}")
e(f"s_lshl_b32 s5, s{sB}, 12"); e(f"s_add_u32 s{sHa}, s4, s5"); e("s_xor_b32 s5, s5, 4096"); e(f"s_add_u32 s{sHb}, s4, s5")
e("s_mul_i32 s4, s6, 7")
for n in range(7):
    e(f"s_lshr_b32 s5, s4, 1"); e("s_lshl_b32 s5, s5, 3"); e("s_and_b32 s7, s4, 1"); e("s_add_u32 s5, s5, s7")
    e(f"s_lshl_b32 s{sKS+n}, s5, 10"); e(f"s_lshl_b32 s{sWR+n}, s5, 14"); e("s_add_u32 s4, s4, 1")
e("s_lshl_b32 s4, s3, 5")
for k in range(2):
    for i in range(4): e(f"s_add_u32 s{sO8+4*k+i}, s4, {OB2 + (32*k+i)*8192}")
e("v_and_b32 v18, 7, v1"); e("v_lshrrev_b32 v19, 3, v1"); e("s_lshl_b32 s4, s6, 4"); e("v_add_u32 v19, s4, v19")
e("v_lshlrev_b32 v28, 4, v18"); e(f"v_lshl_add_u32 v{vZS}, v19, 9, v28")
e("v_lshlrev_b32 v28, 2, v18"); e("v_lshl_add_u32 v11, v19, 15, v28")
e("v_lshlrev_b32 v28, 10, v18"); e("v_lshl_add_u32 v13, v19, 4, v28"); e("s_lshl_b32 s4, s3, 13"); e("v_add_u32 v13, s4, v13")
e(f"s_and_b32 s4, s{sI}, 7"); e("s_lshl_b32 s4, s4, 7"); e(f"s_lshl_b32 s5, s{sB}, 16"); e("s_add_u32 s4, s4, s5")
e(f"v_add_u32 v{vDMA}, s4, v{vDMA}")
e(f"s_mov_b32 s{sCNT}, 0")

wvm("h1")
lab("L_h1chk")
for d in range(8): e(f"v_xor_b32 v{32+d}, s{sTAG+(d&3)}, v{32+d}")
e("v_or3_b32 v40, v32, v33, v34"); e("v_or3_b32 v41, v35, v36, v37"); e("v_or3_b32 v40, v40, v38, v39")
e(f"v_bitop3_b32 v40, v40, v41, v{vMASK} bitop3:0xa8")
e("v_cmp_ne_u32 vcc, 0, v40")
e("s_cbranch_vccnz L_h1retry")
lab("L_h1ok")
def retry(name, loads, nlater=0):
    def f():
        lab(f"L_{name}retry")
        e(f"s_add_u32 s{sCNT}, s{sCNT}, 1"); e(f"s_cmp_gt_u32 s{sCNT}, {SPIN}"); e(f"s_cbranch_scc1 L_{name}ok")
        e("s_nop 7")
        loads()
        e(f"s_waitcnt vmcnt({nlater})"); e(f"s_branch L_{name}chk")
    tail.append(f)
retry("h1", h1_loads)
e("s_mov_b32 s4, 0x30003000")
for g in range(2):
    b = 32 + 4 * g; o = 40 + 4 * g
    e(f"v_perm_b32 v{o}, v{b+1}, v{b}, s{sPERMLO}"); e(f"v_perm_b32 v{o+1}, v{b+3}, v{b+2}, s{sPERMLO}")
    e(f"v_perm_b32 v{o+2}, v{b+1}, v{b}, s{sPERMHI}"); e(f"v_perm_b32 v{o+3}, v{b+3}, v{b+2}, s{sPERMHI}")
    for i in range(4): e(f"v_or_b32 v{o+i}, s4, v{o+i}")
    ds(f"ds_write_b64 v16, {V(o,2)} offset:{2048*g}"); ds(f"ds_write_b64 v16, {V(o+2,2)} offset:{2048*g+USZ}")
wlg0(); e("s_barrier")
stamp("u_in")
for sg in range(8): rdCB(0, sg)

def dma_w2(r, ns, lbase, tag):
    out = []
    for x, n in enumerate(ns):
        def f0(x=x, n=n):
            e(f"s_add_u32 m0, s{sM0}, {lbase + 2048*x}")
            e(f"s_add_u32 s{sT0}, s{sWR+n}, {(r&1)*32768}")
            vm(f"buffer_load_dwordx4 v{vDMA}, {S(RW2,4)}, s{sT0} offen lds", tag)
        def f1(x=x, n=n):
            e(f"s_add_u32 s{sT0}, s{sT0}, {8192-1024}")
            vm(f"buffer_load_dwordx4 v{vDMA}, {S(RW2,4)}, s{sT0} offen offset:1024 lds", tag)
        out += [f0, f1]
    return out
W2R = lambda r, n, ct: 56 * r + 8 * n + 4 * ct
def tr_w2(r, ns, vb0, off):
    out = []
    for x, n in enumerate(ns):
        for ct in range(2):
            for hf in range(2):
                out.append(lambda x=x, n=n, ct=ct, hf=hf: ds(f"ds_read_b64_tr_b16 {A(W2R(r,n,ct)+2*hf,2)}, v{vb0+ct} offset:{off+2048*x+1024*hf}", ("w2", r)))
    return out
bg = []
def epoch_store():
    e("s_cmp_lg_u32 s2, 0"); e("s_cbranch_scc1 L_noepoch")
    e(f"v_mov_b32 v18, s{sE}"); e("v_mov_b32 v19, 0")
    e(f"buffer_store_dword v18, v19, {S(RWS,4)}, 0 offen sc1")
    lab("L_noepoch")
epoch_store()
for sr in (sZ0, sZ1, sHR0, sHR1):
    bg.append(lambda sr=sr: vm(f"buffer_store_dwordx4 v[60:63], v{vZS}, {S(RWS,4)}, s{sr} offen sc1", "clr2"))
for sr in (sHa, sHb):
    for i in range(4):
        bg.append(lambda sr=sr, i=i: vm(f"buffer_store_dwordx4 v[60:63], v{vL16}, {S(RWH,4)}, s{sr} offen offset:{1024*i} sc1", "clr2"))
bg.append(lambda: vm(f"global_load_dwordx4 v[48:51], v13, {S(SX,2)}", "x2"))
bg.append(lambda: vm(f"global_load_dwordx4 v[52:55], v13, {S(SX,2)} offset:128", "x2"))
bg += dma_w2(0, range(7), LB, "w2r0")

ACC = lambda t: 64 + 4 * t
def red_addr():
    e("v_and_b32 v18, 15, v1"); e("v_lshrrev_b32 v19, 4, v1")
    e("v_lshl_add_u32 v18, v19, 2, v18"); e("v_and_b32 v18, 15, v18"); e("v_lshlrev_b32 v18, 4, v18"); e("v_lshl_add_u32 v12, v19, 8, v18")
    e("s_lshl_b32 s4, s6, 13"); e(f"s_add_u32 s4, s4, {RED}"); e("v_add_u32 v12, s4, v12")
    e("v_and_b32 v19, 3, v1"); e("v_lshrrev_b32 v18, 2, v1")
    e("v_lshl_add_u32 v18, v19, 2, v18"); e("v_and_b32 v18, 15, v18"); e("v_lshlrev_b32 v18, 4, v18"); e("v_lshl_add_u32 v14, v19, 8, v18")
    e("s_lshl_b32 s4, s6, 11"); e(f"s_add_u32 s4, s4, {RED}"); e("v_add_u32 v14, s4, v14")
    e("v_and_b32 v18, 7, v1"); e("v_lshlrev_b32 v18, 3, v18"); e(f"v_add_u32 v16, {RED}, v18"); e("v_add_u32 v15, s4, v18")
red_addr()
nbg = len(bg)
for st in range(4):
    if st < 3: seq = [(sg + d1, d1, sg) for sg in range(8) for d1 in range(8 - sg)]
    else: seq = [(t, d1, t - d1) for t in range(8) for d1 in range(t + 1)]
    main = []
    for n, (t, d1, sg) in enumerate(seq):
        def f(t=t, d1=d1, sg=sg):
            if st == 0 and d1 == 0: wlg(("cb", 0, sg))
            e(f"v_mfma_f32_16x16x32_bf16 {V(ACC(t),4)}, {V(FA(st,d1),4)}, {V(FB(st,sg),4)}, {0 if (st == 0 and sg == 0) else V(ACC(t),4)}")
        main.append(f)
    if st < 3:
        fill = [lambda d1=d1, hf=hf: rdCA(st + 1, d1, hf) for d1 in range(8) for hf in range(2)] + [lambda sg=sg: rdCB(st + 1, sg) for sg in range(8)]
        part = bg[st * nbg // 3:(st + 1) * nbg // 3]
        mix = []
        for i, f in enumerate(fill):
            mix.append(f)
            lo = i * len(part) // len(fill); hi = (i + 1) * len(part) // len(fill)
            mix += part[lo:hi]
        weave(main, mix, 0, 34)
        wlg0()
        if st == 2: e("s_barrier")
    else:
        done = {t * (t + 1) // 2 + t: t for t in range(8)}
        pend = []
        for n, f in enumerate(main):
            f()
            if n in done: pend.append((n, done[n]))
            if pend and n - pend[0][0] >= 8:
                t = pend.pop(0)[1]; ds(f"ds_write_b128 v12, {V(ACC(t),4)} offset:{1024*t}")
        for _, t in pend: ds(f"ds_write_b128 v12, {V(ACC(t),4)} offset:{1024*t}")
e("s_waitcnt vmcnt(%d) lgkmcnt(0)" % cnt(vmq, "clr2"))
e("s_barrier")
stamp("conv")
for k in range(2):
    for src in range(4): ds(f"ds_read_b128 {V(64+16*k+4*src,4)}, v14 offset:{8192*src+1024*k}", ("red", k))
for k in range(2):
    b = 64 + 16 * k
    wlg(("red", k))
    for c in range(2):
        for hf in range(2): e(f"v_pk_add_f32 {V(b+8*c+2*hf,2)}, {V(b+8*c+2*hf,2)}, {V(b+8*c+4+2*hf,2)}")
    for i in range(4): e(f"v_cvt_pk_bf16_f32 v{40+4*k+i}, v{b+i}, v{b+8+i}")
    vm(f"buffer_store_dwordx4 {V(40+4*k,4)}, v3, {S(RWS,4)}, s{sOB2} offen offset:{1024*k} sc1", "ob2")
stamp("a_out")

e("v_bfe_u32 v18, v1, 2, 2"); e("v_lshlrev_b32 v18, 7, v18"); e("v_bfe_u32 v19, v1, 4, 1"); e("v_lshl_add_u32 v18, v19, 5, v18")
e("v_and_b32 v19, 3, v1"); e("v_lshl_add_u32 v18, v19, 3, v18"); e("v_bfe_u32 v19, v1, 3, 1"); e("v_lshl_add_u32 v18, v19, 6, v18")
e("v_lshrrev_b32 v19, 5, v1")
e(f"v_lshl_add_u32 v{vTR0}, v19, 10, v18"); e(f"v_xor_b32 v{vTR1}, 64, v{vTR0}")
e("v_lshl_add_u32 v24, v19, 9, v18"); e(f"s_add_u32 s4, s{sM0}, {LB}"); e("v_add_u32 v24, s4, v24"); e("v_xor_b32 v25, 64, v24")
for d in range(8):
    if d == 0: wvm("x2")
    e(f"v_lshlrev_b32 v{96+2*d}, 16, v{48+d}"); e(f"v_and_b32 v{97+2*d}, 0xffff0000, v{48+d}")
wvm("w2r0")
for f in tr_w2(0, range(7), 24, 0): f()
wlg0()
for f in dma_w2(1, range(7), LB, "w2r1"): f()
e(f"s_mov_b32 s{sCNT}, 0")
def h2_loads():
    for d in range(8): vm(f"buffer_load_dword v{32+d}, v11, {S(RWS,4)}, s{sO8+d} offen sc1", "h2")
wvm("ob2")
h2_loads()
wvm("h2")
lab("L_h2chk")
e("v_max3_u32 v40, v32, v33, v34"); e("v_max3_u32 v41, v35, v36, v37"); e("v_max3_u32 v40, v40, v38, v39"); e("v_max_u32 v40, v40, v41")
e("v_cmp_eq_u32 vcc, -1, v40")
e("s_cbranch_vccnz L_h2retry")
lab("L_h2ok")
retry("h2", h2_loads)
stamp("a_in")
for d in range(8):
    e(f"v_lshlrev_b32 v{64+2*d}, 16, v{32+d}"); e(f"v_and_b32 v{65+2*d}, 0xffff0000, v{32+d}")
for d in range(8): e(f"v_pk_add_f32 {V(64+2*d,2)}, {V(64+2*d,2)}, {V(96+2*d,2)}")
e("v_mov_b32 v52, 0"); e("v_mov_b32 v53, 0")
for d in range(8): e(f"v_cvt_pk_bf16_f32 v{40+d}, v{64+2*d}, v{65+2*d}")
for d in range(8):
    e(f"v_dot2c_f32_bf16 v52, v{40+d}, v{vONES}"); e(f"v_dot2c_f32_bf16 v53, v{40+d}, v{40+d}")
unp = []
for d in range(8): unp += [f"v_lshlrev_b32 v{64+2*d}, 16, v{40+d}", f"v_and_b32 v{65+2*d}, 0xffff0000, v{40+d}"]
for t in unp[:3]: e(t)
e("v_add_f32 v52, v52, v52 row_ror:8"); e("v_add_f32 v53, v53, v53 row_ror:8")
for t in unp[3:5]: e(t)
e("v_permlane16_swap_b32 v52, v53")
e("v_add_f32 v52, v52, v53")
e("v_mov_b32 v53, v52")
for t in unp[5:7]: e(t)
e("v_permlane32_swap_b32 v52, v53")
e("v_add_f32 v52, v52, v53")
e("v_bfe_u32 v18, v1, 4, 1"); e("v_lshl_add_u32 v18, v18, 2, v15")
ds("ds_write_b32 v18, v52")
for t in unp[7:]: e(t)
wlg0(); e("s_barrier")
ds("ds_read2st64_b64 v[32:35], v16 offset0:0 offset1:4"); ds("ds_read2st64_b64 v[36:39], v16 offset0:8 offset1:12")
e(f"s_mov_b32 s4, {hx(1/512)}")
wlg0()
e("v_pk_add_f32 v[32:33], v[32:33], v[34:35]"); e("v_pk_add_f32 v[36:37], v[36:37], v[38:39]"); e("v_pk_add_f32 v[32:33], v[32:33], v[36:37]")
e("v_pk_mul_f32 v[32:33], v[32:33], s[4:5] op_sel_hi:[1,0]")
e("v_fma_f32 v33, -v32, v32, v33"); e("v_max_f32 v33, 0, v33")
e(f"v_add_f32 v34, {hx(EPS)}, v33"); e("v_rsq_f32 v34, v34")
e("v_mul_f32 v33, v33, v34"); e(f"v_fmaak_f32 v33, v33, v34, {hx(EPS)}"); e("v_rsq_f32 v33, v33")
e(f"v_mul_f32 v34, {hx(SS)}, v34"); e("v_mul_f32 v34, v34, v33"); e("v_mul_f32 v35, -v32, v34")
for k in range(2):
    for d in range(4 * k, 4 * k + 4): e(f"v_pk_fma_f32 {V(64+2*d,2)}, {V(64+2*d,2)}, v[34:35], v[34:35] op_sel:[0,0,1] op_sel_hi:[1,0,1]")
    for d in range(4 * k, 4 * k + 4): e(f"v_cvt_pk_bf16_f32 v{48+d}, v{64+2*d}, v{65+2*d}")
    vm(f"buffer_store_dwordx4 {V(48+4*k,4)}, v{vZS}, {S(RWS,4)}, s{sZ0+k} offen sc1", "zst")
for k in range(2): vm(f"buffer_store_dwordx4 {V(40+4*k,4)}, v{vZS}, {S(RWS,4)}, s{sHR0+k} offen sc1", "hst")
stamp("z_out")

for f in tr_w2(1, range(7), 24, 0): f()
e(f"v_xor_b32 v{vDMA}, 0x10000, v{vDMA}")
for r in (2, 3):
    wlg0()
    for f in dma_w2(r, range(7), LB, ("w2r", r)): f()
    wvm(("w2r", r))
    for f in tr_w2(r, range(7), 24, 0): f()
wlg0()
for f in dma_w1(sW1b, LB, 0, 4, "w1b"): f()
e("v_and_b32 v18, 7, v1"); e(f"s_and_b32 s4, s{sI}, 7"); e("s_lshl_b32 s4, s4, 7"); e("v_lshl_add_u32 v19, v18, 4, s4")
vm(f"global_load_dwordx4 v[56:59], v19, {S(SB2,2)}", "b2")
stamp("w_in")
e(f"s_cmp_ge_u32 s{sI}, 14"); e("s_cbranch_scc1 L_g2")

e("v_and_b32 v18, 31, v1"); e(f"s_lshl_b32 s4, s{sI}, 8"); e(f"s_lshl_b32 s5, s{sB}, 7"); e("s_add_u32 s4, s4, s5")
e("v_lshl_add_u32 v18, v18, 1, s4"); e("v_xor_b32 v19, 128, v18")
for r in range(4): vm(f"global_load_ushort v{32+4*r}, v{18+(r>>1)}, {S(SB1,2)} offset:{64*(r&1)}", "b1")
e(f"s_lshl_b32 s4, s{sG}, 2"); e("s_add_u32 s4, s4, s6"); e("s_lshl_b32 s4, s4, 15")
for c in range(8): e(f"s_add_u32 s{sO8+c}, s4, {ZB + 4096*c}")
ZF = lambda s: 128 + 4 * s
def z_chunk(c):
    return [lambda i=i: vm(f"buffer_load_dwordx4 {V(ZF(4*c+i),4)}, v{vL16}, {S(RWS,4)}, s{sO8+c} offen offset:{1024*i} sc1", ("z", c)) for i in range(4)]
for c in range(2):
    for f in z_chunk(c): f()
sh = bf16_rne(SS); sl = bf16_rne(SS - bf16_val(sh))
for r in range(4):
    for i in range(1, 4): e(f"v_mov_b32 v{32+4*r+i}, 0")
e("v_cmp_gt_u32 vcc, 32, v1"); e(f"v_mov_b32 v48, {hex(sh | (sl << 16))}"); e("v_mov_b32 v49, 0"); e("v_mov_b32 v50, 0"); e("v_mov_b32 v51, 0")
e("v_cndmask_b32 v48, 0, v48, vcc")
wvm("b1")
for r in range(4): e(f"v_lshl_or_b32 v{32+4*r}, v{32+4*r}, 16, v{32+4*r}")
e("s_barrier")
G1 = lambda r: 64 + 16 * r
for r in range(4): e(f"v_mfma_f32_32x32x16_bf16 {V(G1(r),16)}, {V(32+4*r,4)}, v[48:51], 0")
WF = lambda n: 224 + 4 * (n % 8)
wseq = [(s, r) for s in range(32) for r in (0, 1)] + [(s, 2) for s in range(32)] + [(s, 3) for s in range(32)]
def rdW(n):
    if n >= len(wseq): return
    s, r = wseq[n]
    if n == 64: e(f"v_add_u32 v{vTR0}, {LB}, v{vTR0}"); e(f"v_add_u32 v{vTR1}, {LB}, v{vTR1}")
    for hf in range(2): ds(f"ds_read_b64_tr_b16 {A(WF(n)+2*hf,2)}, v{vTR0+(r&1)} offset:{2048*s+512*hf}", ("w", n))
DEPTH = 6
for n in range(DEPTH): rdW(n)
def g1_mfma(n):
    s, r = wseq[n]
    wlg(("w", n))
    e(f"v_mfma_f32_32x32x16_bf16 {V(G1(r),16)}, {A(WF(n),4)}, {V(ZF(s),4)}, {V(G1(r),16)}")
    rdW(n + DEPTH)
e(f"s_mov_b32 s{sCNT}, 0")
def check16(name, base):
    lab(f"L_{name}chk")
    e(f"v_max3_u32 v32, v{base}, v{base+1}, v{base+2}"); e(f"v_max3_u32 v33, v{base+3}, v{base+4}, v{base+5}")
    for i in range(6, 16, 4):
        e(f"v_max3_u32 v32, v32, v{base+i}, v{base+i+1}")
        if i + 2 < 16: e(f"v_max3_u32 v33, v33, v{base+i+2}, v{base+i+3}")
    e("v_max_u32 v32, v32, v33"); e("v_cmp_eq_u32 vcc, -1, v32"); e(f"s_cbranch_vccnz L_{name}retry")
    lab(f"L_{name}ok")
for c in range(8):
    wvm(("z", c))
    check16(f"z{c}", ZF(4 * c))
    def rl(c=c):
        for cc in range(c, min(c + 2, 8)):
            for f in z_chunk(cc): f()
    retry(f"z{c}", rl, 4 if c < 7 else 0)
    if c == 0: stamp("z_in")
    weave([lambda n=n: g1_mfma(n) for n in range(8 * c, 8 * c + 8)], z_chunk(c + 2) if c + 2 < 8 else [])
stamp("g1a")
e(f"s_mov_b32 s4, {hx(GC)}")
def gelu(r, pk):
    a = G1(r); out = []
    for hh in range(2):
        b = a + 8 * hh; t = 40
        if pk:
            for i in range(0, 8, 2): out.append(f"v_pk_fma_f32 {V(t+i,2)}, {V(b+i,2)}, {V(b+i,2)}, s[4:5] op_sel_hi:[1,1,0]")
            for i in range(0, 8, 2): out.append(f"v_pk_mul_f32 {V(t+i,2)}, {V(t+i,2)}, {V(b+i,2)}")
        else:
            for i in range(8): out.append(f"v_fma_f32 v{t+i}, v{b+i}, v{b+i}, s4")
            for i in range(8): out.append(f"v_mul_f32 v{t+i}, v{t+i}, v{b+i}")
        for i in range(8): out.append(f"v_exp_f32 v{t+i}, v{t+i}")
        if pk:
            for i in range(0, 8, 2): out.append(f"v_pk_add_f32 {V(t+i,2)}, {V(t+i,2)}, 1.0 op_sel_hi:[1,0]")
        else:
            for i in range(8): out.append(f"v_add_f32 v{t+i}, 1.0, v{t+i}")
        for i in range(8): out.append(f"v_rcp_f32 v{t+i}, v{t+i}")
        if pk:
            for i in range(0, 8, 2): out.append(f"v_pk_mul_f32 {V(t+i,2)}, {V(t+i,2)}, {V(b+i,2)}")
        else:
            for i in range(8): out.append(f"v_mul_f32 v{t+i}, v{t+i}, v{b+i}")
        for i in range(4): out.append(f"v_cvt_pk_bf16_f32 v{32+4*hh+i}, v{t+2*i}, v{t+2*i+1}")
        out.append(("st", f"buffer_store_dwordx4 {V(32+4*hh,4)}, v{vL16}, {S(RWS,4)}, s{sHa if r < 2 else sHb} offen offset:{2048*(r&1)+1024*hh} sc1"))
    return [(lambda x=x: vm(x[1], "hst2")) if isinstance(x, tuple) else (lambda x=x: e(x)) for x in out]
def weave_cost(main, fill):
    n = len(main); k = 0
    weave(main, fill, 1)
weave_cost([lambda n=n: g1_mfma(n) for n in range(64, 96)], gelu(0, False))
weave_cost([lambda n=n: g1_mfma(n) for n in range(96, 128)], gelu(1, False))
stamp("g1b")
for f in gelu(2, True): f()
for f in gelu(3, True): f()
stamp("gelu")

lab("L_g2")
e("s_nop 7")
e(f"s_lshl_b32 s4, s{sG}, 2"); e(f"s_lshl_b32 s5, s{sTH}, 1"); e("s_add_u32 s7, s4, s5")
e("s_mul_i32 s4, s7, 114688"); e(f"s_lshl_b32 s5, s{sB}, 12"); e("s_add_u32 s4, s4, s5"); e(f"s_add_u32 s4, s4, {HB}")
e(f"v_add_u32 v18, s4, v{vL16}"); e("v_add_u32 v19, 114688, v18"); e("v_xor_b32 v20, 4096, v18"); e("v_add_u32 v21, 114688, v20")
HF = lambda q, tt: 128 + 8 * (q % 16) + 4 * tt
def h_load(q):
    r, n = divmod(q, 7)
    return [lambda tt=tt: vm(f"buffer_load_dwordx4 {V(HF(q,tt),4)}, v{18+2*(r>>1)+tt}, {S(RWS,4)}, s{sKS+n} offen offset:{2048*(r&1)} sc1", ("h", q >> 1)) for tt in range(2)]
AHEAD = 6
for q in range(AHEAD):
    for f in h_load(q): f()
e("s_lshr_b32 s4, s6, 1"); e("s_add_u32 s4, s4, s7"); e("s_lshl_b32 s4, s4, 15")
e(f"s_and_b32 s5, s{sI}, 7"); e("s_lshl_b32 s5, s5, 12"); e("s_add_u32 s4, s4, s5")
e("s_and_b32 s5, s6, 1"); e("s_lshl_b32 s5, s5, 8"); e("s_add_u32 s4, s4, s5"); e(f"s_add_u32 s{sT1}, s4, {HRB}")
e("v_and_b32 v22, 15, v1"); e("v_lshrrev_b32 v23, 4, v1"); e("v_lshlrev_b32 v24, 4, v22"); e("v_lshl_add_u32 v24, v23, 9, v24")
def hr_loads():
    for k in range(2): vm(f"buffer_load_dwordx4 {V(40+4*k,4)}, v24, {S(RWS,4)}, s{sT1} offen offset:{2048*k} sc1", "hr")
hr_loads()
e("s_lshl_b32 s4, s6, 11"); e(f"s_add_u32 s4, s4, {LC+8192}")
e("v_and_b32 v25, 7, v22"); e("v_xor_b32 v25, v25, v23"); e("v_lshlrev_b32 v25, 4, v25"); e("v_lshl_add_u32 v25, v22, 7, v25"); e("v_add_u32 v25, s4, v25")
e("v_xor_b32 v26, 64, v25")
e("v_lshrrev_b32 v22, 3, v1"); e("v_and_b32 v23, 7, v1")
e("v_xor_b32 v27, v22, v23"); e("v_lshlrev_b32 v27, 4, v27"); e("v_lshl_add_u32 v27, v22, 7, v27"); e("v_add_u32 v27, s4, v27")
e("v_and_b32 v28, 31, v1"); e("v_lshrrev_b32 v29, 5, v1"); e("v_and_b32 v30, 7, v1"); e("v_xor_b32 v29, v29, v30")
e("v_lshlrev_b32 v29, 4, v29"); e("v_lshl_add_u32 v10, v28, 8, v29"); e(f"v_add_u32 v10, s{sM0}, v10")
for g in range(1, 4): e(f"v_xor_b32 v{10+g}, {32*g}, v10")
e("v_lshlrev_b32 v28, 1, v23"); e("v_xor_b32 v28, v28, v22"); e("v_lshlrev_b32 v28, 4, v28"); e("v_lshl_add_u32 v14, v22, 8, v28")
e("s_lshl_b32 s4, s6, 12"); e("v_add_u32 v14, s4, v14"); e("v_xor_b32 v15, 16, v14")
e("s_lshl_b32 s4, s7, 1"); e("s_add_u32 s4, s4, s6"); e("s_lshl_b32 s4, s4, 14"); e(f"s_and_b32 s5, s{sI}, 7"); e("s_lshl_b32 s5, s5, 7"); e("s_add_u32 s4, s4, s5")
e("v_lshlrev_b32 v28, 4, v23"); e("v_lshl_add_u32 v16, v22, 10, v28"); e("v_add_u32 v16, s4, v16"); e("v_add_u32 v17, 8192, v16")
e(f"s_mov_b32 s{sCNT}, 0")
G2 = lambda ct, tt: 64 + 32 * tt + 16 * ct
def g2_mfma(q, ct, tt):
    r, n = divmod(q, 7)
    e(f"v_mfma_f32_32x32x16_bf16 {V(G2(ct,tt),16)}, {A(W2R(r,n,ct),4)}, {V(HF(q,tt),4)}, {V(G2(ct,tt),16) if q else 0}")
NMAIN = 22
for c in range(14):
    wvm(("h", c))
    check16(f"hh{c}", HF(2 * c, 0))
    issued = min(28, 2 * c + AHEAD) if 2 * c <= NMAIN else 28
    def rl(c=c, issued=issued):
        for q in range(2 * c, issued):
            for f in h_load(q): f()
    retry(f"hh{c}", rl, 2 * (issued - 2 * c - 2))
    if c == 0: stamp("h_in")
    if 2 * c < NMAIN:
        fill = []
        for q in range(2 * c + AHEAD, min(28, 2 * c + AHEAD + 2)): fill += h_load(q)
        weave([lambda q=q, ct=ct, tt=tt: g2_mfma(q, ct, tt) for q in (2 * c, 2 * c + 1) for tt in range(2) for ct in range(2)], fill)
    if c == 3:
        wvm("hr")
        lab("L_hrchk")
        e("v_max3_u32 v32, v40, v41, v42"); e("v_max3_u32 v33, v43, v44, v45"); e("v_max3_u32 v32, v32, v46, v47"); e("v_max_u32 v32, v32, v33")
        e("v_cmp_eq_u32 vcc, -1, v32"); e("s_cbranch_vccnz L_hrretry")
        lab("L_hrok")
        retry("hr", hr_loads)
        ds("ds_write_b128 v25, v[40:43]"); ds("ds_write_b128 v26, v[44:47]")
    if c == 4:
        wlg0()
        ds("ds_read_b128 v[40:43], v27"); ds("ds_read_b128 v[44:47], v27 offset:1024")
    if c == 6: e("s_barrier")
tiles = [(ct, tt) for tt in range(2) for ct in range(2)]
def red_w(ct, tt): return [lambda g=g: ds(f"ds_write_b128 v{10+g}, {V(G2(ct,tt)+4*g,4)} offset:{8192*tt+128*ct}") for g in range(4)]
res = []
for d in range(4): res += [f"v_lshlrev_b32 v{20+2*d}, 16, v{56+d}", f"v_and_b32 v{21+2*d}, 0xffff0000, v{56+d}"]
for d in range(8): res += [f"v_lshlrev_b32 v{48+2*d}, 16, v{40+d}", f"v_and_b32 v{49+2*d}, 0xffff0000, v{40+d}"]
for d in range(16): res += [f"v_add_f32 v{48+d}, v{48+d}, v{20+(d&7)}"]
wlg0()
prev = None
for i, (ct, tt) in enumerate(tiles):
    m = [lambda q=q: g2_mfma(q, ct, tt) for q in range(NMAIN, 28)]
    part = [lambda x=x: e(x) for x in res[10 * i:10 * i + 10]]
    weave(m[:3], part)
    weave(m[3:], red_w(*prev) if prev else [])
    prev = (ct, tt)
for f in red_w(*prev): f()
wlg0(); e("s_barrier")
stamp("g2")
for k in range(2):
    for src in range(4):
        for hf in range(2): ds(f"ds_read_b128 {V(64+32*k+8*src+4*hf,4)}, v{14+hf} offset:{16384*src+2048*k}", ("r2", k, src))
e(f"s_mov_b32 s4, {hx(1/SS)}")
for k in range(2):
    b = 64 + 32 * k
    wlg(("r2", k, 1))
    for i in range(0, 8, 2): e(f"v_pk_add_f32 {V(b+i,2)}, {V(b+i,2)}, {V(b+8+i,2)}")
    wlg(("r2", k, 3))
    for i in range(0, 8, 2): e(f"v_pk_add_f32 {V(b+16+i,2)}, {V(b+16+i,2)}, {V(b+24+i,2)}")
    for i in range(0, 8, 2): e(f"v_pk_add_f32 {V(b+i,2)}, {V(b+i,2)}, {V(b+16+i,2)}")
    for i in range(0, 8, 2): e(f"v_pk_fma_f32 {V(b+i,2)}, {V(b+i,2)}, s[4:5], {V(48+8*k+i,2)} op_sel_hi:[1,0,1]")
    for i in range(4): e(f"v_cvt_pk_bf16_f32 v{32+4*k+i}, v{b+2*i}, v{b+2*i+1}")
    vm(f"global_store_dwordx4 v{16+k}, {V(32+4*k,4)}, {S(SOUT,2)}", "out")
if OPT["stamps"]:
    stamp("end")
    e("s_lshl_b32 s4, s2, 2"); e("s_add_u32 s4, s4, s6"); e("s_lshl_b32 s4, s4, 8"); e(f"s_add_u32 s4, s4, {STAMP}")
    e("v_lshlrev_b32 v30, 2, v1")
    e(f"buffer_store_dword v31, v30, {S(RWS,4)}, s4 offen")
e("s_endpgm")
for f in tail: f()
lab("L_end")
e("s_endpgm")

body, added = hz.fix(L, verbose=OPT.get("hz", False))
post = f""".section .rodata,"a"
.p2align 6
.amdhsa_kernel {lab_name}
  .amdhsa_next_free_vgpr 512
  .amdhsa_next_free_sgpr 102
  .amdhsa_accum_offset 256
  .amdhsa_group_segment_fixed_size 0
  .amdhsa_kernarg_size 120
  .amdhsa_user_sgpr_count 2
  .amdhsa_user_sgpr_kernarg_segment_ptr 1
  .amdhsa_system_sgpr_workgroup_id_x 1
.end_amdhsa_kernel
"""
open(sys.argv[1], "w").write(pre + "\n".join(body) + "\n" + post)
if OPT["stamps"]: open(sys.argv[1] + ".stamps", "w").write(" ".join(stamp_names))
print("instructions:", sum(1 for x in body if hz.Ins(x).is_ins), "nop states added:", added)
```

```python
import sys, math, struct
sys.path.insert(0, "exp")
import hz

KN = "sequential_preLN__ssm_conv_s4d__mixer_channel_mlp__prompt"
OPT = dict(stamps=False)
for a in sys.argv[2:]:
    k, _, v = a.partition("=")
    OPT[k] = int(v) if v else True

def f2u(x): return struct.unpack("<I", struct.pack("<f", x))[0]
def hx(x): return "0x%08x" % f2u(x)
def bf16_rne(x):
    u = f2u(x); return ((u + 0x7FFF + ((u >> 16) & 1)) >> 16) & 0xFFFF
def bf16_val(h): return struct.unpack("<f", struct.pack("<I", h << 16))[0]

OB1, OB2, ZB, HRB, HB, STAMP = 0x100000, 0x300000, 0x500000, 0x700000, 0x900000, 0x1100000
WS_SIZE = 0x1200000
LA, LB, LC = 0, 65536, 131072
TB = LB
TROW, TCH = 544, 34816
UB = LC + 4096; USZ = 4576
KB = UB + 2 * USZ; KCOPY = 4160; KSZ = 2 * KCOPY
STAT1 = KB + 2 * KSZ
RED = LC
LDS_SIZE = 163840
LOG2E = 1.4426950408889634
K1 = 2.0 * math.sqrt(2.0 / math.pi) * LOG2E
K2 = K1 * 0.044715
SS = -(K2 ** (1.0 / 3.0))
GC = K1 / abs(SS)
C0 = 1.5 * 2.0 ** -8
EPS = 1e-5
MASK = 0x70007000
SPIN = 20000

L = []
vmq = []; lgq = []
def e(s):
    for x in s.split("\n"): L.append("  " + x.strip())
def lab(s): L.append(s + ":")
def vm(s, tag=None): e(s); vmq.append(tag)
def ds(s, tag=None): e(s); lgq.append(tag)
def cnt(q, tag):
    idx = max(i for i, t in enumerate(q) if t == tag)
    return len(q) - 1 - idx
def wvm(tag): e("s_waitcnt vmcnt(%d)" % min(cnt(vmq, tag), 63))
def wlg(tag): e("s_waitcnt lgkmcnt(%d)" % min(cnt(lgq, tag), 15))
def wlg0(): e("s_waitcnt lgkmcnt(0)"); flush_st()
def V(a, n=1): return f"v{a}" if n == 1 else f"v[{a}:{a+n-1}]"
def A(a, n=1): return f"a{a}" if n == 1 else f"a[{a}:{a+n-1}]"
def S(a, n=1): return f"s{a}" if n == 1 else f"s[{a}:{a+n-1}]"
nstamp = [0]; stamp_names = []; pend_st = []; st_pool = []
def flush_st():
    while pend_st:
        r, i = pend_st.pop(0); e(f"v_writelane_b32 v31, s{r}, {i}"); st_pool.append(r)
def stamp(name):
    if not OPT["stamps"]: return
    if not st_pool:
        r, i = pend_st.pop(0); e(f"v_writelane_b32 v31, s{r}, {i}"); st_pool.append(r)
    r = st_pool.pop(0)
    e(f"s_memtime s[{r}:{r+1}]" if OPT.get("cyc") else f"s_memrealtime s[{r}:{r+1}]")
    pend_st.append((r, nstamp[0])); nstamp[0] += 1; stamp_names.append(name)
def count(name):
    if not OPT["stamps"]: return
    e(f"v_writelane_b32 v31, s{sCNT}, {nstamp[0]}"); nstamp[0] += 1; stamp_names.append("#" + name)
def weave(main, fill, start=0, end=None):
    n = (len(main) if end is None else end) - start; k = 0
    for i, m in enumerate(main):
        m()
        if i >= start and i - start < n:
            t = (i - start + 1) * len(fill) // n
            for f in fill[k:t]: f()
            k = t
tail = []
def cost(x):
    return 2 if x.split()[0] in hz.TRANS else 1
def spread(main, fill, start=0, end=None):
    n = (len(main) if end is None else end) - start; k = 0; tot = sum(c for c, _ in fill); acc = 0
    for i, m in enumerate(main):
        m()
        if i >= start and i - start < n:
            t = (i - start + 1) * tot / n
            while k < len(fill) and (acc + fill[k][0] / 2.0 <= t or i - start == n - 1):
                fill[k][1](); acc += fill[k][0]; k += 1
def merge(a, b):
    out = []
    for i, x in enumerate(a):
        out.append(x); out += b[i * len(b) // len(a):(i + 1) * len(b) // len(a)]
    return out

sP, sW = 3, 6
SX, SLA, SAI, SCR, SCI, SLDT, SDSK = 8, 10, 12, 14, 16, 18, 20
SW1, SB1, SW2, SB2, SOUT, SWS = 24, 26, 28, 30, 32, 34
RWS, RW1, RW2 = 36, 40, 44
sLDT, sDSK, sE = 52, 53, 54
sTAG = 56
sO8 = 60
sKS, sWR = 68, 75
sOB1, sOB2, sZ0, sZ1, sHa, sHb = 82, 83, 84, 85, 88, 89
sCNT, sI, sB, sG, sT0, sT1, sM0, sG1a, sG1b, sTH = 90, 91, 92, 93, 94, 95, 96, 97, 98, 99
sW1g = (86, 87, 100, 101)
sHT, sLAM, sCQ, sFIN = 48, 49, 50, 51
sPERMLO, sPERMHI = 22, 23
vL, vL16, vOBS, vDMA, vZS, vTR0, vTR1, vMASK, vONES = 1, 2, 3, 4, 5, 6, 7, 8, 9

lab_name = KN + "_kernel"
hdr = open("cdna_kernels/" + KN + ".s.ref").read().split("; Override launch")[0]
pre = hdr + f"; @launch grid=(256,1,1) block=(256,1,1) lds={LDS_SIZE}\n" + \
    f'.amdgcn_target "amdgcn-amd-amdhsa--gfx950"\n.text\n.globl {lab_name}\n.p2align 8\n.type {lab_name},@function\n{lab_name}:\n'


st_pool += [60, 62, 64, 66]
e("s_cmp_ge_u32 s2, 256"); e("s_cbranch_scc1 L_end")
e("s_load_dwordx16 s[8:23], s[0:1], 0")
e("s_load_dwordx2 s[34:35], s[0:1], 112")
e("s_load_dwordx8 s[24:31], s[0:1], 64")
e("s_load_dwordx2 s[32:33], s[0:1], 96")
stamp("start")
e("s_getpc_b64 s[36:37]"); lab("L_pc")
e("s_lshr_b32 s7, s2, 3"); e("s_lshl_b32 s4, s7, 10"); e("s_add_u32 s38, s4, 1024"); e("s_min_u32 s38, s38, L_end-L_pc"); e("s_mov_b32 s39, 0x20000")
e("v_lshlrev_b32 v10, 7, v0")
vm("buffer_load_dword v11, v10, s[36:39], s4 offen", "pf")
e("s_and_b32 s3, s2, 7"); e("v_lshrrev_b32 v12, 6, v0"); e("s_lshl_b32 s3, s3, 5"); e("v_and_b32 v1, 63, v0")
e("v_readfirstlane_b32 s6, v12"); e("s_add_u32 s3, s3, s7")
e("v_lshrrev_b32 v13, 5, v0"); e("s_lshl_b32 s7, s3, 13")
e("v_and_b32 v14, 31, v0"); e("s_lshl_b32 s4, s3, 9")
e("v_lshlrev_b32 v14, 4, v14"); e("s_lshl_b32 s5, s3, 2")
e("v_lshl_add_u32 v13, v13, 10, v14"); e(f"s_add_u32 s{sOB1}, s7, {OB1}")
e("v_add_u32 v13, s7, v13"); e(f"s_add_u32 s{sOB2}, s7, {OB2}")
e("v_lshrrev_b32 v14, 1, v0"); e("v_and_b32 v15, 1, v0")
e("v_lshlrev_b32 v16, 3, v14"); e("v_lshl_add_u32 v16, v15, 12, v16"); e("v_add_u32 v16, s7, v16")
e("v_lshl_add_u32 v17, v0, 1, s4")
for r in range(48, 52): e(f"v_mov_b32 v{r}, 0")
e("v_lshlrev_b32 v2, 4, v1"); e("v_lshl_add_u32 v3, v12, 11, v2")
if OPT["stamps"]: e("v_mov_b32 v31, 0")
wlg0()
stamp("karg")
vm(f"global_load_dwordx4 v[32:35], v13, {S(SX,2)}", "xs")
vm(f"global_load_dwordx4 v[36:39], v13, {S(SX,2)} offset:512", "xs")
e(f"s_load_dwordx2 s[{sE}:{sE+1}], {S(SWS,2)}, 0")
e(f"s_load_dword s{sLDT}, {S(SLDT,2)}, s5")
e(f"s_load_dword s{sDSK}, {S(SDSK,2)}, s5")
for i in range(4): vm(f"global_load_dwordx2 {V(40+2*i,2)}, v16, {S(SX,2)} offset:{1024*i}", "xg")
for i, p in enumerate((SLA, SAI, SCR, SCI)): vm(f"global_load_short_d16_hi v{48+i}, v17, {S(p,2)}", "par")
for r in range(4):
    e(f"v_mov_b32 v{60+r}, -1")
    e((f"s_mov_b32 s{RWS}, s{SWS}", f"s_mov_b32 s{RWS+1}, s{SWS+1}", f"s_mov_b32 s{RWS+2}, {WS_SIZE}", f"s_mov_b32 s{RWS+3}, 0x20000")[r])
for k in range(2): vm(f"buffer_store_dwordx4 v[60:63], v3, {S(RWS,4)}, s{sOB2} offen offset:{1024*k} sc1", "clr")
e(f"s_and_b32 s{sI}, s3, 15"); e(f"s_lshr_b32 s{sG}, s3, 4"); e(f"s_and_b32 s{sB}, s{sG}, 1"); e(f"s_lshr_b32 s{sTH}, s{sI}, 3")
e(f"s_cmp_lt_u32 s{sI}, 14")
e(f"s_cselect_b32 s{RW1+2}, {512*1792*2}, 0")
e(f"s_min_u32 s4, s{sI}, 13"); e("s_lshl_b32 s4, s4, 8"); e(f"s_lshl_b32 s5, s{sB}, 7"); e("s_add_u32 s4, s4, s5")
e("v_and_b32 v18, 31, v1"); e(f"s_mov_b32 s{RW1}, s{SW1}")
e("v_lshl_add_u32 v18, v18, 1, s4"); e(f"s_mov_b32 s{RW1+1}, s{SW1+1}")
e("v_xor_b32 v19, 128, v18"); e(f"s_mov_b32 s{RW1+3}, 0x20000")
for r in range(4): vm(f"global_load_ushort a{224+r}, v{18+(r>>1)}, {S(SB1,2)} offset:{64*(r&1)}", "b1")
e("v_and_b32 v19, 7, v1"); e(f"s_and_b32 s10, s{sI}, 7"); e("s_lshl_b32 s5, s10, 7"); e("v_lshl_add_u32 v18, v19, 4, s5")
vm(f"global_load_dwordx4 v[56:59], v18, {S(SB2,2)}", "b2")
ROT = OPT.get("rot", 1)
e("v_bfe_u32 v18, v1, 4, 1"); e("s_lshl_b32 s11, s6, 1")
e("v_lshlrev_b32 v18, 2, v18"); e("s_add_u32 s11, s11, s10" if ROT else "s_nop 0")
e("v_xor_b32 v18, v18, v19"); e("s_and_b32 s5, s11, 7")
e("v_lshlrev_b32 v18, 4, v18"); e(f"s_mul_i32 s{sW1g[0]}, s5, {64*3584}")
e("v_lshrrev_b32 v19, 3, v1"); e(f"s_add_u32 s{sW1g[1]}, s{sW1g[0]}, {32*3584}")
e("v_mul_u32_u24 v20, 3584, v19"); e("s_add_u32 s11, s11, 1")
e("v_add3_u32 v20, v20, v18, s4"); e("s_and_b32 s5, s11, 7")
e(f"v_add_u32 v21, {28672-1024}, v20"); e(f"s_mul_i32 s{sW1g[2]}, s5, {64*3584}")
e(f"v_add_u32 v22, {2*(28672-1024)}, v20"); e(f"s_add_u32 s{sW1g[3]}, s{sW1g[2]}, {32*3584}")
e(f"v_add_u32 v23, {3*(28672-1024)}, v20"); e(f"s_lshl_b32 s{sM0}, s6, 14")

def dma_w1(region, n0, n1, tag):
    out = []
    for n in range(n0, n1):
        def f(n=n):
            g, i = divmod(n, 4)
            if n == n0: e(f"s_add_u32 m0, s{sM0}, {region + 4096*g}")
            vm(f"buffer_load_dwordx4 v{20+i}, {S(RW1,4)}, s{sW1g[g]} offen offset:{1024*i} lds", tag)
            if i == 3 and n + 1 < n1: e("s_add_u32 m0, m0, 4096")
        out.append(f)
    return out
NW0 = OPT.get("nw0", 2); NW1 = OPT.get("nw1", 5); NW2 = OPT.get("nw2", 10)
assert NW2 <= 12
for f in dma_w1(LA, 0, NW0, "w1a"): f()
stamp("issued")

VS, SSx = [], []
def v(x): VS.append(x)
def sx(x): SSx.append(x)
sx(f"s_mov_b32 s{RW2}, s{SW2}"); sx(f"s_mov_b32 s{RW2+1}, s{SW2+1}"); sx(f"s_mov_b32 s{RW2+2}, {1792*512*2}"); sx(f"s_mov_b32 s{RW2+3}, 0x20000")
sx("s_and_b32 s10, s3, 0xc0"); sx("s_and_b32 s11, s3, 1"); sx("s_lshl_b32 s11, s11, 5"); sx("s_add_u32 s10, s10, s11")
sx("s_bfe_u32 s11, s3, 0x50001"); sx("s_add_u32 s10, s10, s11"); sx("s_lshl_b32 s10, s10, 5")
sx(f"s_add_u32 s{sG1a}, s10, {OB1}"); sx(f"s_add_u32 s{sG1b}, s10, {OB1 + 128*8192}")
sx(f"s_mov_b32 s{sPERMLO}, 0x05040100"); sx(f"s_mov_b32 s{sPERMHI}, 0x07060302")
sx("s_lshr_b32 s10, s3, 2"); sx("s_lshl_b32 s10, s10, 15"); sx("s_and_b32 s11, s3, 3"); sx("s_lshl_b32 s11, s11, 7"); sx("s_add_u32 s10, s10, s11")
sx(f"s_add_u32 s{sZ0}, s10, {ZB}"); sx(f"s_add_u32 s{sZ1}, s10, {ZB+4096}")
sx(f"s_lshl_b32 s10, s{sG}, 2"); sx("s_add_u32 s10, s10, s6"); sx("s_mul_i32 s10, s10, 114688")
sx(f"s_lshl_b32 s11, s{sI}, 13"); sx("s_add_u32 s10, s10, s11"); sx(f"s_add_u32 s10, s10, {HB}")
sx(f"s_lshl_b32 s11, s{sB}, 12"); sx(f"s_add_u32 s{sHa}, s10, s11"); sx("s_xor_b32 s11, s11, 4096"); sx(f"s_add_u32 s{sHb}, s10, s11")
sx("s_mul_i32 s12, s6, 7"); sx("s_add_u32 s13, s12, 7"); sx(f"s_and_b32 s10, s{sI}, {7 if ROT else 0}"); sx("s_add_u32 s10, s10, s12")
for n in range(7):
    sx("s_cmp_ge_u32 s10, s13\n  s_cselect_b32 s10, s12, s10")
    sx("s_and_b32 s11, s10, 30"); sx("s_mul_i32 s11, s11, 3"); sx("s_add_u32 s11, s11, s10")
    sx(f"s_lshl_b32 s{sKS+n}, s11, 10"); sx(f"s_lshl_b32 s{sWR+n}, s11, 14")
    if n < 6: sx("s_add_u32 s10, s10, 1")
sx(f"s_mov_b32 s{sCNT}, 0")
v(f"v_lshl_add_u32 v{vDMA}, v19, 10, v18")
v(f"s_and_b32 s4, s{sI}, 7"); v("s_lshl_b32 s4, s4, 7"); v(f"s_lshl_b32 s5, s{sB}, 16"); v("s_add_u32 s4, s4, s5")
v(f"v_add_u32 v{vDMA}, s4, v{vDMA}"); v(f"v_add_u32 v113, 7168, v{vDMA}")
for r in range(4): v(f"v_mov_b32 v{64+r}, 0")
v("v_cmp_gt_u32 vcc, 30, v1"); v("s_lshr_b32 s7, s6, 1"); v("s_and_b32 s5, s6, 1")
v(f"s_mul_i32 s4, s7, {USZ}"); v(f"s_add_u32 s4, s4, {UB}")
v("v_add_u32 v24, s4, v2"); v(f"v_mov_b32 v25, {STAT1+128}"); v("v_cndmask_b32 v24, v25, v24, vcc")
v("ds_write_b128 v24, v[64:67]")
v("v_cmp_gt_u32 vcc, 4, v1")
v(f"s_mul_i32 s{sT0}, s6, {KCOPY}"); v(f"s_add_u32 s{sT0}, s{sT0}, {KB+4096}")
v(f"v_add_u32 v24, s{sT0}, v2"); v("v_cndmask_b32 v24, v25, v24, vcc")
v("ds_write_b128 v24, v[64:67]")
v("v_lshrrev_b32 v29, 5, v0"); v("v_lshlrev_b32 v29, 3, v29"); v(f"v_add_u32 v29, {STAT1}, v29")
v("v_and_b32 v30, 16, v0"); v("v_cmp_ne_u32 vcc, 0, v30"); v("v_lshlrev_b32 v28, 4, v15"); v("v_lshl_add_u32 v14, v14, 13, v28")
v("v_cndmask_b32 v17, v25, v29, vcc")
v("v_lshlrev_b32 v15, 5, v15"); v(f"v_add_u32 v15, {STAT1}, v15")
v("v_lshlrev_b32 v16, 3, v0"); v(f"v_add_u32 v16, {UB+480}, v16")
v(f"v_mov_b32 v{vMASK}, {hex(MASK)}"); v(f"v_mov_b32 v{vONES}, 0x3f803f80"); v("v_mov_b32 v52, 0"); v("v_mov_b32 v53, 0")
vB, vA = 10, 24
v("v_and_b32 v18, 15, v1"); v("v_lshrrev_b32 v19, 4, v1")
v(f"s_lshl_b32 s{sT0}, s5, 8"); v(f"s_sub_u32 s4, s4, s{sT0}"); v("s_add_u32 s4, s4, 256")
v("v_lshlrev_b32 v28, 4, v19")
v("v_lshl_add_u32 v10, v18, 5, v28"); v("v_add_u32 v10, s4, v10")
v(f"s_mul_i32 s4, s7, {KSZ}"); v(f"s_add_u32 s{sT1}, s4, {KB}")
v(f"s_sub_u32 s4, s{sT1}, s{sT0}"); v(f"s_add_u32 s4, s4, {2*(2031-256*7-96)}")
v("v_lshlrev_b32 v29, 1, v18"); v("v_sub_u32 v27, v28, v29"); v("v_add_u32 v27, s4, v27")
v("v_and_b32 v29, 1, v18"); v("v_xor_b32 v29, 1, v29"); v(f"v_mul_u32_u24 v29, {KCOPY+2}, v29"); v("v_add_u32 v27, v27, v29")
for b2 in range(3): v(f"v_add_u32 v{24+b2}, {1024*(3-b2)}, v27")
v("v_lshl_add_u32 v29, v19, 2, v18"); v("v_and_b32 v29, 15, v29"); v("v_lshlrev_b32 v29, 4, v29"); v("v_lshl_add_u32 v109, v19, 8, v29")
v("s_lshl_b32 s4, s6, 13"); v(f"s_add_u32 s4, s4, {RED}"); v("v_add_u32 v109, s4, v109")
v("v_and_b32 v30, 3, v1"); v("v_lshrrev_b32 v29, 2, v1")
v("v_lshl_add_u32 v29, v30, 2, v29"); v("v_and_b32 v29, 15, v29"); v("v_lshlrev_b32 v29, 4, v29"); v("v_lshl_add_u32 v110, v30, 8, v29")
v("s_lshl_b32 s4, s6, 11"); v(f"s_add_u32 s4, s4, {RED}"); v("v_add_u32 v110, s4, v110")
v("v_and_b32 v29, 7, v1"); v("v_lshlrev_b32 v30, 3, v29"); v(f"v_add_u32 v112, {RED}, v30"); v("v_add_u32 v111, s4, v30")
v("v_and_b32 v30, 1, v19"); v("v_lshl_add_u32 v111, v30, 2, v111")
v("v_lshrrev_b32 v30, 3, v1"); v("s_lshl_b32 s4, s6, 4"); v("v_add_u32 v30, s4, v30")
v("v_lshlrev_b32 v54, 4, v29"); v(f"v_lshl_add_u32 v{vZS}, v30, 9, v54")
v("v_lshlrev_b32 v54, 2, v29"); v("v_lshl_add_u32 v107, v30, 15, v54")
v("v_xor_b32 v54, v30, v29"); v("v_lshlrev_b32 v54, 4, v54"); v("v_lshrrev_b32 v55, 1, v29"); v("v_lshl_add_u32 v54, v55, 14, v54")
v("v_and_b32 v55, 1, v29"); v("v_lshl_add_u32 v108, v55, 10, v54")
v("v_lshrrev_b32 v54, 5, v0"); v("v_and_b32 v55, 31, v0"); v("v_xor_b32 v55, v55, v54"); v("v_lshlrev_b32 v55, 4, v55")
v("v_and_b32 v54, 1, v54"); v("v_lshl_add_u32 v55, v54, 10, v55"); v(f"v_add_u32 v114, s{sM0}, v55")
v(f"s_mul_i32 s4, s7, {TCH}"); v(f"s_add_u32 s4, s4, {TB}")
v("v_and_b32 v29, 127, v0"); v("v_lshl_add_u32 v96, v29, 2, s4")
for r in range(1, 8): v(f"v_add_u32 v{96+r}, {r*TROW}, v96")
v("v_add_u32 v28, s4, v28")
v(f"v_mov_b32 v30, {TROW}")
v("v_mad_u32_u24 v104, v18, v30, v28")
v("v_lshlrev_b32 v29, 5, v18"); v(f"v_sub_u32 v29, s{sT1}, v29")
v("v_cmp_lt_u32 vcc, 7, v18"); v("v_and_b32 v55, 7, v18"); v("v_or_b32 v55, 0x0c0c0c00, v55")
k = 0
for x in VS:
    (ds if x.startswith("ds_") else e)(x)
    if x.startswith("v_") and k < len(SSx): e(SSx[k]); k += 1
for x in SSx[k:]: e(x)
def rows(dst, tab):
    w = [tab[4*i] | tab[4*i+1] << 8 | tab[4*i+2] << 16 | tab[4*i+3] << 24 for i in range(4)]
    e(f"s_mov_b32 s10, {hex(w[1])}"); e(f"v_mov_b32 v54, {hex(w[0])}"); e(f"s_mov_b32 s11, {hex(w[3])}"); e(f"v_mov_b32 v{dst}, {hex(w[2])}")
    e("v_perm_b32 v54, s10, v54, v55"); e(f"v_perm_b32 v{dst}, s11, v{dst}, v55"); e(f"v_cndmask_b32 v54, v54, v{dst}, vcc")
    e(f"v_mad_u32_u24 v{dst}, v54, v30, v28")
r1row = lambda ii: 51 + ii + (3 if ii >= 5 else 0)
e("s_cmp_eq_u32 s5, 0"); e("s_cbranch_scc0 L_rows1")
e(f"v_add_u32 v105, {16*TROW}, v104")
rows(106, [r1row(2*q+i) if i < 3 else (20 + 4*q if q < 3 else 63) for q in range(4) for i in range(4)])
e("v_lshlrev_b32 v54, 3, v19"); e("v_sub_u32 v12, v29, v54"); e(f"v_add_u32 v12, {2*(2044-256)}, v12")
lab("L_rows2")
def rows1():
    lab("L_rows1")
    rows(105, [32 + 8*(q>>1) + 2*(q&1) + min(i, 2) for q in range(4) for i in range(4)])
    rows(106, [(37, 45, 48, 56)[q] + min(i, 2) for q in range(4) for i in range(4)])
    e("v_lshrrev_b32 v54, 1, v19"); e("v_lshlrev_b32 v54, 9, v54"); e("v_and_b32 v55, 1, v19"); e("v_lshl_add_u32 v54, v55, 4, v54")
    e("v_sub_u32 v12, v29, v54"); e(f"v_add_u32 v12, {2*(2040-512)}, v12")
    e("v_lshlrev_b32 v54, 9, v19"); e("v_sub_u32 v13, v29, v54"); e(f"v_add_u32 v13, {2*(2032-1024)}, v13")
    e("s_branch L_rows2")
tail.append(rows1)

for f in dma_w1(LA, NW0, NW1, "w1a"): f()
stamp("setup")
wlg0()
st_pool[:] = [14, 16, 18, 20]
e("s_lshl_b32 s4, s3, 5")
for k in range(2):
    for i in range(4): e(f"s_add_u32 s{sO8+4*k+i}, s4, {OB2 + (32*k+i)*8192}")
e(f"s_bfe_u32 s4, s{sE+1}, 0x2001d"); e("s_cmp_eq_u32 s4, 1")
e(f"s_mov_b32 s4, 0x20002000"); e(f"s_cselect_b32 s{sHT}, 0x40004000, s4")
e(f"s_mov_b32 s4, {hx(2.0**32)}"); e(f"s_cselect_b32 s{sLAM}, {hx(2.0**-32)}, s4")
e(f"s_mov_b32 s4, {hx(C0*2.0**-32)}"); e(f"s_cselect_b32 s{sCQ}, {hx(C0*2.0**32)}, s4")
e(f"s_mov_b32 s4, {hx(2.0**32/SS)}"); e(f"s_cselect_b32 s{sFIN}, {hx(2.0**-32/SS)}, s4")
e(f"s_add_u32 s{sE}, s{sE}, 1"); e(f"s_mov_b32 s{sE+1}, s{sE}")
for j, r in enumerate((4, 7, 10, 13)):
    e(f"s_lshr_b64 s[4:5], s[{sE}:{sE+1}], {r}"); e(f"s_and_b32 s{sTAG+j}, s4, {hex(MASK)}")
e(f"s_cmp_eq_u32 s{sTAG}, s{sTAG+1}"); e("s_cselect_b32 s4, 0x1000, 0"); e(f"s_xor_b32 s{sTAG+1}, s{sTAG+1}, s4")
e("s_cmp_eq_u32 s7, 0"); e("s_cselect_b32 s4, 16, 0")
e(f"s_lshl_b32 s{sLDT}, s{sLDT}, s4"); e(f"s_and_b32 s{sLDT}, s{sLDT}, 0xffff0000")
e(f"s_lshl_b32 s{sDSK}, s{sDSK}, s4"); e(f"s_and_b32 s{sDSK}, s{sDSK}, 0xffff0000")
wvm("xs")
stamp("x_in")
for i in range(8):
    e(f"v_dot2c_f32_bf16 v52, v{32+i}, v{vONES}"); e(f"v_dot2c_f32_bf16 v53, v{32+i}, v{32+i}")
unp = []
for d in range(8): unp += [f"v_lshlrev_b32 v{64+2*d}, 16, v{40+d}", f"v_and_b32 v{65+2*d}, 0xffff0000, v{40+d}"]
wvm("xg")
for t in unp[:2]: e(t)
k = 2
for d in ("quad_perm:[1,0,3,2]", "quad_perm:[2,3,0,1]", "row_half_mirror", "row_mirror", "row_bcast:15 row_mask:0xa"):
    e(f"v_add_f32 v52, v52, v52 {d}"); e(f"v_add_f32 v53, v53, v53 {d}")
    if k < 6: e(unp[k]); k += 1
e(f"v_mul_f32 v52, {hx(1/512)}, v52")
e(f"v_mul_f32 v53, {hx(1/512)}, v53")
e("v_fma_f32 v53, -v52, v52, v53")
e("v_max_f32 v53, 0, v53")
e(f"v_add_f32 v53, {hx(EPS)}, v53")
e("v_rsq_f32 v53, v53")
e(unp[6])
e(f"v_mul_f32 v54, {hx(1/16)}, v53")
e(f"v_mul_f32 v52, v52, v54"); e(f"v_sub_f32 v55, {hx(C0)}, v52")
ds("ds_write_b64 v17, v[54:55]")
for t in unp[7:]: e(t)
e("s_waitcnt vmcnt(%d) lgkmcnt(0)" % cnt(vmq, "clr")); flush_st()
e("s_barrier")
ds("ds_read_b128 v[84:87], v15", "st"); ds("ds_read_b128 v[88:91], v15 offset:16", "st")
e(f"s_mov_b32 s4, {hx(-C0)}")
e(f"v_mov_b32 v80, {hx(LOG2E)}")
e(f"v_mul_f32 v81, s{sLDT}, v80"); e("v_mul_f32 v82, v48, v80")
e("v_exp_f32 v81, v81"); e("v_exp_f32 v82, v82")
e("v_and_b32 v30, 127, v0")
e("v_cvt_pk_bf16_f32 v81, v81, v82")
e("v_cmp_eq_u32 vcc, 0, v30")
wlg0()
for d in range(8):
    i = d >> 1
    e(f"v_pk_fma_f32 {V(64+2*d,2)}, {V(64+2*d,2)}, {V(84+2*i,2)}, {V(84+2*i,2)} op_sel:[0,0,1] op_sel_hi:[1,0,1]")
for par in range(2):
    for i in range(4): e(f"v_pk_add_f32 {V(64+2*(2*i+par),2)}, {V(64+2*(2*i+par),2)}, s[4:5] op_sel_hi:[1,0]")
    for i in range(4): e(f"v_cvt_pk_bf16_f32 v{40+4*par+i}, v{64+2*(2*i+par)}, v{65+2*(2*i+par)}")
    for i in range(4): e(f"v_bfi_b32 v{40+4*par+i}, v{vMASK}, s{sTAG+i}, v{40+4*par+i}")
    vm(f"buffer_store_dwordx4 {V(40+4*par,4)}, v3, {S(RWS,4)}, s{sOB1} offen offset:{1024*par} sc1", "ob1")
stamp("u_out")

for sr in (sZ0, sZ1): vm(f"buffer_store_dwordx4 v[60:63], v{vZS}, {S(RWS,4)}, s{sr} offen sc1", "clr2")
ds("ds_write_b128 v114, v[32:35] offset:12288"); ds("ds_write_b128 v114, v[36:39] offset:12800")
kbg = dma_w1(LA, NW1, NW2, "w1a")
e("v_and_b32 v82, 0xffff0000, v81"); e("v_lshlrev_b32 v81, 16, v81")
e("v_mul_f32 v82, v82, v81"); e("v_mul_f32 v83, v49, v81")
e(f"v_mul_f32 v82, {hx(-LOG2E)}, v82"); e("v_mul_f32 v83, 0.15915494, v83")
e(f"v_mul_f32 v84, {hx(32.0)}, v81")
e(f"v_mov_b32 v30, {hx(16.0)}"); e(f"v_mul_f32 v30, s{sDSK}, v30"); e("v_cndmask_b32 v30, 0, v30, vcc")
ZP = lambda p: 128 + 2 * p
ZT = lambda t: 160 + 2 * t
CE, CO, T0, T1 = 176, 178, 188, 190
e(f"v_pk_mul_f32 {V(CE,2)}, v[50:51], v[84:85] op_sel_hi:[1,0]")
anch = ((1, ZP(1)), (16, ZP(16)), (256, ZT(1)))
for k, (p, d) in enumerate(anch):
    if p == 1:
        e(f"v_exp_f32 v{86+k}, v82"); e(f"v_fract_f32 v{90+k}, v83")
    else:
        e(f"v_mul_f32 v{86+k}, {hx(p)}, v82"); e(f"v_mul_f32 v{90+k}, {hx(p)}, v83")
        e(f"v_exp_f32 v{86+k}, v{86+k}"); e(f"v_fract_f32 v{90+k}, v{90+k}")
for k, (p, d) in enumerate(anch):
    e(f"v_cos_f32 v{d}, v{90+k}"); e(f"v_sin_f32 v{d+1}, v{90+k}")
e(f"v_mov_b32 v{ZP(0)}, 1.0"); e(f"v_mov_b32 v{ZP(0)+1}, 0")
for k, (p, d) in enumerate(anch):
    s0 = 86 + k
    e(f"v_pk_mul_f32 {V(d,2)}, {V(d,2)}, {V(s0 & ~1,2)} op_sel:[0,{s0&1}] op_sel_hi:[1,{s0&1}]")
def cmuls(lst):
    for d, a, b in lst: e(f"v_pk_mul_f32 {V(d,2)}, {V(a,2)}, {V(b,2)} op_sel_hi:[1,0]")
    for d, a, b in lst: e(f"v_pk_fma_f32 {V(d,2)}, {V(a,2)}, {V(b,2)}, {V(d,2)} op_sel:[1,1,0] op_sel_hi:[0,1,1] neg_lo:[1,0,0]")
rot = [0]
def h1_loads():
    vm(f"buffer_load_dwordx4 v[32:35], v14, {S(RWS,4)}, s{sG1a} offen sc1", "h1")
    vm(f"buffer_load_dwordx4 v[36:39], v14, {S(RWS,4)}, s{sG1b} offen sc1", "h1")
H1AT = OPT.get("h1at", 32)
def put(r, jj, a, b, neg=False):
    t = 92 + 2 * (rot[0] % 2); rot[0] += 1
    n = "-" if neg else ""
    e(f"v_cvt_pk_bf16_f32 v{t}, v{a}, {n}v{a+1}"); e(f"v_cvt_pk_bf16_f32 v{t+1}, v{b}, {n}v{b+1}")
    ds(f"ds_write2st64_b32 v{96+r}, v{t}, v{t+1} offset0:{17*jj} offset1:{17*(jj+1)}")
    KB_N = OPT.get("kbgn", 16)
    if rot[0] <= KB_N:
        for f in kbg[(rot[0]-1) * len(kbg) // KB_N: rot[0] * len(kbg) // KB_N]: f()
    if rot[0] == H1AT: h1_loads()
cmuls([(ZP(2), ZP(1), ZP(1)), (T0, ZP(16), ZP(16)), (ZT(2), ZT(1), ZT(1))])
cmuls([(ZP(3), ZP(2), ZP(1)), (ZP(4), ZP(2), ZP(2)), (ZT(3), ZT(2), ZT(1)), (ZT(4), ZT(2), ZT(2)), (T1, T0, T0)])
put(0, 4, ZT(2), ZT(3))
cmuls([(T0, T1, T1), (ZP(8), ZP(4), ZP(4))])
put(0, 2, ZP(0), ZP(8))
cmuls([(CO, CE, T0), (ZT(5), ZT(4), ZT(1))])
put(0, 0, CE, CO, True)
cur = (CE, CO)
def left(r):
    global cur
    nx = (184, 186) if cur[0] == CE else (CE, CO)
    cmuls([(nx[0], cur[0], ZP(16)), (nx[1], cur[1], ZP(16))]); put(r, 0, nx[0], nx[1], True); cur = nx
left(1)
cmuls([(ZT(6), ZT(4), ZT(2)), (ZT(7), ZT(4), ZT(3))])
put(5, 4, ZT(4), ZT(5))
cmuls([(ZP(5), ZP(4), ZP(1)), (ZP(6), ZP(4), ZP(2))])
put(0, 6, ZT(6), ZT(7))
for r in range(2, 8): left(r)
cmuls([(ZP(7), ZP(4), ZP(3))])
for r in range(1, 8): cmuls([(ZP(8+r), ZP(8), ZP(r))]); put(r, 2, ZP(r), ZP(8+r))
cmuls([(T1, ZT(1), ZP(10))]); put(3, 6, ZT(1), T1)
for i in range(1, 4): cmuls([(T0, ZT(1), ZP(2*i)), (T1, ZT(1), ZP(10+2*i))]); put(3+i, 6, T0, T1)
cmuls([(T0, ZT(1), ZP(8))]); put(7, 6, T0, ZP(16))
for i in range(1, 5): cmuls([(T0, ZT(2), ZP(4*i)), (T1, ZT(3), ZP(4*i))]); put(i, 4, T0, T1)
for i in range(1, 3): cmuls([(T0, ZT(4), ZP(8*i)), (T1, ZT(5), ZP(8*i))]); put(5+i, 4, T0, T1)
for i in range(1, 3): cmuls([(T0, ZT(6), ZP(8*i)), (T1, ZT(7), ZP(8*i))]); put(i, 6, T0, T1)
assert rot[0] == 32
wlg0(); e("s_barrier")
stamp("tables")
def rdK(ks):
    if ks < 8:
        ds(f"ds_read_b128 {V(128+12*ks,4)}, v104 offset:{64*ks}")
        for t in range(2): ds(f"ds_read_b128 {V(132+12*ks+4*t,4)}, v{105+t} offset:{64*ks}", ("ka", ks))
ds("ds_read_b128 v[120:123], v108 offset:12288"); ds("ds_read_b128 v[124:127], v108 offset:12416")
for ks in range(4): rdK(ks)
e("s_bitcmp1_b32 s6, 0")
for ks in range(8):
    wlg(("ka", ks))
    for t in range(2): e(f"v_mfma_f32_16x16x32_bf16 {V(64+4*t,4)}, {V(132+12*ks+4*t,4)}, {V(128+12*ks,4)}, {V(64+4*t,4) if ks else 0}")
    rdK(ks + 4)
e("s_cbranch_scc1 L_kw1")
cv = lambda d, lo, hi: e(f"v_cvt_pk_bf16_f32 v{d}, v{lo}, v{hi}")
e("v_add_f32 v64, v64, v30")
cv(40, 67, 66); cv(41, 65, 64); ds("ds_write_b64 v12, v[40:41] offset:512")
cv(42, 71, 67); cv(43, 66, 65); ds(f"ds_write_b64 v12, v[42:43] offset:{512+KCOPY}")
cv(44, 70, 69); cv(45, 68, 68); ds("ds_write_b64 v12, v[44:45]")
cv(46, 70, 70); cv(47, 69, 68); ds(f"ds_write_b64 v12, v[46:47] offset:{KCOPY}")
e("s_mov_b64 exec, 1"); ds(f"ds_write_b16_d16_hi v12, v41 offset:{512+KCOPY+8}"); e("s_mov_b64 exec, -1")
lab("L_kw2")
def kw1():
    lab("L_kw1")
    e("s_nop 5")
    cv(40, 66, 66); cv(41, 65, 65); cv(42, 65, 64); cv(43, 64, 64); e("ds_write_b128 v12, v[40:43]")
    cv(44, 66, 66); cv(45, 66, 65); cv(46, 65, 65); cv(47, 64, 64); e(f"ds_write_b128 v12, v[44:47] offset:{KCOPY}")
    cv(72, 70, 70); cv(73, 70, 70); cv(74, 69, 69); cv(75, 69, 69); e("ds_write_b128 v13, v[72:75]")
    cv(76, 69, 69); cv(77, 69, 68); cv(78, 68, 68); cv(79, 68, 68); e("ds_write_b128 v13, v[76:79] offset:16")
    cv(74, 70, 69); e(f"ds_write_b128 v13, v[72:75] offset:{KCOPY}")
    cv(77, 69, 69); e(f"ds_write_b128 v13, v[76:79] offset:{KCOPY+16}")
    e("s_branch L_kw2")
tail.append(kw1)
stamp("K_out")

wvm("h1")
lab("L_h1chk")
for d in range(8): e(f"v_xor_b32 v{32+d}, s{sTAG+(d&3)}, v{32+d}")
e("v_or3_b32 v40, v32, v33, v34"); e("v_or3_b32 v41, v35, v36, v37"); e("v_or3_b32 v40, v40, v38, v39")
e(f"v_bitop3_b32 v40, v40, v41, v{vMASK} bitop3:0xa8")
e("v_cmp_ne_u32 vcc, 0, v40")
e("s_mov_b32 s4, 0x30003000")
e("s_cbranch_vccnz L_h1retry")
lab("L_h1ok")
def retry(name, loads, nlater=0, chk=None):
    def f():
        lab(f"L_{name}retry")
        e(f"s_add_u32 s{sCNT}, s{sCNT}, 1"); e(f"s_cmp_gt_u32 s{sCNT}, {SPIN}"); e(f"s_cbranch_scc1 L_{name}ok")
        loads()
        e(f"s_waitcnt vmcnt({nlater})")
        if chk is None: e(f"s_branch L_{name}chk")
        else:
            for x in chk: e(x)
            e(f"s_branch L_{name}ok")
    tail.append(f)
retry("h1", h1_loads)
for g in range(2):
    b = 32 + 4 * g; o = 40 + 4 * g
    e(f"v_perm_b32 v{o}, v{b+1}, v{b}, s{sPERMLO}"); e(f"v_perm_b32 v{o+1}, v{b+3}, v{b+2}, s{sPERMLO}")
    e(f"v_perm_b32 v{o+2}, v{b+1}, v{b}, s{sPERMHI}"); e(f"v_perm_b32 v{o+3}, v{b+3}, v{b+2}, s{sPERMHI}")
    for i in range(4): e(f"v_or_b32 v{o+i}, s4, v{o+i}")
    ds(f"ds_write_b64 v16, {V(o,2)} offset:{2048*g}"); ds(f"ds_write_b64 v16, {V(o+2,2)} offset:{2048*g+USZ}")
count("h1")
wlg0(); e("s_barrier")
stamp("u_in")
FA = lambda st, d1: 128 + 64 * (st & 1) + 4 * d1
FB = lambda st, sg: 160 + 64 * (st & 1) + 4 * sg
def rdCA(st, d1, hf):
    o = 128 * (1 - (d1 & 1)) + 16 * (3 - st) + 2 * hf
    ds(f"ds_read2_b32 {V(FA(st,d1)+2*hf,2)}, v{vA+(d1>>1)} offset0:{o} offset1:{o+1}", ("c", st, d1))
def rdCB(st, sg): ds(f"ds_read_b128 {V(FB(st,sg),4)}, v{vB} offset:{512*sg+64*(3-st)}", ("c", st, sg))
def rdC(st): return [f for t in range(8) for f in (lambda t=t: rdCA(st, t, 0), lambda t=t: rdCA(st, t, 1), lambda t=t: rdCB(st, t))]
first = rdC(0)
for f in first[:12]: f()

vDMA1 = [113]
def dma_w2(ns, lbase, tag, sbase=None):
    out = []
    for x, n in enumerate(ns):
        def f0(x=x, n=n):
            if x == 0: e(f"s_add_u32 m0, s{sbase or sM0}, {lbase}")
            vm(f"buffer_load_dwordx4 v{vDMA}, {S(RW2,4)}, s{sWR+n} offen lds", tag)
        def f1(x=x, n=n):
            vm(f"buffer_load_dwordx4 v{vDMA1[0]}, {S(RW2,4)}, s{sWR+n} offen offset:1024 lds", tag)
            if x + 1 < len(ns): e("s_add_u32 m0, m0, 2048")
        out += [f0, f1]
    return out
W2R = lambda r, n, ct: 56 * r + 8 * n + 4 * ct
def tr_w2(r, ns, vb0, off=0):
    out = []
    for x, n in enumerate(ns):
        for ct in range(2):
            for hf in range(2):
                out.append(lambda x=x, n=n, ct=ct, hf=hf: ds(f"ds_read_b64_tr_b16 {A(W2R(r,n,ct)+2*hf,2)}, v{vb0+ct} offset:{off+2048*x+1024*hf}", ("w2", r)))
    return out
e("s_cmp_lg_u32 s2, 0"); e("s_cbranch_scc1 L_noepoch")
e(f"v_mov_b32 v18, s{sE}"); e(f"v_mov_b32 v19, s{sHT}"); e("v_mov_b32 v28, 0")
e(f"buffer_store_dwordx2 v[18:19], v28, {S(RWS,4)}, 0 offen sc1")
lab("L_noepoch")
bg = dma_w1(LA, NW2, 16, "w1a") + dma_w2(range(7), LB, "w2r0")

ACC = lambda t: 64 + 4 * t
nbg = len(bg); BGS = OPT.get("bgs", 3)
for st in range(4):
    seq = [(t, d1, t - d1) for t in range(8) for d1 in range(t + 1)]
    main = []
    for n, (t, d1, sg) in enumerate(seq):
        def f(t=t, d1=d1, sg=sg):
            if st == 0 and d1 == 0: wlg(("c", 0, t))
            e(f"v_mfma_f32_16x16x32_bf16 {V(ACC(t),4)}, {V(FA(st,d1),4)}, {V(FB(st,sg),4)}, {0 if (st == 0 and d1 == 0) else V(ACC(t),4)}")
        main.append(f)
    if st < 3:
        part = bg[st * nbg // BGS:(st + 1) * nbg // BGS]
        if st == 0:
            weave(main[:6], first[12:]); weave(main[6:], merge(rdC(1), part), 0, 28)
        else:
            weave(main, merge(rdC(st + 1), part), 0, 33)
        wlg0()
        if st == 2: e("s_barrier")
    else:
        done = {t * (t + 1) // 2 + t: t for t in range(8)}
        pend = []
        for n, f in enumerate(main):
            f()
            if n in done: pend.append((n, done[n]))
            if pend and n - pend[0][0] >= 8:
                t = pend.pop(0)[1]; ds(f"ds_write_b128 v109, {V(ACC(t),4)} offset:{1024*t}")
        for _, t in pend: ds(f"ds_write_b128 v109, {V(ACC(t),4)} offset:{1024*t}")
stamp("conv")
wlg0()
e("s_barrier")
for k in range(2):
    for src in range(4): ds(f"ds_read_b128 {V(64+16*k+4*src,4)}, v110 offset:{8192*src+1024*k}", ("red", k))
for k in range(2):
    b = 64 + 16 * k
    wlg(("red", k))
    for c in range(2):
        for hf in range(2): e(f"v_pk_add_f32 {V(b+8*c+2*hf,2)}, {V(b+8*c+2*hf,2)}, {V(b+8*c+4+2*hf,2)}")
    for i in range(4): e(f"v_cvt_pk_bf16_f32 v{40+4*k+i}, v{b+i}, v{b+8+i}")
    vm(f"buffer_store_dwordx4 {V(40+4*k,4)}, v3, {S(RWS,4)}, s{sOB2} offen offset:{1024*k} sc1", "ob2")
stamp("a_out")

e("v_bfe_u32 v18, v1, 2, 2"); e("v_lshlrev_b32 v18, 7, v18"); e("v_bfe_u32 v19, v1, 4, 1"); e("v_lshl_add_u32 v18, v19, 5, v18")
e("v_and_b32 v19, 3, v1"); e("v_lshl_add_u32 v18, v19, 3, v18"); e("v_bfe_u32 v19, v1, 3, 1"); e("v_lshl_add_u32 v18, v19, 6, v18")
e("v_lshrrev_b32 v19, 5, v1")
vT2 = 28
e("v_lshl_add_u32 v28, v19, 9, v18"); e(f"s_add_u32 s4, s{sM0}, {LB}"); e("v_add_u32 v28, s4, v28"); e("v_xor_b32 v29, 64, v28")
wvm("w2r0")
xun = []
for d in range(8): xun += [f"v_lshlrev_b32 v{128+2*d}, 16, v{120+d}", f"v_and_b32 v{129+2*d}, 0xffff0000, v{120+d}"]
xun += [f"v_lshl_add_u32 v{vTR0}, v19, 10, v18", f"v_xor_b32 v{vTR1}, 64, v{vTR0}",
        f"v_xor_b32 v{vDMA}, 0x10000, v{vDMA}", "v_xor_b32 v30, 0x10000, v113", f"s_mov_b32 s{sCNT}, 0"]
xun += [f"s_lshl_b32 s4, s{sB}, 8", "s_sub_u32 s4, 128, s4"] + [f"v_add_u32 v{20+i}, s4, v{20+i}" for i in range(4)]
vDMA1[0] = 30
for f in merge(tr_w2(0, range(7), vT2), [lambda x=x: e(x) for x in xun]): f()
wlg0()
stamp("r0")
for f in dma_w2(range(7), LB, "w2r2"): f()
def h2_loads():
    for d in range(8): vm(f"buffer_load_dword v{32+d}, v107, {S(RWS,4)}, s{sO8+d} offen sc1", "h2")
wvm("ob2")
h2_loads()
stamp("poll2")
wvm("w2r2")
for f in tr_w2(2, range(7), vT2): f()
wvm("h2")
lab("L_h2chk")
e("v_max3_u32 v40, v32, v33, v34"); e("v_max3_u32 v41, v35, v36, v37"); e("v_max3_u32 v40, v40, v38, v39"); e("v_max_u32 v40, v40, v41")
e("v_cmp_eq_u32 vcc, -1, v40")
e("s_cbranch_vccnz L_h2retry")
lab("L_h2ok")
retry("h2", h2_loads)
count("h2")
stamp("a_in")
for d in range(8):
    e(f"v_lshlrev_b32 v{64+2*d}, 16, v{32+d}"); e(f"v_and_b32 v{65+2*d}, 0xffff0000, v{32+d}")
for d in range(8): e(f"v_pk_add_f32 {V(64+2*d,2)}, {V(64+2*d,2)}, {V(128+2*d,2)}")
e("v_mov_b32 v52, 0"); e("v_mov_b32 v53, 0")
for d in range(8): e(f"v_cvt_pk_bf16_f32 v{40+d}, v{64+2*d}, v{65+2*d}")
for d in range(8):
    e(f"v_dot2c_f32_bf16 v52, v{40+d}, v{vONES}"); e(f"v_dot2c_f32_bf16 v53, v{40+d}, v{40+d}")
for t in unp[:3]: e(t)
e("v_add_f32 v52, v52, v52 row_ror:8"); e("v_add_f32 v53, v53, v53 row_ror:8")
for t in unp[3:5]: e(t)
e("v_permlane16_swap_b32 v52, v53")
e("v_add_f32 v52, v52, v53")
e("v_mov_b32 v53, v52")
for t in unp[5:7]: e(t)
e("v_permlane32_swap_b32 v52, v53")
e("v_add_f32 v52, v52, v53")
ds("ds_write_b32 v111, v52")
for t in unp[7:12]: e(t)
wlg0(); e("s_barrier")
ds("ds_read2st64_b64 v[32:35], v112 offset0:0 offset1:4"); ds("ds_read2st64_b64 v[36:39], v112 offset0:8 offset1:12")
e(f"s_mov_b32 s4, {hx(1/512)}")
for t in unp[12:]: e(t)
wlg0()
e("v_pk_add_f32 v[32:33], v[32:33], v[34:35]"); e("v_pk_add_f32 v[36:37], v[36:37], v[38:39]"); e("v_pk_add_f32 v[32:33], v[32:33], v[36:37]")
e("v_pk_mul_f32 v[32:33], v[32:33], s[4:5] op_sel_hi:[1,0]")
e("v_fma_f32 v33, -v32, v32, v33"); e("v_max_f32 v33, 0, v33")
e(f"v_add_f32 v34, {hx(EPS)}, v33"); e("v_rsq_f32 v34, v34")
e("v_mul_f32 v33, v33, v34"); e(f"v_fmaak_f32 v33, v33, v34, {hx(EPS)}"); e("v_rsq_f32 v33, v33")
e(f"v_mul_f32 v34, {hx(SS)}, v34"); e("v_mul_f32 v34, v34, v33"); e("v_mul_f32 v35, -v32, v34")
for k in range(2):
    for d in range(4 * k, 4 * k + 4): e(f"v_pk_fma_f32 {V(64+2*d,2)}, {V(64+2*d,2)}, v[34:35], v[34:35] op_sel:[0,0,1] op_sel_hi:[1,0,1]")
    for d in range(4 * k, 4 * k + 4): e(f"v_cvt_pk_bf16_f32 v{48+d}, v{64+2*d}, v{65+2*d}")
    vm(f"buffer_store_dwordx4 {V(48+4*k,4)}, v{vZS}, {S(RWS,4)}, s{sZ0+k} offen sc1", "zst")
stamp("z_out")

adr = []
def ad(x): adr.append(lambda: e(x))
ad(f"s_lshl_b32 s4, s{sG}, 2"); ad("s_add_u32 s4, s4, s6"); ad("s_lshl_b32 s4, s4, 15"); ad(f"s_add_u32 s4, s4, {ZB}")
ad(f"s_and_b32 s5, s{sI}, {7 if ROT else 0}"); ad("s_lshl_b32 s5, s5, 12")
for c in range(8):
    ad(f"s_add_u32 s{sO8+c}, s4, s5")
    if c < 7: ad("s_add_u32 s5, s5, 4096"); ad("s_and_b32 s5, s5, 0x7fff")
ad(f"v_xor_b32 v{vDMA}, 0x18000, v{vDMA}"); ad("v_xor_b32 v30, 0x18000, v30")
ad(f"v_subrev_u32 v28, {LB}, v28"); ad(f"v_subrev_u32 v29, {LB}, v29")
ad(f"s_lshl_b32 s4, s{sG}, 2"); ad(f"s_lshl_b32 s5, s{sTH}, 1"); ad("s_add_u32 s7, s4, s5")
ad("s_mul_i32 s4, s7, 114688"); ad(f"s_lshl_b32 s5, s{sB}, 12"); ad("s_add_u32 s4, s4, s5"); ad(f"s_add_u32 s4, s4, {HB}")
ad(f"v_add_u32 v18, s4, v{vL16}"); ad("v_add_u32 v19, 114688, v18"); ad("v_xor_b32 v8, 4096, v18"); ad("v_add_u32 v9, 114688, v8")
ad("s_lshl_b32 s4, s7, 1"); ad("s_add_u32 s10, s4, s6")
ad(f"s_and_b32 s11, s{sI}, 7"); ad("s_lshl_b32 s4, s11, 18"); ad("s_lshl_b32 s5, s10, 6"); ad("s_add_u32 s4, s4, s5")
ad(f"s_add_u32 s12, s4, {OB2}"); ad(f"s_add_u32 s13, s4, {OB2 + 16*8192}")
ad("v_lshrrev_b32 v60, 2, v1"); ad("v_and_b32 v61, 3, v1"); ad("v_lshlrev_b32 v61, 4, v61"); ad("v_lshl_add_u32 v24, v60, 13, v61")
ad(f"s_add_u32 s4, s{sM0}, {LB+8192}")
ad("v_mul_u32_u24 v60, 80, v60"); ad("v_add3_u32 v25, v60, v61, s4")
ad("v_lshrrev_b32 v62, 3, v1"); ad("v_and_b32 v63, 7, v1")
ad("v_mul_u32_u24 v60, 320, v63"); ad("v_lshlrev_b32 v61, 2, v62"); ad("v_add3_u32 v26, v60, v61, s4")
ad("v_and_b32 v60, 31, v1"); ad("v_lshrrev_b32 v61, 5, v1"); ad("v_xor_b32 v61, v61, v63")
ad("v_lshlrev_b32 v61, 4, v61"); ad("v_lshl_add_u32 v10, v60, 8, v61"); ad(f"v_add_u32 v10, s{sM0}, v10")
for g in range(1, 4): ad(f"v_xor_b32 v{10+g}, {32*g}, v10")
ad("v_lshlrev_b32 v60, 1, v63"); ad("v_xor_b32 v60, v60, v62"); ad("v_lshlrev_b32 v60, 4, v60"); ad("v_lshl_add_u32 v14, v62, 8, v60")
ad("s_lshl_b32 s4, s6, 12"); ad("v_add_u32 v14, s4, v14"); ad("v_xor_b32 v15, 16, v14")
ad("s_lshl_b32 s4, s10, 14"); ad("s_lshl_b32 s5, s11, 7"); ad("s_add_u32 s4, s4, s5")
ad("v_lshlrev_b32 v60, 4, v63"); ad("v_lshl_add_u32 v16, v62, 10, v60"); ad("v_add_u32 v16, s4, v16"); ad("v_add_u32 v17, 8192, v16")
ad(f"s_lshl_b32 s{sT1}, s6, 13"); ad("v_mov_b32 v27, 0x60006000")
sh = bf16_rne(SS); sl = bf16_rne(SS - bf16_val(sh))
for r in range(4):
    ad(f"v_accvgpr_read_b32 v{32+4*r}, a{224+r}")
    for i in range(1, 4): ad(f"v_mov_b32 v{32+4*r+i}, 0")
    ad(f"v_lshl_or_b32 v{32+4*r}, v{32+4*r}, 16, v{32+4*r}")
ad("v_cmp_gt_u32 vcc, 32, v1"); ad(f"v_mov_b32 v48, {hex(sh | (sl << 16))}"); ad("v_mov_b32 v49, 0"); ad("v_mov_b32 v50, 0"); ad("v_mov_b32 v51, 0")
ad("v_cndmask_b32 v48, 0, v48, vcc")
ad(f"s_mov_b32 s{sCNT}, 0")
for f in merge(dma_w1(LB, 0, 16, "w1b"), adr): f()
stamp("w1b")
e(f"s_cmp_ge_u32 s{sI}, 14"); e("s_cbranch_scc1 L_idle")
HF = lambda q, tt: 128 + 8 * (q % 16) + 4 * tt
def h_load(q):
    r, n = divmod(q, 7)
    return [lambda tt=tt: vm(f"buffer_load_dwordx4 {V(HF(q,tt),4)}, v{(8 if r >> 1 else 18)+tt}, {S(RWS,4)}, s{sKS+n} offen offset:{2048*(r&1)} sc1", ("h", q >> 1)) for tt in range(2)]
def w2_mid():
    o = dma_w2(range(7), LA, "w2r1")
    o += [lambda: (e(f"v_xor_b32 v{vDMA}, 0x10000, v{vDMA}"), e("v_xor_b32 v30, 0x10000, v30"))]
    o += dma_w2([4], LA + 14336, "w2r3") + dma_w2(range(4), LC, "w2r3", sT1)
    if OPT.get("nomid"): o = []
    return [(1.5, f) for f in o]
def idle():
    lab("L_idle")
    e("s_barrier")
    for _, f in w2_mid(): f()
    lab("L_idle1")
    e(f"s_add_u32 s{sCNT}, s{sCNT}, 1"); e(f"s_cmp_gt_u32 s{sCNT}, {SPIN}"); e("s_cbranch_scc1 L_T")
    e(f"buffer_load_dword v32, v18, {S(RWS,4)}, s{sKS} offen offset:4 sc1")
    e("s_waitcnt vmcnt(0)")
    e(f"v_bitop3_b32 v32, v32, s{sHT}, v27 bitop3:0x28"); e("v_cmp_ne_u32 vcc, 0, v32"); e("s_cbranch_vccnz L_idle1")
    e(f"s_mov_b32 s{sCNT}, 0")
    e("s_branch L_T")
tail.append(idle)

ZF = lambda s: 128 + 4 * s
def z_chunk(c):
    if c >= 8: return []
    return [lambda i=i: vm(f"buffer_load_dwordx4 {V(ZF(4*c+i),4)}, v{vL16}, {S(RWS,4)}, s{sO8+c} offen offset:{1024*i} sc1", ("z", c)) for i in range(4)]
ZA = OPT.get("za", 3)
wvm("zst")
for c in range(ZA):
    for f in z_chunk(c): f()
stamp("zpoll")
G1 = lambda r: 64 + 16 * r
WF = lambda n: 224 + 4 * (n % 8)
wseq = [(s, r) for s in range(32) for r in (0, 1)] + [(s, 2) for s in range(32)] + [(s, 3) for s in range(32)]
def rdW(n):
    if n >= len(wseq): return
    s, r = wseq[n]
    if n == 64: e(f"v_add_u32 v{vTR0}, {LB}, v{vTR0}"); e(f"v_add_u32 v{vTR1}, {LB}, v{vTR1}")
    for hf in range(2): ds(f"ds_read_b64_tr_b16 {A(WF(n)+2*hf,2)}, v{vTR0+(r&1)} offset:{2048*s+512*hf}", ("w", n))
DEPTH = 6
for n in range(DEPTH): rdW(n)
for r in range(4): e(f"v_mfma_f32_32x32x16_bf16 {V(G1(r),16)}, {V(32+4*r,4)}, v[48:51], 0")
def g1_mfma(n):
    s, r = wseq[n]
    if n % 2 == 0: wlg(("w", n + 1))
    e(f"v_mfma_f32_32x32x16_bf16 {V(G1(r),16)}, {A(WF(n),4)}, {V(ZF(s),4)}, {V(G1(r),16)}")
    rdW(n + DEPTH)
def chk16(name, base):
    o = [f"v_max3_u32 v60, v{base}, v{base+1}, v{base+2}", f"v_max3_u32 v61, v{base+3}, v{base+4}, v{base+5}"]
    for i in range(6, 16, 4):
        o.append(f"v_max3_u32 v60, v60, v{base+i}, v{base+i+1}")
        if i + 2 < 16: o.append(f"v_max3_u32 v61, v61, v{base+i+2}, v{base+i+3}")
    return o + ["v_max_u32 v60, v60, v61", "v_cmp_eq_u32 vcc, -1, v60", f"s_cbranch_vccnz L_{name}retry"]
def chkH(name, base):
    o = [f"v_bitop3_b32 v{60+g}, v{base+4*g+1}, v{base+4*g+3}, s{sHT} bitop3:0x7e" for g in range(4)]
    return o + ["v_or3_b32 v60, v60, v61, v62", "v_bitop3_b32 v60, v60, v63, v27 bitop3:0xa8", "v_cmp_ne_u32 vcc, 0, v60", f"s_cbranch_vccnz L_{name}retry"]
def checked(name, tag, base, reload, nlater, fn=chk16):
    c = fn(name, base)
    retry(name, reload, nlater, c)
    return [lambda: wvm(tag)] + [lambda x=x: e(x) for x in c] + [lambda: lab(f"L_{name}ok")]
def z_checked(c, top):
    def rl():
        for cc in range(c, top):
            for f in z_chunk(cc): f()
    return checked(f"z{c}", ("z", c), ZF(4 * c), rl, 4 * (top - c - 1))
for f in z_checked(0, ZA): f()
count("z0")
stamp("z_in")
for c in range(8):
    m = [lambda n=n: g1_mfma(n) for n in range(8 * c, 8 * c + 8)]
    weave(m[:4], z_chunk(c + ZA))
    if c == 6: e("s_barrier")
    weave(m[4:], z_checked(c + 1, min(8, c + ZA + 1)) if c < 7 else [])
count("z")
stamp("g1a")
e(f"s_mov_b32 s4, {hx(GC)}")
def gelu(r, pk):
    a = G1(r); out = []
    for hh in range(2):
        b = a + 8 * hh; t = 40
        if pk:
            for i in range(0, 8, 2): out.append(f"v_pk_fma_f32 {V(t+i,2)}, {V(b+i,2)}, {V(b+i,2)}, s[4:5] op_sel_hi:[1,1,0]")
            for i in range(0, 8, 2): out.append(f"v_pk_mul_f32 {V(t+i,2)}, {V(t+i,2)}, {V(b+i,2)}")
        else:
            for i in range(8): out.append(f"v_fma_f32 v{t+i}, v{b+i}, v{b+i}, s4")
            for i in range(8): out.append(f"v_mul_f32 v{t+i}, v{t+i}, v{b+i}")
        for i in range(8): out.append(f"v_exp_f32 v{t+i}, v{t+i}")
        if pk:
            for i in range(0, 8, 2): out.append(f"v_pk_fma_f32 {V(t+i,2)}, {V(t+i,2)}, s[{sHT}:{sLAM}], s[{sHT}:{sLAM}] op_sel:[0,1,1] op_sel_hi:[1,1,1]")
        else:
            for i in range(8): out.append(f"v_fma_f32 v{t+i}, v{t+i}, s{sLAM}, s{sLAM}")
        for i in range(8): out.append(f"v_rcp_f32 v{t+i}, v{t+i}")
        if pk:
            for i in range(0, 8, 2):
                out.append(f"v_pk_fma_f32 {V(t+i,2)}, {V(t+i,2)}, {V(b+i,2)}, s[{sCQ}:{sFIN}] op_sel_hi:[1,1,0]" if i & 2 else f"v_pk_mul_f32 {V(t+i,2)}, {V(t+i,2)}, {V(b+i,2)}")
            for i in (2, 6): out.append(f"v_pk_add_f32 {V(t+i,2)}, {V(t+i,2)}, s[{sCQ}:{sFIN}] op_sel_hi:[1,0] neg_lo:[0,1] neg_hi:[0,1]")
        else:
            for i in range(8): out.append(f"v_fma_f32 v{t+i}, v{t+i}, v{b+i}, s{sCQ}" if i & 2 else f"v_mul_f32 v{t+i}, v{t+i}, v{b+i}")
            for i in (2, 3, 6, 7): out.append(f"v_subrev_f32 v{t+i}, s{sCQ}, v{t+i}")
        for i in range(4): out.append(f"v_cvt_pk_bf16_f32 v{32+4*hh+i}, v{t+2*i}, v{t+2*i+1}")
        for i in (1, 3): out.append(f"v_or_b32 v{32+4*hh+i}, s{sHT}, v{32+4*hh+i}")
        out.append(f"buffer_store_dwordx4 {V(32+4*hh,4)}, v{vL16}, {S(RWS,4)}, s{sHa if r < 2 else sHb} offen offset:{2048*(r&1)+1024*hh} sc1")
    return [(1, lambda x=x: vm(x, "hst2")) if x.startswith("buffer") else (cost(x), lambda x=x: e(x)) for x in out]
m = [lambda n=n: g1_mfma(n) for n in range(64, 96)]
m[0](); m[1](); e("s_barrier")
mid = w2_mid(); MS = OPT.get("ms", 14)
spread(m[2:], merge(gelu(0, False), mid[:MS]))
spread([lambda n=n: g1_mfma(n) for n in range(96, 128)], merge(gelu(1, False), mid[MS:]))
stamp("g1b")

lab("L_T")
HA0 = OPT.get("ha0", 6); HA = OPT.get("ha", 8)
for q in range(HA0):
    for f in h_load(q): f()
e("s_barrier")
late = dma_w2([5, 6], LB, "w2r3b")
if OPT.get("nomid"): late = []
e(f"s_cmp_ge_u32 s{sI}, 14"); e("s_cbranch_scc1 L_idle2")
for f in merge([f for _, f in gelu(2, True) + gelu(3, True)], late): f()
lab("L_g2")
def idle2():
    lab("L_idle2")
    for f in late: f()
    e("s_waitcnt vmcnt(0)"); e("s_branch L_g2")
tail.append(idle2)
stamp("gelu")
e(f"s_mov_b32 s{sCNT}, 0")
for q in range(HA0, HA):
    for f in h_load(q): f()
G2 = lambda ct, tt: 64 + 32 * tt + 16 * ct
def g2_mfma(q, ct, tt):
    r, n = divmod(q, 7)
    if n == 0 and ct == 0 and tt == 0 and r in (1, 3): wlg0()
    e(f"v_mfma_f32_32x32x16_bf16 {V(G2(ct,tt),16)}, {A(W2R(r,n,ct),4)}, {V(HF(q,tt),4)}, {V(G2(ct,tt),16) if q else 0}")
def h_checked(c, top):
    def rl():
        for q in range(2 * c, top):
            for f in h_load(q): f()
    return checked(f"hh{c}", ("h", c), HF(2 * c, 0), rl, 2 * (top - 2 * c - 2), chkH)
for f in h_checked(0, HA): f()
count("h0")
stamp("h_in")
NMAIN = 22
t1 = tr_w2(1, range(7), vT2) + tr_w2(3, [4], vT2, 14336)
def mv(x): return [lambda: (e(f"v_add_u32 v28, {x}, v28"), e(f"v_add_u32 v29, {x}, v29"))]
t3 = mv(LB) + tr_w2(3, [5, 6], vT2) + [lambda: e(f"s_sub_u32 s4, {LC-LB}, s{sT1}")] + mv("s4") + tr_w2(3, range(4), vT2)
rld = [lambda k=k: vm(f"buffer_load_dwordx4 {V(48+4*k,4)}, v24, {S(RWS,4)}, s{12+k} offen sc1", "ra") for k in range(2)]
rld += [lambda k=k: vm(f"global_load_dwordx4 {V(40+4*k,4)}, v{16+k}, {S(SX,2)}", "ra") for k in range(2)]
if OPT.get("nora"): rld = rld[3:]
res = []
for d in range(8):
    res += [f"v_lshlrev_b32 v20, 16, v{32+d}", f"v_and_b32 v21, 0xffff0000, v{32+d}", f"v_lshlrev_b32 v22, 16, v{40+d}", f"v_and_b32 v23, 0xffff0000, v{40+d}",
            "v_add_f32 v20, v20, v22", "v_add_f32 v21, v21, v23", f"v_cvt_pk_bf16_f32 v{48+d}, v20, v21"]
for d in range(8): res += [f"v_lshlrev_b32 v{32+2*d}, 16, v{48+d}", f"v_and_b32 v{33+2*d}, 0xffff0000, v{48+d}"]
for d in range(4): res += [f"v_lshlrev_b32 v{48+2*d}, 16, v{56+d}", f"v_and_b32 v{49+2*d}, 0xffff0000, v{56+d}"]
for d in range(16): res += [f"v_add_f32 v{32+d}, v{32+d}, v{48+(d&7)}"]
res = [lambda x=x: e(x) for x in res]
extra = {0: rld + t1[:10], 1: t1[10:21], 2: t1[21:], 3: t3[:10], 4: t3[10:19], 5: t3[19:],
         6: [lambda: wvm("ra"), lambda: ds("ds_write_b128 v25, v[48:51]"), lambda: ds("ds_write_b128 v25, v[52:55] offset:1280")],
         7: [wlg0] + [lambda k=k, i=i: ds(f"ds_read2_b32 {V(32+4*k+2*i,2)}, v26 offset0:{8*k+40*i} offset1:{8*k+40*i+20}") for k in range(2) for i in range(2)],
         8: [wlg0] + res[:20], 9: res[20:40], 10: res[40:60]}
res = res[60:]
nxt = HA
for c in range(NMAIN // 2):
    m = [lambda q=q, ct=ct, tt=tt: g2_mfma(q, ct, tt) for q in (2 * c, 2 * c + 1) for tt in range(2) for ct in range(2)]
    fill = []
    for q in range(nxt, min(28, nxt + 2)): fill += h_load(q)
    nxt = min(28, nxt + 2)
    fill += extra.get(c, [])
    weave(m[:4], fill)
    ck = h_checked(c + 1, nxt)
    weave(m[4:], ck)
    if OPT.get("fine"): stamp(f"c{c}")
assert nxt == 28
tiles = [(ct, tt) for tt in range(2) for ct in range(2)]
def red_w(ct, tt): return [lambda g=g: ds(f"ds_write_b128 v{10+g}, {V(G2(ct,tt)+4*g,4)} offset:{8192*tt+128*ct}") for g in range(4)]
prev = None
for i, (ct, tt) in enumerate(tiles):
    m = [lambda q=q: g2_mfma(q, ct, tt) for q in range(NMAIN, 28)]
    if i == 0:
        weave(m[:2], h_checked(12, 28)); weave(m[2:4], h_checked(13, 28)); m[4](); m[5]()
        count("h")
    else:
        weave(m[:3], res[(i-1) * 12:i * 12])
        weave(m[3:], red_w(*prev))
    prev = (ct, tt)
stamp("g2m")
for f in red_w(*prev): f()
wlg0(); e("s_barrier")
stamp("g2")
for k in range(2):
    for src in range(4):
        for hf in range(2): ds(f"ds_read_b128 {V(64+32*k+8*src+4*hf,4)}, v{14+hf} offset:{16384*src+2048*k}", ("r2", k, src))
for k in range(2):
    b = 64 + 32 * k
    wlg(("r2", k, 1))
    for i in range(0, 8, 2): e(f"v_pk_add_f32 {V(b+i,2)}, {V(b+i,2)}, {V(b+8+i,2)}")
    wlg(("r2", k, 3))
    for i in range(0, 8, 2): e(f"v_pk_add_f32 {V(b+16+i,2)}, {V(b+16+i,2)}, {V(b+24+i,2)}")
    for i in range(0, 8, 2): e(f"v_pk_add_f32 {V(b+i,2)}, {V(b+i,2)}, {V(b+16+i,2)}")
    for i in range(0, 8, 2): e(f"v_pk_fma_f32 {V(b+i,2)}, {V(b+i,2)}, s[{sCQ}:{sFIN}], {V(32+8*k+i,2)} op_sel:[0,1,0] op_sel_hi:[1,1,1]")
    for i in range(4): e(f"v_cvt_pk_bf16_f32 v{48+4*k+i}, v{b+2*i}, v{b+2*i+1}")
    vm(f"global_store_dwordx4 v{16+k}, {V(48+4*k,4)}, {S(SOUT,2)}", "out")
if OPT["stamps"]:
    stamp("end"); wlg0()
    e("s_lshl_b32 s4, s2, 2"); e("s_add_u32 s4, s4, s6"); e("s_lshl_b32 s4, s4, 8"); e(f"s_add_u32 s4, s4, {STAMP}")
    e("v_lshlrev_b32 v30, 2, v1")
    e(f"buffer_store_dword v31, v30, {S(RWS,4)}, s4 offen")
e("s_endpgm")
i = 0
while i < len(tail): tail[i](); i += 1
lab("L_end")
e("s_endpgm")

body, added = hz.fix(L, verbose=OPT.get("hz", False))
post = f""".section .rodata,"a"
.p2align 6
.amdhsa_kernel {lab_name}
  .amdhsa_next_free_vgpr 512
  .amdhsa_next_free_sgpr 102
  .amdhsa_accum_offset 256
  .amdhsa_group_segment_fixed_size 0
  .amdhsa_kernarg_size 120
  .amdhsa_user_sgpr_count 2
  .amdhsa_user_sgpr_kernarg_segment_ptr 1
  .amdhsa_system_sgpr_workgroup_id_x 1
.end_amdhsa_kernel
"""
open(sys.argv[1], "w").write(pre + "\n".join(body) + "\n" + post)
if OPT["stamps"]: open(sys.argv[1] + ".stamps", "w").write(" ".join(stamp_names))
print("instructions:", sum(1 for x in body if hz.Ins(x).is_ins), "nop states added:", added)
```

```python
import sys, math, struct
sys.path.insert(0, "exp")
import hz

KN = "sequential_preLN__ssm_conv_s4d__mixer_channel_mlp__prompt"
OPT = dict(stamps=False)
for a in sys.argv[2:]:
    k, _, v = a.partition("=")
    OPT[k] = (int(v) if v.lstrip("-").isdigit() else v) if v else True

def f2u(x): return struct.unpack("<I", struct.pack("<f", x))[0]
def hx(x): return "0x%08x" % f2u(x)
def bf16_rne(x):
    u = f2u(x); return ((u + 0x7FFF + ((u >> 16) & 1)) >> 16) & 0xFFFF
def bf16_val(h): return struct.unpack("<f", struct.pack("<I", h << 16))[0]

OB1, OB2, ZB, HRB, HB, STAMP = 0x100000, 0x300000, 0x500000, 0x700000, 0x900000, 0x1100000
WS_SIZE = 0x1200000
LA, LB, LC = 0, 65536, 131072
TB = LB
TROW, TCH = 544, 34816
UB = LC + 4096; USZ = 4576
KB = UB + 2 * USZ; KCOPY = 4160; KSZ = 2 * KCOPY
STAT1 = KB + 2 * KSZ
RED = LC
LDS_SIZE = 163840
LOG2E = 1.4426950408889634
K1 = 2.0 * math.sqrt(2.0 / math.pi) * LOG2E
K2 = K1 * 0.044715
SS = -(K2 ** (1.0 / 3.0))
GC = K1 / abs(SS)
C0 = 1.5 * 2.0 ** -8
EPS = 1e-5
MASK = 0x70007000
SPIN = 20000

L = []
vmq = []; lgq = []
def e(s):
    for x in s.split("\n"): L.append("  " + x.strip())
def lab(s): L.append(s + ":")
def vm(s, tag=None): e(s); vmq.append(tag)
def ds(s, tag=None): e(s); lgq.append(tag)
def cnt(q, tag):
    idx = max(i for i, t in enumerate(q) if t == tag)
    return len(q) - 1 - idx
def wvm(tag): e("s_waitcnt vmcnt(%d)" % min(cnt(vmq, tag), 63))
def wlg(tag): e("s_waitcnt lgkmcnt(%d)" % min(cnt(lgq, tag), 15))
def wlg0(): e("s_waitcnt lgkmcnt(0)"); flush_st()
def V(a, n=1): return f"v{a}" if n == 1 else f"v[{a}:{a+n-1}]"
def A(a, n=1): return f"a{a}" if n == 1 else f"a[{a}:{a+n-1}]"
def S(a, n=1): return f"s{a}" if n == 1 else f"s[{a}:{a+n-1}]"
nstamp = [0]; stamp_names = []; pend_st = []; st_pool = []
def flush_st():
    while pend_st:
        r, i = pend_st.pop(0); e(f"v_writelane_b32 v31, s{r}, {i}"); st_pool.append(r)
def stamp(name):
    if OPT.get("at") == name:
        e("s_memrealtime s[14:15]"); e("s_waitcnt lgkmcnt(0)"); e("v_mov_b32 v31, s14")
    if not OPT["stamps"]: return
    if not st_pool:
        r, i = pend_st.pop(0); e(f"v_writelane_b32 v31, s{r}, {i}"); st_pool.append(r)
    r = st_pool.pop(0)
    e(f"s_memtime s[{r}:{r+1}]" if OPT.get("cyc") else f"s_memrealtime s[{r}:{r+1}]")
    pend_st.append((r, nstamp[0])); nstamp[0] += 1; stamp_names.append(name)
def count(name):
    if not OPT["stamps"]: return
    e(f"v_writelane_b32 v31, s{sCNT}, {nstamp[0]}"); nstamp[0] += 1; stamp_names.append("#" + name)
def weave(main, fill, start=0, end=None):
    n = (len(main) if end is None else end) - start; k = 0
    for i, m in enumerate(main):
        m()
        if i >= start and i - start < n:
            t = (i - start + 1) * len(fill) // n
            for f in fill[k:t]: f()
            k = t
tail = []
def cost(x):
    return 2 if x.split()[0] in hz.TRANS else 1
def spread(main, fill, start=0, end=None):
    n = (len(main) if end is None else end) - start; k = 0; tot = sum(c for c, _ in fill); acc = 0
    for i, m in enumerate(main):
        m()
        if i >= start and i - start < n:
            t = (i - start + 1) * tot / n
            while k < len(fill) and (acc + fill[k][0] / 2.0 <= t or i - start == n - 1):
                fill[k][1](); acc += fill[k][0]; k += 1
def merge(a, b):
    out = []
    for i, x in enumerate(a):
        out.append(x); out += b[i * len(b) // len(a):(i + 1) * len(b) // len(a)]
    return out

sP, sW = 3, 6
SX, SLA, SAI, SCR, SCI, SLDT, SDSK = 8, 10, 12, 14, 16, 18, 20
SW1, SB1, SW2, SB2, SOUT, SWS = 24, 26, 28, 30, 32, 34
RWS, RW1, RW2 = 36, 40, 44
sLDT, sDSK, sE = 52, 53, 54
sTAG = 56
sO8 = 60
sKS, sWR = 68, 75
sOB1, sOB2, sZ0, sZ1, sHa, sHb = 82, 83, 84, 85, 88, 89
sCNT, sI, sB, sG, sT0, sT1, sM0, sG1a, sG1b, sTH = 90, 91, 92, 93, 94, 95, 96, 97, 98, 99
sW1g = (86, 87, 100, 101)
sHT, sLAM, sCQ, sFIN = 48, 49, 50, 51
sPERMLO, sPERMHI = 22, 23
vL, vL16, vOBS, vDMA, vZS, vTR0, vTR1, vMASK, vONES = 1, 2, 3, 4, 5, 6, 7, 8, 9

lab_name = KN + "_kernel"
hdr = open("cdna_kernels/" + KN + ".s.ref").read().split("; Override launch")[0]
pre = hdr + f"; @launch grid=(256,1,1) block=(256,1,1) lds={LDS_SIZE}\n" + \
    f'.amdgcn_target "amdgcn-amd-amdhsa--gfx950"\n.text\n.globl {lab_name}\n.p2align 8\n.type {lab_name},@function\n{lab_name}:\n'


st_pool += [60, 62, 64, 66]
e("s_cmp_ge_u32 s2, 256"); e("s_cbranch_scc1 L_end")
e("s_load_dwordx16 s[8:23], s[0:1], 0")
e("s_load_dwordx2 s[34:35], s[0:1], 112")
e("s_load_dwordx8 s[24:31], s[0:1], 64")
e("s_load_dwordx2 s[32:33], s[0:1], 96")
stamp("start")
if OPT.get("diag"): e("s_memrealtime s[60:61]")
e("s_getpc_b64 s[36:37]"); lab("L_pc")
e("s_lshr_b32 s7, s2, 3"); e("s_lshl_b32 s4, s7, 10"); e("s_add_u32 s38, s4, 1024"); e("s_min_u32 s38, s38, L_end-L_pc"); e("s_mov_b32 s39, 0x20000")
e("v_lshlrev_b32 v10, 7, v0")
vm("buffer_load_dword v11, v10, s[36:39], s4 offen", "pf")
e("s_and_b32 s3, s2, 7"); e("v_lshrrev_b32 v12, 6, v0"); e("s_lshl_b32 s3, s3, 5"); e("v_and_b32 v1, 63, v0")
e("v_readfirstlane_b32 s6, v12"); e("s_add_u32 s3, s3, s7")
e("v_lshrrev_b32 v13, 5, v0"); e("s_lshl_b32 s7, s3, 13")
e("v_and_b32 v14, 31, v0"); e("s_lshl_b32 s4, s3, 9")
e("v_lshlrev_b32 v14, 4, v14"); e("s_lshl_b32 s5, s3, 2")
e("v_lshl_add_u32 v13, v13, 10, v14"); e(f"s_add_u32 s{sOB1}, s7, {OB1}")
e("v_add_u32 v13, s7, v13"); e(f"s_add_u32 s{sOB2}, s7, {OB2}")
e("v_lshrrev_b32 v14, 1, v0"); e("v_and_b32 v15, 1, v0")
e("v_lshlrev_b32 v16, 3, v14"); e("v_lshl_add_u32 v16, v15, 12, v16"); e("v_add_u32 v16, s7, v16")
e("v_lshl_add_u32 v17, v0, 1, s4")
for r in range(48, 52): e(f"v_mov_b32 v{r}, 0")
e("v_lshlrev_b32 v2, 4, v1"); e("v_lshl_add_u32 v3, v12, 11, v2")
if OPT["stamps"]: e("v_mov_b32 v31, 0")
wlg0()
if OPT.get("diag"): e("v_mov_b32 v31, s60")
stamp("karg")
vm(f"global_load_dwordx4 v[32:35], v13, {S(SX,2)}", "xs")
vm(f"global_load_dwordx4 v[36:39], v13, {S(SX,2)} offset:512", "xs")
e(f"s_load_dwordx2 s[{sE}:{sE+1}], {S(SWS,2)}, 0")
e(f"s_load_dword s{sLDT}, {S(SLDT,2)}, s5")
e(f"s_load_dword s{sDSK}, {S(SDSK,2)}, s5")
for i in range(4): vm(f"global_load_dwordx2 {V(40+2*i,2)}, v16, {S(SX,2)} offset:{1024*i}", "xg")
for i, p in enumerate((SLA, SAI, SCR, SCI)): vm(f"global_load_short_d16_hi v{48+i}, v17, {S(p,2)}", "par")
for r in range(4):
    e(f"v_mov_b32 v{60+r}, -1")
    e((f"s_mov_b32 s{RWS}, s{SWS}", f"s_mov_b32 s{RWS+1}, s{SWS+1}", f"s_mov_b32 s{RWS+2}, {WS_SIZE}", f"s_mov_b32 s{RWS+3}, 0x20000")[r])
for k in range(2): vm(f"buffer_store_dwordx4 v[60:63], v3, {S(RWS,4)}, s{sOB2} offen offset:{1024*k} sc1", "clr")
e(f"s_and_b32 s{sI}, s3, 15"); e(f"s_lshr_b32 s{sG}, s3, 4"); e(f"s_and_b32 s{sB}, s{sG}, 1"); e(f"s_lshr_b32 s{sTH}, s{sI}, 3")
e(f"s_cmp_lt_u32 s{sI}, 14")
e(f"s_cselect_b32 s{RW1+2}, {512*1792*2}, 0")
e(f"s_min_u32 s4, s{sI}, 13"); e("s_lshl_b32 s4, s4, 8"); e(f"s_lshl_b32 s5, s{sB}, 7"); e("s_add_u32 s4, s4, s5")
e("v_and_b32 v18, 31, v1"); e(f"s_mov_b32 s{RW1}, s{SW1}")
e("v_lshl_add_u32 v18, v18, 1, s4"); e(f"s_mov_b32 s{RW1+1}, s{SW1+1}")
e("v_xor_b32 v19, 128, v18"); e(f"s_mov_b32 s{RW1+3}, 0x20000")
for r in range(4): vm(f"global_load_ushort a{224+r}, v{18+(r>>1)}, {S(SB1,2)} offset:{64*(r&1)}", "b1")
e("v_and_b32 v19, 7, v1"); e(f"s_and_b32 s10, s{sI}, 7"); e("s_lshl_b32 s5, s10, 7"); e("v_lshl_add_u32 v18, v19, 4, s5")
vm(f"global_load_dwordx4 v[56:59], v18, {S(SB2,2)}", "b2")
ROT = OPT.get("rot", 1)
e("v_bfe_u32 v18, v1, 4, 1"); e("s_lshl_b32 s11, s6, 1")
e("v_lshlrev_b32 v18, 2, v18"); e("s_add_u32 s11, s11, s10" if ROT else "s_nop 0")
e("v_xor_b32 v18, v18, v19"); e("s_and_b32 s5, s11, 7")
e("v_lshlrev_b32 v18, 4, v18"); e(f"s_mul_i32 s{sW1g[0]}, s5, {64*3584}")
e("v_lshrrev_b32 v19, 3, v1"); e(f"s_add_u32 s{sW1g[1]}, s{sW1g[0]}, {32*3584}")
e("v_mul_u32_u24 v20, 3584, v19"); e("s_add_u32 s11, s11, 1")
e("v_add3_u32 v20, v20, v18, s4"); e("s_and_b32 s5, s11, 7")
e(f"v_add_u32 v21, {28672-1024}, v20"); e(f"s_mul_i32 s{sW1g[2]}, s5, {64*3584}")
e(f"v_add_u32 v22, {2*(28672-1024)}, v20"); e(f"s_add_u32 s{sW1g[3]}, s{sW1g[2]}, {32*3584}")
e(f"v_add_u32 v23, {3*(28672-1024)}, v20"); e(f"s_lshl_b32 s{sM0}, s6, 14")

def dma_w1(region, n0, n1, tag):
    out = []
    for n in range(n0, n1):
        def f(n=n):
            g, i = divmod(n, 4)
            if n == n0: e(f"s_add_u32 m0, s{sM0}, {region + 4096*g}")
            vm(f"buffer_load_dwordx4 v{20+i}, {S(RW1,4)}, s{sW1g[g]} offen offset:{1024*i} lds", tag)
            if i == 3 and n + 1 < n1: e("s_add_u32 m0, m0, 4096")
        out.append(f)
    return out
NW0 = OPT.get("nw0", 2); NW1 = OPT.get("nw1", 5); NW2 = OPT.get("nw2", 10)
assert NW2 <= 12
for f in dma_w1(LA, 0, NW0, "w1a"): f()
stamp("issued")

VS, SSx = [], []
def v(x): VS.append(x)
def sx(x): SSx.append(x)
sx(f"s_mov_b32 s{RW2}, s{SW2}"); sx(f"s_mov_b32 s{RW2+1}, s{SW2+1}"); sx(f"s_mov_b32 s{RW2+2}, {1792*512*2}"); sx(f"s_mov_b32 s{RW2+3}, 0x20000")
sx("s_and_b32 s10, s3, 0xc0"); sx("s_and_b32 s11, s3, 1"); sx("s_lshl_b32 s11, s11, 5"); sx("s_add_u32 s10, s10, s11")
sx("s_bfe_u32 s11, s3, 0x50001"); sx("s_add_u32 s10, s10, s11"); sx("s_lshl_b32 s10, s10, 5")
sx(f"s_add_u32 s{sG1a}, s10, {OB1}"); sx(f"s_add_u32 s{sG1b}, s10, {OB1 + 128*8192}")
sx(f"s_mov_b32 s{sPERMLO}, 0x05040100"); sx(f"s_mov_b32 s{sPERMHI}, 0x07060302")
sx("s_lshr_b32 s10, s3, 2"); sx("s_lshl_b32 s10, s10, 15"); sx("s_and_b32 s11, s3, 3"); sx("s_lshl_b32 s11, s11, 7"); sx("s_add_u32 s10, s10, s11")
sx(f"s_add_u32 s{sZ0}, s10, {ZB}"); sx(f"s_add_u32 s{sZ1}, s10, {ZB+4096}")
sx(f"s_lshl_b32 s10, s{sG}, 2"); sx("s_add_u32 s10, s10, s6"); sx("s_mul_i32 s10, s10, 114688")
sx(f"s_lshl_b32 s11, s{sI}, 13"); sx("s_add_u32 s10, s10, s11"); sx(f"s_add_u32 s10, s10, {HB}")
sx(f"s_lshl_b32 s11, s{sB}, 12"); sx(f"s_add_u32 s{sHa}, s10, s11"); sx("s_xor_b32 s11, s11, 4096"); sx(f"s_add_u32 s{sHb}, s10, s11")
sx("s_mul_i32 s12, s6, 7"); sx("s_add_u32 s13, s12, 7"); sx(f"s_and_b32 s10, s{sI}, {7 if ROT else 0}"); sx("s_add_u32 s10, s10, s12")
for n in range(7):
    sx("s_cmp_ge_u32 s10, s13\n  s_cselect_b32 s10, s12, s10")
    sx("s_and_b32 s11, s10, 30"); sx("s_mul_i32 s11, s11, 3"); sx("s_add_u32 s11, s11, s10")
    sx(f"s_lshl_b32 s{sKS+n}, s11, 10"); sx(f"s_lshl_b32 s{sWR+n}, s11, 14")
    if n < 6: sx("s_add_u32 s10, s10, 1")
sx(f"s_mov_b32 s{sCNT}, 0")
v(f"v_lshl_add_u32 v{vDMA}, v19, 10, v18")
v(f"s_and_b32 s4, s{sI}, 7"); v("s_lshl_b32 s4, s4, 7"); v(f"s_lshl_b32 s5, s{sB}, 16"); v("s_add_u32 s4, s4, s5")
v(f"v_add_u32 v{vDMA}, s4, v{vDMA}"); v(f"v_add_u32 v113, 7168, v{vDMA}")
for r in range(4): v(f"v_mov_b32 v{64+r}, 0")
v("v_cmp_gt_u32 vcc, 30, v1"); v("s_lshr_b32 s7, s6, 1"); v("s_and_b32 s5, s6, 1")
v(f"s_mul_i32 s4, s7, {USZ}"); v(f"s_add_u32 s4, s4, {UB}")
v("v_add_u32 v24, s4, v2"); v(f"v_mov_b32 v25, {STAT1+128}"); v("v_cndmask_b32 v24, v25, v24, vcc")
v("ds_write_b128 v24, v[64:67]")
v("v_cmp_gt_u32 vcc, 4, v1")
v(f"s_mul_i32 s{sT0}, s6, {KCOPY}"); v(f"s_add_u32 s{sT0}, s{sT0}, {KB+4096}")
v(f"v_add_u32 v24, s{sT0}, v2"); v("v_cndmask_b32 v24, v25, v24, vcc")
v("ds_write_b128 v24, v[64:67]")
v("v_lshrrev_b32 v29, 5, v0"); v("v_lshlrev_b32 v29, 3, v29"); v(f"v_add_u32 v29, {STAT1}, v29")
v("v_and_b32 v30, 16, v0"); v("v_cmp_ne_u32 vcc, 0, v30"); v("v_lshlrev_b32 v28, 4, v15"); v("v_lshl_add_u32 v14, v14, 13, v28")
v("v_cndmask_b32 v17, v25, v29, vcc")
v("v_lshlrev_b32 v15, 5, v15"); v(f"v_add_u32 v15, {STAT1}, v15")
v("v_lshlrev_b32 v16, 3, v0"); v(f"v_add_u32 v16, {UB+480}, v16")
v(f"v_mov_b32 v{vMASK}, {hex(MASK)}"); v(f"v_mov_b32 v{vONES}, 0x3f803f80"); v("v_mov_b32 v52, 0"); v("v_mov_b32 v53, 0")
vB, vA = 10, 24
v("v_and_b32 v18, 15, v1"); v("v_lshrrev_b32 v19, 4, v1")
v(f"s_lshl_b32 s{sT0}, s5, 8"); v(f"s_sub_u32 s4, s4, s{sT0}"); v("s_add_u32 s4, s4, 256")
v("v_lshlrev_b32 v28, 4, v19")
v("v_lshl_add_u32 v10, v18, 5, v28"); v("v_add_u32 v10, s4, v10")
v(f"s_mul_i32 s4, s7, {KSZ}"); v(f"s_add_u32 s{sT1}, s4, {KB}")
v(f"s_sub_u32 s4, s{sT1}, s{sT0}"); v(f"s_add_u32 s4, s4, {2*(2031-256*7-96)}")
v("v_lshlrev_b32 v29, 1, v18"); v("v_sub_u32 v27, v28, v29"); v("v_add_u32 v27, s4, v27")
v("v_and_b32 v29, 1, v18"); v("v_xor_b32 v29, 1, v29"); v(f"v_mul_u32_u24 v29, {KCOPY+2}, v29"); v("v_add_u32 v27, v27, v29")
for b2 in range(3): v(f"v_add_u32 v{24+b2}, {1024*(3-b2)}, v27")
v("v_lshl_add_u32 v29, v19, 2, v18"); v("v_and_b32 v29, 15, v29"); v("v_lshlrev_b32 v29, 4, v29"); v("v_lshl_add_u32 v109, v19, 8, v29")
v("s_lshl_b32 s4, s6, 13"); v(f"s_add_u32 s4, s4, {RED}"); v("v_add_u32 v109, s4, v109")
v("v_and_b32 v30, 3, v1"); v("v_lshrrev_b32 v29, 2, v1")
v("v_lshl_add_u32 v29, v30, 2, v29"); v("v_and_b32 v29, 15, v29"); v("v_lshlrev_b32 v29, 4, v29"); v("v_lshl_add_u32 v110, v30, 8, v29")
v("s_lshl_b32 s4, s6, 11"); v(f"s_add_u32 s4, s4, {RED}"); v("v_add_u32 v110, s4, v110")
v("v_and_b32 v29, 7, v1"); v("v_lshlrev_b32 v30, 3, v29"); v(f"v_add_u32 v112, {RED}, v30"); v("v_add_u32 v111, s4, v30")
v("v_and_b32 v30, 1, v19"); v("v_lshl_add_u32 v111, v30, 2, v111")
v("v_lshrrev_b32 v30, 3, v1"); v("s_lshl_b32 s4, s6, 4"); v("v_add_u32 v30, s4, v30")
v("v_lshlrev_b32 v54, 4, v29"); v(f"v_lshl_add_u32 v{vZS}, v30, 9, v54")
v("v_lshlrev_b32 v54, 2, v29"); v("v_lshl_add_u32 v107, v30, 15, v54")
v("v_xor_b32 v54, v30, v29"); v("v_lshlrev_b32 v54, 4, v54"); v("v_lshrrev_b32 v55, 1, v29"); v("v_lshl_add_u32 v54, v55, 14, v54")
v("v_and_b32 v55, 1, v29"); v("v_lshl_add_u32 v108, v55, 10, v54")
v("v_lshrrev_b32 v54, 5, v0"); v("v_and_b32 v55, 31, v0"); v("v_xor_b32 v55, v55, v54"); v("v_lshlrev_b32 v55, 4, v55")
v("v_and_b32 v54, 1, v54"); v("v_lshl_add_u32 v55, v54, 10, v55"); v(f"v_add_u32 v114, s{sM0}, v55")
v(f"s_mul_i32 s4, s7, {TCH}"); v(f"s_add_u32 s4, s4, {TB}")
v("v_and_b32 v29, 127, v0"); v("v_lshl_add_u32 v96, v29, 2, s4")
for r in range(1, 8): v(f"v_add_u32 v{96+r}, {r*TROW}, v96")
v("v_add_u32 v28, s4, v28")
v(f"v_mov_b32 v30, {TROW}")
v("v_mad_u32_u24 v104, v18, v30, v28")
v("v_lshlrev_b32 v29, 5, v18"); v(f"v_sub_u32 v29, s{sT1}, v29")
v("v_cmp_lt_u32 vcc, 7, v18"); v("v_and_b32 v55, 7, v18"); v("v_or_b32 v55, 0x0c0c0c00, v55")
k = 0
for x in VS:
    (ds if x.startswith("ds_") else e)(x)
    if x.startswith("v_") and k < len(SSx): e(SSx[k]); k += 1
for x in SSx[k:]: e(x)
def rows(dst, tab):
    w = [tab[4*i] | tab[4*i+1] << 8 | tab[4*i+2] << 16 | tab[4*i+3] << 24 for i in range(4)]
    e(f"s_mov_b32 s10, {hex(w[1])}"); e(f"v_mov_b32 v54, {hex(w[0])}"); e(f"s_mov_b32 s11, {hex(w[3])}"); e(f"v_mov_b32 v{dst}, {hex(w[2])}")
    e("v_perm_b32 v54, s10, v54, v55"); e(f"v_perm_b32 v{dst}, s11, v{dst}, v55"); e(f"v_cndmask_b32 v54, v54, v{dst}, vcc")
    e(f"v_mad_u32_u24 v{dst}, v54, v30, v28")
r1row = lambda ii: 51 + ii + (3 if ii >= 5 else 0)
e("s_cmp_eq_u32 s5, 0"); e("s_cbranch_scc0 L_rows1")
e(f"v_add_u32 v105, {16*TROW}, v104")
rows(106, [r1row(2*q+i) if i < 3 else (20 + 4*q if q < 3 else 63) for q in range(4) for i in range(4)])
e("v_lshlrev_b32 v54, 3, v19"); e("v_sub_u32 v12, v29, v54"); e(f"v_add_u32 v12, {2*(2044-256)}, v12")
lab("L_rows2")
def rows1():
    lab("L_rows1")
    rows(105, [32 + 8*(q>>1) + 2*(q&1) + min(i, 2) for q in range(4) for i in range(4)])
    rows(106, [(37, 45, 48, 56)[q] + min(i, 2) for q in range(4) for i in range(4)])
    e("v_lshrrev_b32 v54, 1, v19"); e("v_lshlrev_b32 v54, 9, v54"); e("v_and_b32 v55, 1, v19"); e("v_lshl_add_u32 v54, v55, 4, v54")
    e("v_sub_u32 v12, v29, v54"); e(f"v_add_u32 v12, {2*(2040-512)}, v12")
    e("v_lshlrev_b32 v54, 9, v19"); e("v_sub_u32 v13, v29, v54"); e(f"v_add_u32 v13, {2*(2032-1024)}, v13")
    e("s_branch L_rows2")
tail.append(rows1)

for f in dma_w1(LA, NW0, NW1, "w1a"): f()
stamp("setup")
wlg0()
st_pool[:] = [14, 16, 18, 20]
e("s_lshl_b32 s4, s3, 5")
for k in range(2):
    for i in range(4): e(f"s_add_u32 s{sO8+4*k+i}, s4, {OB2 + (32*k+i)*8192}")
e(f"s_bfe_u32 s4, s{sE+1}, 0x2001d"); e("s_cmp_eq_u32 s4, 1")
e(f"s_mov_b32 s4, 0x20002000"); e(f"s_cselect_b32 s{sHT}, 0x40004000, s4")
e(f"s_mov_b32 s4, {hx(2.0**32)}"); e(f"s_cselect_b32 s{sLAM}, {hx(2.0**-32)}, s4")
e(f"s_mov_b32 s4, {hx(C0*2.0**-32)}"); e(f"s_cselect_b32 s{sCQ}, {hx(C0*2.0**32)}, s4")
e(f"s_mov_b32 s4, {hx(2.0**32/SS)}"); e(f"s_cselect_b32 s{sFIN}, {hx(2.0**-32/SS)}, s4")
e(f"s_add_u32 s{sE}, s{sE}, 1"); e(f"s_mov_b32 s{sE+1}, s{sE}")
for j, r in enumerate((4, 7, 10, 13)):
    e(f"s_lshr_b64 s[4:5], s[{sE}:{sE+1}], {r}"); e(f"s_and_b32 s{sTAG+j}, s4, {hex(MASK)}")
e(f"s_cmp_eq_u32 s{sTAG}, s{sTAG+1}"); e("s_cselect_b32 s4, 0x1000, 0"); e(f"s_xor_b32 s{sTAG+1}, s{sTAG+1}, s4")
e("s_cmp_eq_u32 s7, 0"); e("s_cselect_b32 s4, 16, 0")
e(f"s_lshl_b32 s{sLDT}, s{sLDT}, s4"); e(f"s_and_b32 s{sLDT}, s{sLDT}, 0xffff0000")
e(f"s_lshl_b32 s{sDSK}, s{sDSK}, s4"); e(f"s_and_b32 s{sDSK}, s{sDSK}, 0xffff0000")
wvm("xs")
stamp("x_in")
for i in range(8):
    e(f"v_dot2c_f32_bf16 v52, v{32+i}, v{vONES}"); e(f"v_dot2c_f32_bf16 v53, v{32+i}, v{32+i}")
unp = []
for d in range(8): unp += [f"v_lshlrev_b32 v{64+2*d}, 16, v{40+d}", f"v_and_b32 v{65+2*d}, 0xffff0000, v{40+d}"]
wvm("xg")
for t in unp[:2]: e(t)
k = 2
for d in ("quad_perm:[1,0,3,2]", "quad_perm:[2,3,0,1]", "row_half_mirror", "row_mirror", "row_bcast:15 row_mask:0xa"):
    e(f"v_add_f32 v52, v52, v52 {d}"); e(f"v_add_f32 v53, v53, v53 {d}")
    if k < 6: e(unp[k]); k += 1
e(f"v_mul_f32 v52, {hx(1/512)}, v52")
e(f"v_mul_f32 v53, {hx(1/512)}, v53")
e("v_fma_f32 v53, -v52, v52, v53")
e("v_max_f32 v53, 0, v53")
e(f"v_add_f32 v53, {hx(EPS)}, v53")
e("v_rsq_f32 v53, v53")
e(unp[6])
e(f"v_mul_f32 v54, {hx(1/16)}, v53")
e(f"v_mul_f32 v52, v52, v54"); e(f"v_sub_f32 v55, {hx(C0)}, v52")
ds("ds_write_b64 v17, v[54:55]")
for t in unp[7:]: e(t)
e("s_waitcnt vmcnt(%d) lgkmcnt(0)" % cnt(vmq, "clr")); flush_st()
e("s_barrier")
ds("ds_read_b128 v[84:87], v15", "st"); ds("ds_read_b128 v[88:91], v15 offset:16", "st")
e(f"s_mov_b32 s4, {hx(-C0)}")
e(f"v_mov_b32 v80, {hx(LOG2E)}")
e(f"v_mul_f32 v81, s{sLDT}, v80"); e("v_mul_f32 v82, v48, v80")
e("v_exp_f32 v81, v81"); e("v_exp_f32 v82, v82")
e("v_and_b32 v30, 127, v0")
e("v_cvt_pk_bf16_f32 v81, v81, v82")
e("v_cmp_eq_u32 vcc, 0, v30")
wlg0()
for d in range(8):
    i = d >> 1
    e(f"v_pk_fma_f32 {V(64+2*d,2)}, {V(64+2*d,2)}, {V(84+2*i,2)}, {V(84+2*i,2)} op_sel:[0,0,1] op_sel_hi:[1,0,1]")
for par in range(2):
    for i in range(4): e(f"v_pk_add_f32 {V(64+2*(2*i+par),2)}, {V(64+2*(2*i+par),2)}, s[4:5] op_sel_hi:[1,0]")
    for i in range(4): e(f"v_cvt_pk_bf16_f32 v{40+4*par+i}, v{64+2*(2*i+par)}, v{65+2*(2*i+par)}")
    for i in range(4): e(f"v_bfi_b32 v{40+4*par+i}, v{vMASK}, s{sTAG+i}, v{40+4*par+i}")
    vm(f"buffer_store_dwordx4 {V(40+4*par,4)}, v3, {S(RWS,4)}, s{sOB1} offen offset:{1024*par} sc1", "ob1")
stamp("u_out")

for sr in (sZ0, sZ1): vm(f"buffer_store_dwordx4 v[60:63], v{vZS}, {S(RWS,4)}, s{sr} offen sc1", "clr2")
ds("ds_write_b128 v114, v[32:35] offset:12288"); ds("ds_write_b128 v114, v[36:39] offset:12800")
kbg = dma_w1(LA, NW1, NW2, "w1a")
e("v_and_b32 v82, 0xffff0000, v81"); e("v_lshlrev_b32 v81, 16, v81")
e("v_mul_f32 v82, v82, v81"); e("v_mul_f32 v83, v49, v81")
e(f"v_mul_f32 v82, {hx(-LOG2E)}, v82"); e("v_mul_f32 v83, 0.15915494, v83")
e(f"v_mul_f32 v84, {hx(32.0)}, v81")
e(f"v_mov_b32 v30, {hx(16.0)}"); e(f"v_mul_f32 v30, s{sDSK}, v30"); e("v_cndmask_b32 v30, 0, v30, vcc")
ZP = lambda p: 128 + 2 * p
ZT = lambda t: 160 + 2 * t
CE, CO, T0, T1 = 176, 178, 188, 190
e(f"v_pk_mul_f32 {V(CE,2)}, v[50:51], v[84:85] op_sel_hi:[1,0]")
anch = ((1, ZP(1)), (16, ZP(16)), (256, ZT(1)))
for k, (p, d) in enumerate(anch):
    if p == 1:
        e(f"v_exp_f32 v{86+k}, v82"); e(f"v_fract_f32 v{90+k}, v83")
    else:
        e(f"v_mul_f32 v{86+k}, {hx(p)}, v82"); e(f"v_mul_f32 v{90+k}, {hx(p)}, v83")
        e(f"v_exp_f32 v{86+k}, v{86+k}"); e(f"v_fract_f32 v{90+k}, v{90+k}")
for k, (p, d) in enumerate(anch):
    e(f"v_cos_f32 v{d}, v{90+k}"); e(f"v_sin_f32 v{d+1}, v{90+k}")
e(f"v_mov_b32 v{ZP(0)}, 1.0"); e(f"v_mov_b32 v{ZP(0)+1}, 0")
for k, (p, d) in enumerate(anch):
    s0 = 86 + k
    e(f"v_pk_mul_f32 {V(d,2)}, {V(d,2)}, {V(s0 & ~1,2)} op_sel:[0,{s0&1}] op_sel_hi:[1,{s0&1}]")
def cmuls(lst):
    for d, a, b in lst: e(f"v_pk_mul_f32 {V(d,2)}, {V(a,2)}, {V(b,2)} op_sel_hi:[1,0]")
    for d, a, b in lst: e(f"v_pk_fma_f32 {V(d,2)}, {V(a,2)}, {V(b,2)}, {V(d,2)} op_sel:[1,1,0] op_sel_hi:[0,1,1] neg_lo:[1,0,0]")
rot = [0]
def h1_loads():
    vm(f"buffer_load_dwordx4 v[32:35], v14, {S(RWS,4)}, s{sG1a} offen sc1", "h1")
    vm(f"buffer_load_dwordx4 v[36:39], v14, {S(RWS,4)}, s{sG1b} offen sc1", "h1")
H1AT = OPT.get("h1at", 32)
def put(r, jj, a, b, neg=False):
    t = 92 + 2 * (rot[0] % 2); rot[0] += 1
    n = "-" if neg else ""
    e(f"v_cvt_pk_bf16_f32 v{t}, v{a}, {n}v{a+1}"); e(f"v_cvt_pk_bf16_f32 v{t+1}, v{b}, {n}v{b+1}")
    ds(f"ds_write2st64_b32 v{96+r}, v{t}, v{t+1} offset0:{17*jj} offset1:{17*(jj+1)}")
    KB_N = OPT.get("kbgn", 16)
    if rot[0] <= KB_N:
        for f in kbg[(rot[0]-1) * len(kbg) // KB_N: rot[0] * len(kbg) // KB_N]: f()
    if rot[0] == H1AT: h1_loads()
cmuls([(ZP(2), ZP(1), ZP(1)), (T0, ZP(16), ZP(16)), (ZT(2), ZT(1), ZT(1))])
cmuls([(ZP(3), ZP(2), ZP(1)), (ZP(4), ZP(2), ZP(2)), (ZT(3), ZT(2), ZT(1)), (ZT(4), ZT(2), ZT(2)), (T1, T0, T0)])
put(0, 4, ZT(2), ZT(3))
cmuls([(T0, T1, T1), (ZP(8), ZP(4), ZP(4))])
put(0, 2, ZP(0), ZP(8))
cmuls([(CO, CE, T0), (ZT(5), ZT(4), ZT(1))])
put(0, 0, CE, CO, True)
cur = (CE, CO)
def left(r):
    global cur
    nx = (184, 186) if cur[0] == CE else (CE, CO)
    cmuls([(nx[0], cur[0], ZP(16)), (nx[1], cur[1], ZP(16))]); put(r, 0, nx[0], nx[1], True); cur = nx
left(1)
cmuls([(ZT(6), ZT(4), ZT(2)), (ZT(7), ZT(4), ZT(3))])
put(5, 4, ZT(4), ZT(5))
cmuls([(ZP(5), ZP(4), ZP(1)), (ZP(6), ZP(4), ZP(2))])
put(0, 6, ZT(6), ZT(7))
for r in range(2, 8): left(r)
cmuls([(ZP(7), ZP(4), ZP(3))])
for r in range(1, 8): cmuls([(ZP(8+r), ZP(8), ZP(r))]); put(r, 2, ZP(r), ZP(8+r))
cmuls([(T1, ZT(1), ZP(10))]); put(3, 6, ZT(1), T1)
for i in range(1, 4): cmuls([(T0, ZT(1), ZP(2*i)), (T1, ZT(1), ZP(10+2*i))]); put(3+i, 6, T0, T1)
cmuls([(T0, ZT(1), ZP(8))]); put(7, 6, T0, ZP(16))
for i in range(1, 5): cmuls([(T0, ZT(2), ZP(4*i)), (T1, ZT(3), ZP(4*i))]); put(i, 4, T0, T1)
for i in range(1, 3): cmuls([(T0, ZT(4), ZP(8*i)), (T1, ZT(5), ZP(8*i))]); put(5+i, 4, T0, T1)
for i in range(1, 3): cmuls([(T0, ZT(6), ZP(8*i)), (T1, ZT(7), ZP(8*i))]); put(i, 6, T0, T1)
assert rot[0] == 32
wlg0(); e("s_barrier")
stamp("tables")
def rdK(ks):
    if ks < 8:
        ds(f"ds_read_b128 {V(128+12*ks,4)}, v104 offset:{64*ks}")
        for t in range(2): ds(f"ds_read_b128 {V(132+12*ks+4*t,4)}, v{105+t} offset:{64*ks}", ("ka", ks))
ds("ds_read_b128 v[120:123], v108 offset:12288"); ds("ds_read_b128 v[124:127], v108 offset:12416")
for ks in range(4): rdK(ks)
e("s_bitcmp1_b32 s6, 0")
for ks in range(8):
    wlg(("ka", ks))
    for t in range(2): e(f"v_mfma_f32_16x16x32_bf16 {V(64+4*t,4)}, {V(132+12*ks+4*t,4)}, {V(128+12*ks,4)}, {V(64+4*t,4) if ks else 0}")
    rdK(ks + 4)
e("s_cbranch_scc1 L_kw1")
cv = lambda d, lo, hi: e(f"v_cvt_pk_bf16_f32 v{d}, v{lo}, v{hi}")
e("v_add_f32 v64, v64, v30")
cv(40, 67, 66); cv(41, 65, 64); ds("ds_write_b64 v12, v[40:41] offset:512")
cv(42, 71, 67); cv(43, 66, 65); ds(f"ds_write_b64 v12, v[42:43] offset:{512+KCOPY}")
cv(44, 70, 69); cv(45, 68, 68); ds("ds_write_b64 v12, v[44:45]")
cv(46, 70, 70); cv(47, 69, 68); ds(f"ds_write_b64 v12, v[46:47] offset:{KCOPY}")
e("s_mov_b64 exec, 1"); ds(f"ds_write_b16_d16_hi v12, v41 offset:{512+KCOPY+8}"); e("s_mov_b64 exec, -1")
lab("L_kw2")
def kw1():
    lab("L_kw1")
    e("s_nop 5")
    cv(40, 66, 66); cv(41, 65, 65); cv(42, 65, 64); cv(43, 64, 64); e("ds_write_b128 v12, v[40:43]")
    cv(44, 66, 66); cv(45, 66, 65); cv(46, 65, 65); cv(47, 64, 64); e(f"ds_write_b128 v12, v[44:47] offset:{KCOPY}")
    cv(72, 70, 70); cv(73, 70, 70); cv(74, 69, 69); cv(75, 69, 69); e("ds_write_b128 v13, v[72:75]")
    cv(76, 69, 69); cv(77, 69, 68); cv(78, 68, 68); cv(79, 68, 68); e("ds_write_b128 v13, v[76:79] offset:16")
    cv(74, 70, 69); e(f"ds_write_b128 v13, v[72:75] offset:{KCOPY}")
    cv(77, 69, 69); e(f"ds_write_b128 v13, v[76:79] offset:{KCOPY+16}")
    e("s_branch L_kw2")
tail.append(kw1)
stamp("K_out")

wvm("h1")
lab("L_h1chk")
for d in range(8): e(f"v_xor_b32 v{32+d}, s{sTAG+(d&3)}, v{32+d}")
e("v_or3_b32 v40, v32, v33, v34"); e("v_or3_b32 v41, v35, v36, v37"); e("v_or3_b32 v40, v40, v38, v39")
e(f"v_bitop3_b32 v40, v40, v41, v{vMASK} bitop3:0xa8")
e("v_cmp_ne_u32 vcc, 0, v40")
e("s_mov_b32 s4, 0x30003000")
e("s_cbranch_vccnz L_h1retry")
lab("L_h1ok")
def retry(name, loads, nlater=0, chk=None):
    def f():
        lab(f"L_{name}retry")
        e(f"s_add_u32 s{sCNT}, s{sCNT}, 1"); e(f"s_cmp_gt_u32 s{sCNT}, {SPIN}"); e(f"s_cbranch_scc1 L_{name}ok")
        loads()
        e(f"s_waitcnt vmcnt({nlater})")
        if chk is None: e(f"s_branch L_{name}chk")
        else:
            for x in chk: e(x)
            e(f"s_branch L_{name}ok")
    tail.append(f)
retry("h1", h1_loads)
for g in range(2):
    b = 32 + 4 * g; o = 40 + 4 * g
    e(f"v_perm_b32 v{o}, v{b+1}, v{b}, s{sPERMLO}"); e(f"v_perm_b32 v{o+1}, v{b+3}, v{b+2}, s{sPERMLO}")
    e(f"v_perm_b32 v{o+2}, v{b+1}, v{b}, s{sPERMHI}"); e(f"v_perm_b32 v{o+3}, v{b+3}, v{b+2}, s{sPERMHI}")
    for i in range(4): e(f"v_or_b32 v{o+i}, s4, v{o+i}")
    ds(f"ds_write_b64 v16, {V(o,2)} offset:{2048*g}"); ds(f"ds_write_b64 v16, {V(o+2,2)} offset:{2048*g+USZ}")
count("h1")
wlg0(); e("s_barrier")
stamp("u_in")
FA = lambda st, d1: 128 + 64 * (st & 1) + 4 * d1
FB = lambda st, sg: 160 + 64 * (st & 1) + 4 * sg
def rdCA(st, d1, hf):
    o = 128 * (1 - (d1 & 1)) + 16 * (3 - st) + 2 * hf
    ds(f"ds_read2_b32 {V(FA(st,d1)+2*hf,2)}, v{vA+(d1>>1)} offset0:{o} offset1:{o+1}", ("c", st, d1))
def rdCB(st, sg): ds(f"ds_read_b128 {V(FB(st,sg),4)}, v{vB} offset:{512*sg+64*(3-st)}", ("c", st, sg))
def rdC(st): return [f for t in range(8) for f in (lambda t=t: rdCA(st, t, 0), lambda t=t: rdCA(st, t, 1), lambda t=t: rdCB(st, t))]
first = rdC(0)
for f in first[:12]: f()

vDMA1 = [113]
def dma_w2(ns, lbase, tag, sbase=None):
    out = []
    for x, n in enumerate(ns):
        def f0(x=x, n=n):
            if x == 0: e(f"s_add_u32 m0, s{sbase or sM0}, {lbase}")
            vm(f"buffer_load_dwordx4 v{vDMA}, {S(RW2,4)}, s{sWR+n} offen lds", tag)
        def f1(x=x, n=n):
            vm(f"buffer_load_dwordx4 v{vDMA1[0]}, {S(RW2,4)}, s{sWR+n} offen offset:1024 lds", tag)
            if x + 1 < len(ns): e("s_add_u32 m0, m0, 2048")
        out += [f0, f1]
    return out
W2R = lambda r, n, ct: 56 * r + 8 * n + 4 * ct
def tr_w2(r, ns, vb0, off=0):
    out = []
    for x, n in enumerate(ns):
        for ct in range(2):
            for hf in range(2):
                out.append(lambda x=x, n=n, ct=ct, hf=hf: ds(f"ds_read_b64_tr_b16 {A(W2R(r,n,ct)+2*hf,2)}, v{vb0+ct} offset:{off+2048*x+1024*hf}", ("w2", r)))
    return out
e("s_cmp_lg_u32 s2, 0"); e("s_cbranch_scc1 L_noepoch")
e(f"v_mov_b32 v18, s{sE}"); e(f"v_mov_b32 v19, s{sHT}"); e("v_mov_b32 v28, 0")
e(f"buffer_store_dwordx2 v[18:19], v28, {S(RWS,4)}, 0 offen sc1")
lab("L_noepoch")
bg = dma_w1(LA, NW2, 16, "w1a") + dma_w2(range(7), LB, "w2r0")

ACC = lambda t: 64 + 4 * t
nbg = len(bg); BGS = OPT.get("bgs", 3)
for st in range(4):
    seq = [(t, d1, t - d1) for t in range(8) for d1 in range(t + 1)]
    main = []
    for n, (t, d1, sg) in enumerate(seq):
        def f(t=t, d1=d1, sg=sg):
            if st == 0 and d1 == 0: wlg(("c", 0, t))
            e(f"v_mfma_f32_16x16x32_bf16 {V(ACC(t),4)}, {V(FA(st,d1),4)}, {V(FB(st,sg),4)}, {0 if (st == 0 and d1 == 0) else V(ACC(t),4)}")
        main.append(f)
    if st < 3:
        part = bg[st * nbg // BGS:(st + 1) * nbg // BGS]
        if st == 0:
            weave(main[:6], first[12:]); weave(main[6:], merge(rdC(1), part), 0, 28)
        else:
            weave(main, merge(rdC(st + 1), part), 0, 33)
        wlg0()
        if st == 2: e("s_barrier")
    else:
        done = {t * (t + 1) // 2 + t: t for t in range(8)}
        pend = []
        for n, f in enumerate(main):
            f()
            if n in done: pend.append((n, done[n]))
            if pend and n - pend[0][0] >= 8:
                t = pend.pop(0)[1]; ds(f"ds_write_b128 v109, {V(ACC(t),4)} offset:{1024*t}")
        for _, t in pend: ds(f"ds_write_b128 v109, {V(ACC(t),4)} offset:{1024*t}")
stamp("conv")
wlg0()
e("s_barrier")
for k in range(2):
    for src in range(4): ds(f"ds_read_b128 {V(64+16*k+4*src,4)}, v110 offset:{8192*src+1024*k}", ("red", k))
for k in range(2):
    b = 64 + 16 * k
    wlg(("red", k))
    for c in range(2):
        for hf in range(2): e(f"v_pk_add_f32 {V(b+8*c+2*hf,2)}, {V(b+8*c+2*hf,2)}, {V(b+8*c+4+2*hf,2)}")
    for i in range(4): e(f"v_cvt_pk_bf16_f32 v{40+4*k+i}, v{b+i}, v{b+8+i}")
    vm(f"buffer_store_dwordx4 {V(40+4*k,4)}, v3, {S(RWS,4)}, s{sOB2} offen offset:{1024*k} sc1", "ob2")
stamp("a_out")

e("v_bfe_u32 v18, v1, 2, 2"); e("v_lshlrev_b32 v18, 7, v18"); e("v_bfe_u32 v19, v1, 4, 1"); e("v_lshl_add_u32 v18, v19, 5, v18")
e("v_and_b32 v19, 3, v1"); e("v_lshl_add_u32 v18, v19, 3, v18"); e("v_bfe_u32 v19, v1, 3, 1"); e("v_lshl_add_u32 v18, v19, 6, v18")
e("v_lshrrev_b32 v19, 5, v1")
vT2 = 28
e("v_lshl_add_u32 v28, v19, 9, v18"); e(f"s_add_u32 s4, s{sM0}, {LB}"); e("v_add_u32 v28, s4, v28"); e("v_xor_b32 v29, 64, v28")
wvm("w2r0")
xun = []
for d in range(8): xun += [f"v_lshlrev_b32 v{128+2*d}, 16, v{120+d}", f"v_and_b32 v{129+2*d}, 0xffff0000, v{120+d}"]
xun += [f"v_lshl_add_u32 v{vTR0}, v19, 10, v18", f"v_xor_b32 v{vTR1}, 64, v{vTR0}",
        f"v_xor_b32 v{vDMA}, 0x10000, v{vDMA}", "v_xor_b32 v30, 0x10000, v113", f"s_mov_b32 s{sCNT}, 0"]
xun += [f"s_lshl_b32 s4, s{sB}, 8", "s_sub_u32 s4, 128, s4"] + [f"v_add_u32 v{20+i}, s4, v{20+i}" for i in range(4)]
vDMA1[0] = 30
for f in merge(tr_w2(0, range(7), vT2), [lambda x=x: e(x) for x in xun]): f()
wlg0()
stamp("r0")
for f in dma_w2(range(7), LB, "w2r2"): f()
def h2_loads():
    for d in range(8): vm(f"buffer_load_dword v{32+d}, v107, {S(RWS,4)}, s{sO8+d} offen sc1", "h2")
wvm("ob2")
h2_loads()
stamp("poll2")
wvm("w2r2")
for f in tr_w2(2, range(7), vT2): f()
wvm("h2")
lab("L_h2chk")
e("v_max3_u32 v40, v32, v33, v34"); e("v_max3_u32 v41, v35, v36, v37"); e("v_max3_u32 v40, v40, v38, v39"); e("v_max_u32 v40, v40, v41")
e("v_cmp_eq_u32 vcc, -1, v40")
e("s_cbranch_vccnz L_h2retry")
lab("L_h2ok")
retry("h2", h2_loads)
count("h2")
stamp("a_in")
for d in range(8):
    e(f"v_lshlrev_b32 v{64+2*d}, 16, v{32+d}"); e(f"v_and_b32 v{65+2*d}, 0xffff0000, v{32+d}")
for d in range(8): e(f"v_pk_add_f32 {V(64+2*d,2)}, {V(64+2*d,2)}, {V(128+2*d,2)}")
e("v_mov_b32 v52, 0"); e("v_mov_b32 v53, 0")
for d in range(8): e(f"v_cvt_pk_bf16_f32 v{40+d}, v{64+2*d}, v{65+2*d}")
for d in range(8):
    e(f"v_dot2c_f32_bf16 v52, v{40+d}, v{vONES}"); e(f"v_dot2c_f32_bf16 v53, v{40+d}, v{40+d}")
for t in unp[:3]: e(t)
e("v_add_f32 v52, v52, v52 row_ror:8"); e("v_add_f32 v53, v53, v53 row_ror:8")
for t in unp[3:5]: e(t)
e("v_permlane16_swap_b32 v52, v53")
e("v_add_f32 v52, v52, v53")
e("v_mov_b32 v53, v52")
for t in unp[5:7]: e(t)
e("v_permlane32_swap_b32 v52, v53")
e("v_add_f32 v52, v52, v53")
ds("ds_write_b32 v111, v52")
for t in unp[7:12]: e(t)
wlg0(); e("s_barrier")
ds("ds_read2st64_b64 v[32:35], v112 offset0:0 offset1:4"); ds("ds_read2st64_b64 v[36:39], v112 offset0:8 offset1:12")
e(f"s_mov_b32 s4, {hx(1/512)}")
for t in unp[12:]: e(t)
wlg0()
e("v_pk_add_f32 v[32:33], v[32:33], v[34:35]"); e("v_pk_add_f32 v[36:37], v[36:37], v[38:39]"); e("v_pk_add_f32 v[32:33], v[32:33], v[36:37]")
e("v_pk_mul_f32 v[32:33], v[32:33], s[4:5] op_sel_hi:[1,0]")
e("v_fma_f32 v33, -v32, v32, v33"); e("v_max_f32 v33, 0, v33")
e(f"v_add_f32 v34, {hx(EPS)}, v33"); e("v_rsq_f32 v34, v34")
e("v_mul_f32 v33, v33, v34"); e(f"v_fmaak_f32 v33, v33, v34, {hx(EPS)}"); e("v_rsq_f32 v33, v33")
e(f"v_mul_f32 v34, {hx(SS)}, v34"); e("v_mul_f32 v34, v34, v33"); e("v_mul_f32 v35, -v32, v34")
for k in range(2):
    for d in range(4 * k, 4 * k + 4): e(f"v_pk_fma_f32 {V(64+2*d,2)}, {V(64+2*d,2)}, v[34:35], v[34:35] op_sel:[0,0,1] op_sel_hi:[1,0,1]")
    for d in range(4 * k, 4 * k + 4): e(f"v_cvt_pk_bf16_f32 v{48+d}, v{64+2*d}, v{65+2*d}")
    vm(f"buffer_store_dwordx4 {V(48+4*k,4)}, v{vZS}, {S(RWS,4)}, s{sZ0+k} offen sc1", "zst")
stamp("z_out")

adr = []
def ad(x): adr.append(lambda: e(x))
ad(f"s_lshl_b32 s4, s{sG}, 2"); ad("s_add_u32 s4, s4, s6"); ad("s_lshl_b32 s4, s4, 15"); ad(f"s_add_u32 s4, s4, {ZB}")
ad(f"s_and_b32 s5, s{sI}, {7 if ROT else 0}"); ad("s_lshl_b32 s5, s5, 12")
for c in range(8):
    ad(f"s_add_u32 s{sO8+c}, s4, s5")
    if c < 7: ad("s_add_u32 s5, s5, 4096"); ad("s_and_b32 s5, s5, 0x7fff")
ad(f"v_xor_b32 v{vDMA}, 0x18000, v{vDMA}"); ad("v_xor_b32 v30, 0x18000, v30")
ad(f"v_subrev_u32 v28, {LB}, v28"); ad(f"v_subrev_u32 v29, {LB}, v29")
ad(f"s_lshl_b32 s4, s{sG}, 2"); ad(f"s_lshl_b32 s5, s{sTH}, 1"); ad("s_add_u32 s7, s4, s5")
ad("s_mul_i32 s4, s7, 114688"); ad(f"s_lshl_b32 s5, s{sB}, 12"); ad("s_add_u32 s4, s4, s5"); ad(f"s_add_u32 s4, s4, {HB}")
ad(f"v_add_u32 v18, s4, v{vL16}"); ad("v_add_u32 v19, 114688, v18"); ad("v_xor_b32 v8, 4096, v18"); ad("v_add_u32 v9, 114688, v8")
ad("s_lshl_b32 s4, s7, 1"); ad("s_add_u32 s10, s4, s6")
ad(f"s_and_b32 s11, s{sI}, 7"); ad("s_lshl_b32 s4, s11, 18"); ad("s_lshl_b32 s5, s10, 6"); ad("s_add_u32 s4, s4, s5")
ad(f"s_add_u32 s12, s4, {OB2}"); ad(f"s_add_u32 s13, s4, {OB2 + 16*8192}")
ad("v_lshrrev_b32 v60, 2, v1"); ad("v_and_b32 v61, 3, v1"); ad("v_lshlrev_b32 v61, 4, v61"); ad("v_lshl_add_u32 v24, v60, 13, v61")
ad(f"s_add_u32 s4, s{sM0}, {LB+8192}")
ad("v_mul_u32_u24 v60, 80, v60"); ad("v_add3_u32 v25, v60, v61, s4")
ad("v_lshrrev_b32 v62, 3, v1"); ad("v_and_b32 v63, 7, v1")
ad("v_mul_u32_u24 v60, 320, v63"); ad("v_lshlrev_b32 v61, 2, v62"); ad("v_add3_u32 v26, v60, v61, s4")
ad("v_and_b32 v60, 31, v1"); ad("v_lshrrev_b32 v61, 5, v1"); ad("v_xor_b32 v61, v61, v63")
ad("v_lshlrev_b32 v61, 4, v61"); ad("v_lshl_add_u32 v10, v60, 8, v61"); ad(f"v_add_u32 v10, s{sM0}, v10")
for g in range(1, 4): ad(f"v_xor_b32 v{10+g}, {32*g}, v10")
ad("v_lshlrev_b32 v60, 1, v63"); ad("v_xor_b32 v60, v60, v62"); ad("v_lshlrev_b32 v60, 4, v60"); ad("v_lshl_add_u32 v14, v62, 8, v60")
ad("s_lshl_b32 s4, s6, 12"); ad("v_add_u32 v14, s4, v14"); ad("v_xor_b32 v15, 16, v14")
ad("s_lshl_b32 s4, s10, 14"); ad("s_lshl_b32 s5, s11, 7"); ad("s_add_u32 s4, s4, s5")
ad("v_lshlrev_b32 v60, 4, v63"); ad("v_lshl_add_u32 v16, v62, 10, v60"); ad("v_add_u32 v16, s4, v16"); ad("v_add_u32 v17, 8192, v16")
ad(f"s_lshl_b32 s{sT1}, s6, 13"); ad("v_mov_b32 v27, 0x60006000")
sh = bf16_rne(SS); sl = bf16_rne(SS - bf16_val(sh))
for r in range(4):
    ad(f"v_accvgpr_read_b32 v{32+4*r}, a{224+r}")
    for i in range(1, 4): ad(f"v_mov_b32 v{32+4*r+i}, 0")
    ad(f"v_lshl_or_b32 v{32+4*r}, v{32+4*r}, 16, v{32+4*r}")
ad("v_cmp_gt_u32 vcc, 32, v1"); ad(f"v_mov_b32 v48, {hex(sh | (sl << 16))}"); ad("v_mov_b32 v49, 0"); ad("v_mov_b32 v50, 0"); ad("v_mov_b32 v51, 0")
ad("v_cndmask_b32 v48, 0, v48, vcc")
ad(f"s_mov_b32 s{sCNT}, 0")
for f in merge(dma_w1(LB, 0, 16, "w1b"), adr): f()
stamp("w1b")
e(f"s_cmp_ge_u32 s{sI}, 14"); e("s_cbranch_scc1 L_idle")
HF = lambda q, tt: 128 + 8 * (q % 16) + 4 * tt
def h_load(q):
    r, n = divmod(q, 7)
    return [lambda tt=tt: vm(f"buffer_load_dwordx4 {V(HF(q,tt),4)}, v{(8 if r >> 1 else 18)+tt}, {S(RWS,4)}, s{sKS+n} offen offset:{2048*(r&1)} sc1", ("h", q >> 1)) for tt in range(2)]
def w2_mid():
    o = dma_w2(range(7), LA, "w2r1")
    o += [lambda: (e(f"v_xor_b32 v{vDMA}, 0x10000, v{vDMA}"), e("v_xor_b32 v30, 0x10000, v30"))]
    o += dma_w2([4], LA + 14336, "w2r3") + dma_w2(range(4), LC, "w2r3", sT1)
    if OPT.get("nomid"): o = []
    return [(1.5, f) for f in o]
def idle():
    lab("L_idle")
    e("s_barrier")
    for _, f in w2_mid(): f()
    lab("L_idle1")
    e(f"s_add_u32 s{sCNT}, s{sCNT}, 1"); e(f"s_cmp_gt_u32 s{sCNT}, {SPIN}"); e("s_cbranch_scc1 L_T")
    e(f"buffer_load_dword v32, v18, {S(RWS,4)}, s{sKS} offen offset:4 sc1")
    e("s_waitcnt vmcnt(0)")
    e(f"v_bitop3_b32 v32, v32, s{sHT}, v27 bitop3:0x28"); e("v_cmp_ne_u32 vcc, 0, v32"); e("s_cbranch_vccnz L_idle1")
    e(f"s_mov_b32 s{sCNT}, 0")
    e("s_branch L_T")
tail.append(idle)

ZF = lambda s: 128 + 4 * s
def z_chunk(c):
    if c >= 8: return []
    return [lambda i=i: vm(f"buffer_load_dwordx4 {V(ZF(4*c+i),4)}, v{vL16}, {S(RWS,4)}, s{sO8+c} offen offset:{1024*i} sc1", ("z", c)) for i in range(4)]
ZA = OPT.get("za", 3)
wvm("zst")
for c in range(ZA):
    for f in z_chunk(c): f()
stamp("zpoll")
G1 = lambda r: 64 + 16 * r
WF = lambda n: 224 + 4 * (n % 8)
wseq = [(s, r) for s in range(32) for r in (0, 1)] + [(s, 2) for s in range(32)] + [(s, 3) for s in range(32)]
def rdW(n):
    if n >= len(wseq): return
    s, r = wseq[n]
    if n == 64: e(f"v_add_u32 v{vTR0}, {LB}, v{vTR0}"); e(f"v_add_u32 v{vTR1}, {LB}, v{vTR1}")
    for hf in range(2): ds(f"ds_read_b64_tr_b16 {A(WF(n)+2*hf,2)}, v{vTR0+(r&1)} offset:{2048*s+512*hf}", ("w", n))
DEPTH = 6
for n in range(DEPTH): rdW(n)
for r in range(4): e(f"v_mfma_f32_32x32x16_bf16 {V(G1(r),16)}, {V(32+4*r,4)}, v[48:51], 0")
def g1_mfma(n):
    s, r = wseq[n]
    if n % 2 == 0: wlg(("w", n + 1))
    e(f"v_mfma_f32_32x32x16_bf16 {V(G1(r),16)}, {A(WF(n),4)}, {V(ZF(s),4)}, {V(G1(r),16)}")
    rdW(n + DEPTH)
def chk16(name, base):
    o = [f"v_max3_u32 v60, v{base}, v{base+1}, v{base+2}", f"v_max3_u32 v61, v{base+3}, v{base+4}, v{base+5}"]
    for i in range(6, 16, 4):
        o.append(f"v_max3_u32 v60, v60, v{base+i}, v{base+i+1}")
        if i + 2 < 16: o.append(f"v_max3_u32 v61, v61, v{base+i+2}, v{base+i+3}")
    return o + ["v_max_u32 v60, v60, v61", "v_cmp_eq_u32 vcc, -1, v60", f"s_cbranch_vccnz L_{name}retry"]
def chkH(name, base):
    o = [f"v_bitop3_b32 v{60+g}, v{base+4*g+1}, v{base+4*g+3}, s{sHT} bitop3:0x7e" for g in range(4)]
    return o + ["v_or3_b32 v60, v60, v61, v62", "v_bitop3_b32 v60, v60, v63, v27 bitop3:0xa8", "v_cmp_ne_u32 vcc, 0, v60", f"s_cbranch_vccnz L_{name}retry"]
def checked(name, tag, base, reload, nlater, fn=chk16):
    c = fn(name, base)
    retry(name, reload, nlater, c)
    return [lambda: wvm(tag)] + [lambda x=x: e(x) for x in c] + [lambda: lab(f"L_{name}ok")]
def z_checked(c, top):
    def rl():
        for cc in range(c, top):
            for f in z_chunk(cc): f()
    return checked(f"z{c}", ("z", c), ZF(4 * c), rl, 4 * (top - c - 1))
for f in z_checked(0, ZA): f()
count("z0")
stamp("z_in")
for c in range(8):
    m = [lambda n=n: g1_mfma(n) for n in range(8 * c, 8 * c + 8)]
    weave(m[:4], z_chunk(c + ZA))
    if c == 6: e("s_barrier")
    weave(m[4:], z_checked(c + 1, min(8, c + ZA + 1)) if c < 7 else [])
count("z")
stamp("g1a")
e(f"s_mov_b32 s4, {hx(GC)}")
def gelu(r, pk):
    a = G1(r); out = []
    for hh in range(2):
        b = a + 8 * hh; t = 40
        if pk:
            for i in range(0, 8, 2): out.append(f"v_pk_fma_f32 {V(t+i,2)}, {V(b+i,2)}, {V(b+i,2)}, s[4:5] op_sel_hi:[1,1,0]")
            for i in range(0, 8, 2): out.append(f"v_pk_mul_f32 {V(t+i,2)}, {V(t+i,2)}, {V(b+i,2)}")
        else:
            for i in range(8): out.append(f"v_fma_f32 v{t+i}, v{b+i}, v{b+i}, s4")
            for i in range(8): out.append(f"v_mul_f32 v{t+i}, v{t+i}, v{b+i}")
        for i in range(8): out.append(f"v_exp_f32 v{t+i}, v{t+i}")
        if pk:
            for i in range(0, 8, 2): out.append(f"v_pk_fma_f32 {V(t+i,2)}, {V(t+i,2)}, s[{sHT}:{sLAM}], s[{sHT}:{sLAM}] op_sel:[0,1,1] op_sel_hi:[1,1,1]")
        else:
            for i in range(8): out.append(f"v_fma_f32 v{t+i}, v{t+i}, s{sLAM}, s{sLAM}")
        for i in range(8): out.append(f"v_rcp_f32 v{t+i}, v{t+i}")
        if pk:
            for i in range(0, 8, 2):
                out.append(f"v_pk_fma_f32 {V(t+i,2)}, {V(t+i,2)}, {V(b+i,2)}, s[{sCQ}:{sFIN}] op_sel_hi:[1,1,0]" if i & 2 else f"v_pk_mul_f32 {V(t+i,2)}, {V(t+i,2)}, {V(b+i,2)}")
            for i in (2, 6): out.append(f"v_pk_add_f32 {V(t+i,2)}, {V(t+i,2)}, s[{sCQ}:{sFIN}] op_sel_hi:[1,0] neg_lo:[0,1] neg_hi:[0,1]")
        else:
            for i in range(8): out.append(f"v_fma_f32 v{t+i}, v{t+i}, v{b+i}, s{sCQ}" if i & 2 else f"v_mul_f32 v{t+i}, v{t+i}, v{b+i}")
            for i in (2, 3, 6, 7): out.append(f"v_subrev_f32 v{t+i}, s{sCQ}, v{t+i}")
        for i in range(4): out.append(f"v_cvt_pk_bf16_f32 v{32+4*hh+i}, v{t+2*i}, v{t+2*i+1}")
        for i in (1, 3): out.append(f"v_or_b32 v{32+4*hh+i}, s{sHT}, v{32+4*hh+i}")
        out.append(f"buffer_store_dwordx4 {V(32+4*hh,4)}, v{vL16}, {S(RWS,4)}, s{sHa if r < 2 else sHb} offen offset:{2048*(r&1)+1024*hh} sc1")
    return [(1, lambda x=x: vm(x, "hst2")) if x.startswith("buffer") else (cost(x), lambda x=x: e(x)) for x in out]
m = [lambda n=n: g1_mfma(n) for n in range(64, 96)]
m[0](); m[1](); e("s_barrier")
mid = w2_mid(); MS = OPT.get("ms", 14)
spread(m[2:], merge(gelu(0, False), mid[:MS]))
spread([lambda n=n: g1_mfma(n) for n in range(96, 128)], merge(gelu(1, False), mid[MS:]))
stamp("g1b")

lab("L_T")
HA0 = OPT.get("ha0", 6); HA = OPT.get("ha", 8)
for q in range(HA0):
    for f in h_load(q): f()
e("s_barrier")
late = dma_w2([5, 6], LB, "w2r3b")
if OPT.get("nomid"): late = []
e(f"s_cmp_ge_u32 s{sI}, 14"); e("s_cbranch_scc1 L_idle2")
for f in merge([f for _, f in gelu(2, True) + gelu(3, True)], late): f()
lab("L_g2")
def idle2():
    lab("L_idle2")
    for f in late: f()
    e("s_waitcnt vmcnt(0)"); e("s_branch L_g2")
tail.append(idle2)
stamp("gelu")
e(f"s_mov_b32 s{sCNT}, 0")
for q in range(HA0, HA):
    for f in h_load(q): f()
G2 = lambda ct, tt: 64 + 32 * tt + 16 * ct
def g2_mfma(q, ct, tt):
    r, n = divmod(q, 7)
    if n == 0 and ct == 0 and tt == 0 and r in (1, 3): wlg0()
    e(f"v_mfma_f32_32x32x16_bf16 {V(G2(ct,tt),16)}, {A(W2R(r,n,ct),4)}, {V(HF(q,tt),4)}, {V(G2(ct,tt),16) if q else 0}")
def h_checked(c, top):
    def rl():
        for q in range(2 * c, top):
            for f in h_load(q): f()
    return checked(f"hh{c}", ("h", c), HF(2 * c, 0), rl, 2 * (top - 2 * c - 2), chkH)
for f in h_checked(0, HA): f()
count("h0")
stamp("h_in")
NMAIN = 22
t1 = tr_w2(1, range(7), vT2) + tr_w2(3, [4], vT2, 14336)
def mv(x): return [lambda: (e(f"v_add_u32 v28, {x}, v28"), e(f"v_add_u32 v29, {x}, v29"))]
t3 = mv(LB) + tr_w2(3, [5, 6], vT2) + [lambda: e(f"s_sub_u32 s4, {LC-LB}, s{sT1}")] + mv("s4") + tr_w2(3, range(4), vT2)
rld = [lambda k=k: vm(f"buffer_load_dwordx4 {V(48+4*k,4)}, v24, {S(RWS,4)}, s{12+k} offen sc1", "ra") for k in range(2)]
rld += [lambda k=k: vm(f"global_load_dwordx4 {V(40+4*k,4)}, v{16+k}, {S(SX,2)}", "ra") for k in range(2)]
if OPT.get("nora"): rld = rld[3:]
res = []
for d in range(8):
    res += [f"v_lshlrev_b32 v20, 16, v{32+d}", f"v_and_b32 v21, 0xffff0000, v{32+d}", f"v_lshlrev_b32 v22, 16, v{40+d}", f"v_and_b32 v23, 0xffff0000, v{40+d}",
            "v_add_f32 v20, v20, v22", "v_add_f32 v21, v21, v23", f"v_cvt_pk_bf16_f32 v{48+d}, v20, v21"]
for d in range(8): res += [f"v_lshlrev_b32 v{32+2*d}, 16, v{48+d}", f"v_and_b32 v{33+2*d}, 0xffff0000, v{48+d}"]
for d in range(4): res += [f"v_lshlrev_b32 v{48+2*d}, 16, v{56+d}", f"v_and_b32 v{49+2*d}, 0xffff0000, v{56+d}"]
for d in range(16): res += [f"v_add_f32 v{32+d}, v{32+d}, v{48+(d&7)}"]
res = [lambda x=x: e(x) for x in res]
extra = {0: rld + t1[:10], 1: t1[10:21], 2: t1[21:], 3: t3[:10], 4: t3[10:19], 5: t3[19:],
         6: [lambda: wvm("ra"), lambda: ds("ds_write_b128 v25, v[48:51]"), lambda: ds("ds_write_b128 v25, v[52:55] offset:1280")],
         7: [wlg0] + [lambda k=k, i=i: ds(f"ds_read2_b32 {V(32+4*k+2*i,2)}, v26 offset0:{8*k+40*i} offset1:{8*k+40*i+20}") for k in range(2) for i in range(2)],
         8: [wlg0] + res[:20], 9: res[20:40], 10: res[40:60]}
res = res[60:]
nxt = HA
for c in range(NMAIN // 2):
    m = [lambda q=q, ct=ct, tt=tt: g2_mfma(q, ct, tt) for q in (2 * c, 2 * c + 1) for tt in range(2) for ct in range(2)]
    fill = []
    for q in range(nxt, min(28, nxt + 2)): fill += h_load(q)
    nxt = min(28, nxt + 2)
    fill += extra.get(c, [])
    weave(m[:4], fill)
    ck = h_checked(c + 1, nxt)
    weave(m[4:], ck)
    if OPT.get("fine"): stamp(f"c{c}")
assert nxt == 28
tiles = [(ct, tt) for tt in range(2) for ct in range(2)]
def red_w(ct, tt): return [lambda g=g: ds(f"ds_write_b128 v{10+g}, {V(G2(ct,tt)+4*g,4)} offset:{8192*tt+128*ct}") for g in range(4)]
prev = None
for i, (ct, tt) in enumerate(tiles):
    m = [lambda q=q: g2_mfma(q, ct, tt) for q in range(NMAIN, 28)]
    if i == 0:
        weave(m[:2], h_checked(12, 28)); weave(m[2:4], h_checked(13, 28)); m[4](); m[5]()
        count("h")
    else:
        weave(m[:3], res[(i-1) * 12:i * 12])
        weave(m[3:], red_w(*prev))
    prev = (ct, tt)
stamp("g2m")
for f in red_w(*prev): f()
wlg0(); e("s_barrier")
stamp("g2")
for k in range(2):
    for src in range(4):
        for hf in range(2): ds(f"ds_read_b128 {V(64+32*k+8*src+4*hf,4)}, v{14+hf} offset:{16384*src+2048*k}", ("r2", k, src))
for k in range(2):
    b = 64 + 32 * k
    wlg(("r2", k, 1))
    for i in range(0, 8, 2): e(f"v_pk_add_f32 {V(b+i,2)}, {V(b+i,2)}, {V(b+8+i,2)}")
    wlg(("r2", k, 3))
    for i in range(0, 8, 2): e(f"v_pk_add_f32 {V(b+16+i,2)}, {V(b+16+i,2)}, {V(b+24+i,2)}")
    for i in range(0, 8, 2): e(f"v_pk_add_f32 {V(b+i,2)}, {V(b+i,2)}, {V(b+16+i,2)}")
    for i in range(0, 8, 2): e(f"v_pk_fma_f32 {V(b+i,2)}, {V(b+i,2)}, s[{sCQ}:{sFIN}], {V(32+8*k+i,2)} op_sel:[0,1,0] op_sel_hi:[1,1,1]")
    for i in range(4): e(f"v_cvt_pk_bf16_f32 v{48+4*k+i}, v{b+2*i}, v{b+2*i+1}")
    vm(f"global_store_dwordx4 v{16+k}, {V(48+4*k,4)}, {S(SOUT,2)}", "out")
if OPT["stamps"]:
    stamp("end"); wlg0()
    e("s_lshl_b32 s4, s2, 2"); e("s_add_u32 s4, s4, s6"); e("s_lshl_b32 s4, s4, 8"); e(f"s_add_u32 s4, s4, {STAMP}")
    e("v_lshlrev_b32 v30, 2, v1")
    e(f"buffer_store_dword v31, v30, {S(RWS,4)}, s4 offen")
if OPT.get("diag"):
    e("v_readfirstlane_b32 s10, v31")
    lab("L_diag")
    e("s_memrealtime s[14:15]"); e("s_waitcnt lgkmcnt(0)"); e("s_sub_u32 s14, s14, s10"); e(f"s_cmp_lt_u32 s14, {OPT['diag']}"); e("s_cbranch_scc1 L_diag")
e("s_endpgm")
i = 0
while i < len(tail): tail[i](); i += 1
lab("L_end")
e("s_endpgm")

body, added = hz.fix(L, verbose=OPT.get("hz", False))
post = f""".section .rodata,"a"
.p2align 6
.amdhsa_kernel {lab_name}
  .amdhsa_next_free_vgpr 512
  .amdhsa_next_free_sgpr 102
  .amdhsa_accum_offset 256
  .amdhsa_group_segment_fixed_size 0
  .amdhsa_kernarg_size 120
  .amdhsa_user_sgpr_count 2
  .amdhsa_user_sgpr_kernarg_segment_ptr 1
  .amdhsa_system_sgpr_workgroup_id_x 1
.end_amdhsa_kernel
"""
open(sys.argv[1], "w").write(pre + "\n".join(body) + "\n" + post)
if OPT["stamps"]: open(sys.argv[1] + ".stamps", "w").write(" ".join(stamp_names))
print("instructions:", sum(1 for x in body if hz.Ins(x).is_ins), "nop states added:", added)
```

```python
import re

TRANS = ("v_exp_f32", "v_log_f32", "v_rcp_f32", "v_rsq_f32", "v_sqrt_f32", "v_sin_f32", "v_cos_f32")
REG = re.compile(r"^(-|abs\()?([vas])(?:(\d+)|\[(\d+):(\d+)\])\)?$")


def regs_of(tok):
    tok = tok.strip()
    if tok in ("vcc",): return {("s", "vcc")}
    if tok in ("exec",): return {("s", "exec")}
    if tok == "m0": return {("s", "m0")}
    m = REG.match(tok)
    if not m: return set()
    k = m.group(2)
    if m.group(3) is not None: return {(k, int(m.group(3)))}
    return {(k, i) for i in range(int(m.group(4)), int(m.group(5)) + 1)}


class Ins:
    def __init__(self, text):
        self.text = text
        t = text.split(";")[0].strip()
        self.is_ins = bool(t) and not t.endswith(":") and not t.startswith(".")
        self.kind = None; self.w = set(); self.r = set(); self.states = 0
        self.srcC = set(); self.srcAB = set(); self.dpp = False; self.wide_store = set(); self.op = ""
        if not self.is_ins: return
        parts = t.split(None, 1)
        op = parts[0]; self.op = op
        rest = parts[1] if len(parts) > 1 else ""
        ops = []; cur = ""; depth = 0
        for ch in rest:
            if ch == "[": depth += 1
            if ch == "]": depth -= 1
            if ch == "," and depth == 0: ops.append(cur); cur = ""
            else: cur += ch
        ops.append(cur)
        last = ops[-1].strip().split()
        mods = " ".join(last[1:]) if last else ""
        if last: ops[-1] = last[0]
        ops = [o.strip() for o in ops if o.strip()]
        self.states = 1
        R = [regs_of(o) for o in ops]
        if op == "s_nop":
            self.kind = "nop"; self.states = int(ops[0], 0) + 1
        elif op.startswith("v_mfma"):
            self.kind = "mfma"; self.passes = 8 if "32x32" in op else 4
            self.w = R[0]; self.srcAB = R[1] | R[2]; self.srcC = R[3]; self.r = self.srcAB | self.srcC
        elif op.startswith("v_"):
            self.kind = "valu"
            base = op.replace("_e32", "").replace("_e64", "").replace("_dpp", "").replace("_sdwa", "")
            self.base = base
            self.trans = base in TRANS
            self.dot = base.startswith("v_dot")
            self.dpp = any(k in mods for k in ("quad_perm", "row_", "wave_"))
            self.w = set(R[0]); self.r = set().union(*R[1:]) if len(R) > 1 else set()
            if base.startswith("v_permlane") or base == "v_swap_b32":
                self.w = R[0] | R[1]; self.r = R[0] | R[1]
            if base in ("v_fmac_f32", "v_dot2c_f32_bf16", "v_writelane_b32") or self.dpp: self.r |= R[0]
            if base in ("v_add_co_u32", "v_addc_co_u32", "v_sub_co_u32"):
                self.w = R[0] | R[1]; self.r = set().union(*R[2:])
            if self.dot:
                self.srcAB = R[1] | R[2]; self.srcC = R[3] if len(R) > 3 else R[0]
        elif op.startswith("ds_"):
            self.kind = "ds"
            if op.startswith("ds_read") or op.startswith("ds_bpermute") or op.startswith("ds_swizzle"):
                self.w = R[0]; self.r = set().union(*R[1:])
            else:
                self.r = set().union(*R)
        elif op.startswith("buffer_") or op.startswith("global_"):
            self.kind = "vmem"
            self.lds = " lds" in (" " + mods) or "load_lds" in op
            if "load" in op and not self.lds:
                self.w = R[0]; self.r = set().union(*R[1:])
            else:
                self.r = set().union(*R) if R else set()
                if "store" in op and ("x4" in op or "x3" in op):
                    self.wide_store = R[0] if op.startswith("buffer_") else R[1]
            if self.lds: self.r |= {("s", "m0")}
        elif op.startswith("s_"):
            self.kind = "salu"
            if op.startswith(("s_cmp", "s_cbranch", "s_branch", "s_waitcnt", "s_barrier", "s_endpgm", "s_sleep", "s_setprio", "s_setpc", "s_bitcmp")):
                self.r = set().union(*R) if R else set()
            else:
                self.w = set(R[0]); self.r = set().union(*R[1:]) if len(R) > 1 else set()
                if "saveexec" in op: self.w |= {("s", "exec")}
        else:
            raise ValueError("unknown instruction: " + text)


def need(p, c):
    n = 0
    vec = lambda s: {x for x in s if x[0] in "va"}
    sca = lambda s: {x for x in s if x[0] == "s"}
    if p.kind == "valu":
        pw = vec(p.w); ps = sca(p.w)
        if c.kind == "mfma" and pw & c.r: n = max(n, 3 if p.dot else 2)
        if c.kind == "valu":
            if p.trans and pw & c.r: n = max(n, 1)
            if c.dpp and pw & c.r: n = max(n, 2)
            if c.base.startswith("v_permlane") and pw & c.r: n = max(n, 2)
            if c.base in ("v_readlane_b32", "v_readfirstlane_b32") and pw & c.r: n = max(n, 1)
            cr = set(c.r)
            if ps & cr: n = max(n, 4 if c.base in ("v_readlane_b32", "v_writelane_b32") else 2)
            if p.dot:
                if c.dot and c.base == p.base:
                    if pw & c.srcAB: n = max(n, 3)
                elif pw & (c.r | c.w): n = max(n, 3)
        if c.kind in ("ds", "vmem") and p.dot and pw & (c.r | c.w): n = max(n, 3)
        if c.kind == "vmem" and ps & c.r: n = max(n, 5)
        if c.kind == "salu" and ps & c.r and ("s", "vcc") not in ps: n = max(n, 1)
    if p.kind == "mfma":
        big = 12 if p.passes == 8 else 8
        if c.kind == "mfma":
            if p.w & c.srcAB: n = max(n, big)
            if p.w & c.srcC and not (p.w == c.srcC and p.passes == c.passes): n = max(n, big - 2)
            if p.w & c.w and not (p.w == c.w and p.passes == c.passes): n = max(n, big)
            if p.w == c.w and not c.srcC: n = max(n, 0)
        elif c.kind in ("valu", "ds", "vmem"):
            if p.w & (c.r | c.w): n = max(n, big)
            if c.kind == "valu" and p.srcC & c.w: n = max(n, 7 if p.passes == 8 else 3)
    if p.kind == "salu" and ("s", "m0") in p.w and c.kind == "vmem" and c.lds: n = max(n, 1)
    if p.kind == "vmem" and p.wide_store & c.w:
        n = max(n, 2 if c.kind in ("valu", "mfma") else 1)
    return n


def fix(lines, verbose=False):
    out = []; hist = []
    added = 0
    for ln in lines:
        ins = Ins(ln)
        if not ins.is_ins:
            out.append(ln); continue
        dist = 0; pad = 0
        for p in reversed(hist):
            if dist >= 20: break
            k = need(p, ins) - dist
            if k > pad: pad = k; why = p
            dist += p.states
        if pad > 0:
            nop = Ins(f"  s_nop {pad - 1}")
            out.append(f"  s_nop {pad - 1}"); hist.append(nop); added += pad
            if verbose: print(f"pad {pad}: [{why.text.strip()}] -> [{ln.strip()}]")
        out.append(ln); hist.append(ins)
        if ins.op in ("s_branch", "s_endpgm", "s_setpc_b64"): hist = []
    return out, added


def sizes(lines):
    import subprocess
    src = '.amdgcn_target "amdgcn-amd-amdhsa--gfx950"\n.text\n' + "\n".join(lines) + "\n"
    r = subprocess.run(["llvm-mc", "-triple=amdgcn-amd-amdhsa", "-mcpu=gfx950", "-show-encoding"], input=src, capture_output=True, text=True)
    assert r.returncode == 0, r.stderr[:2000]
    enc = [l.split("encoding: [")[1].count(",") + 1 for l in r.stdout.split("\n") if "encoding: [" in l]
    out = []; k = 0
    for l in lines:
        if Ins(l).is_ins: out.append(enc[k]); k += 1
        else: out.append(None)
    assert k == len(enc)
    return out

WIDEN = ("v_mov_b32", "v_add_f32", "v_mul_f32", "v_sub_f32", "v_add_u32", "v_and_b32", "v_or_b32", "v_xor_b32", "v_lshlrev_b32", "v_lshrrev_b32",
         "v_exp_f32", "v_rcp_f32", "v_rsq_f32", "v_sin_f32", "v_cos_f32", "v_fract_f32", "v_max_f32", "v_max_u32", "v_subrev_f32", "v_sub_u32")
def align(lines, minrun=7):
    sz = sizes(lines); out = []; addr = 0; n = len(lines); last4 = None; pads = 0
    for i, l in enumerate(lines):
        if sz[i] == 8 and addr % 8 == 4 and last4 is not None:
            run = 0; j = i; mf = 0
            while j < n and sz[j] in (8, None):
                if sz[j]: run += 1; mf += lines[j].strip().startswith("v_mfma")
                j += 1
            if run >= minrun and mf * 3 < run:
                op = out[last4].split()[0]
                if op in WIDEN: out[last4] = out[last4].replace(op, op + "_e64", 1)
                else: out.append("  s_nop 0"); pads += 1
                addr += 4
        out.append(l)
        if sz[i]:
            last4 = len(out) - 1 if sz[i] == 4 else None
            addr += sz[i]
    return out, pads

def simulate(lines):
    t = 0; mfree = 0; vfree = 0; last = 0; res = []
    for l in lines:
        ins = Ins(l)
        if not ins.is_ins: continue
        if ins.op == "s_endpgm": break
        if ins.op in ("s_memtime", "s_memrealtime"): res.append(t - last); last = t
        if ins.kind == "mfma":
            t = max(t, mfree, vfree); mfree = t + 4 * ins.passes; vfree = t + 8; t += 4
        elif ins.kind == "valu":
            t = max(t, vfree)
            if ins.op.startswith("v_pk_") and "f32" in ins.op: t = max(t, mfree)
            t += 8 if ins.trans else 4
        elif ins.kind == "nop": t += 4 * ins.states
        elif ins.kind == "ds" and ins.op.startswith("ds_write"):
            t = max(t, vfree)
            t += {"ds_write_b128": 40, "ds_write_b64": 16, "ds_write2st64_b32": 16}.get(ins.op, 14)
        elif ins.kind in ("ds", "vmem"): t = max(t, vfree) + 4
        else: t += 4
    return res
```

```python
import sys, math, struct
sys.path.insert(0, "exp")
import hz

KN = "sequential_preLN__ssm_conv_s4d__mixer_channel_mlp__prompt"
OPT = dict(stamps=False)
for a in sys.argv[2:]:
    k, _, v = a.partition("=")
    OPT[k] = (int(v) if v.lstrip("-").isdigit() else v) if v else True

def f2u(x): return struct.unpack("<I", struct.pack("<f", x))[0]
def hx(x): return "0x%08x" % f2u(x)
def bf16_rne(x):
    u = f2u(x); return ((u + 0x7FFF + ((u >> 16) & 1)) >> 16) & 0xFFFF
def bf16_val(h): return struct.unpack("<f", struct.pack("<I", h << 16))[0]

OB1, OB2, ZB, HRB, HB, STAMP = 0x100000, 0x300000, 0x500000, 0x700000, 0x900000, 0x1100000
WS_SIZE = 0x1200000
LA, LB, LC = 0, 65536, 131072
TB = LB
TROW, TCH = 544, 34816
UB = LC + 4096; USZ = 4576
KB = UB + 2 * USZ; KCOPY = 4160; KSZ = 2 * KCOPY
STAT1 = KB + 2 * KSZ
RED = LC
LDS_SIZE = 163840
LOG2E = 1.4426950408889634
K1 = 2.0 * math.sqrt(2.0 / math.pi) * LOG2E
K2 = K1 * 0.044715
SS = -(K2 ** (1.0 / 3.0))
GC = K1 / abs(SS)
C0 = 1.5 * 2.0 ** -8
EPS = 1e-5
MASK = 0x70007000
SPIN = 20000

L = []
vmq = []; lgq = []
def e(s):
    for x in s.split("\n"): L.append("  " + x.strip())
def lab(s): L.append(s + ":")
def vm(s, tag=None): e(s); vmq.append(tag)
def ds(s, tag=None): e(s); lgq.append(tag)
def cnt(q, tag):
    idx = max(i for i, t in enumerate(q) if t == tag)
    return len(q) - 1 - idx
def wvm(tag):
    if tag in vmq: e("s_waitcnt vmcnt(%d)" % min(cnt(vmq, tag), 63))
def wlg(tag): e("s_waitcnt lgkmcnt(%d)" % min(cnt(lgq, tag), 15))
def wlg0(): e("s_waitcnt lgkmcnt(0)"); flush_st()
def V(a, n=1): return f"v{a}" if n == 1 else f"v[{a}:{a+n-1}]"
def A(a, n=1): return f"a{a}" if n == 1 else f"a[{a}:{a+n-1}]"
def S(a, n=1): return f"s{a}" if n == 1 else f"s[{a}:{a+n-1}]"
nstamp = [0]; stamp_names = []; pend_st = []; st_pool = []
def flush_st():
    while pend_st:
        r, i = pend_st.pop(0); e(f"v_writelane_b32 v31, s{r}, {i}"); st_pool.append(r)
def stamp(name):
    if OPT.get("at") == name:
        e("s_memrealtime s[14:15]"); e("s_waitcnt lgkmcnt(0)"); e("v_mov_b32 v31, s14")
    if not OPT["stamps"]: return
    if not st_pool:
        r, i = pend_st.pop(0); e(f"v_writelane_b32 v31, s{r}, {i}"); st_pool.append(r)
    r = st_pool.pop(0)
    e(f"s_memtime s[{r}:{r+1}]" if OPT.get("cyc") else f"s_memrealtime s[{r}:{r+1}]")
    pend_st.append((r, nstamp[0])); nstamp[0] += 1; stamp_names.append(name)
def count(name):
    if not OPT["stamps"]: return
    e(f"v_writelane_b32 v31, s{sCNT}, {nstamp[0]}"); nstamp[0] += 1; stamp_names.append("#" + name)

tail = []
class It:
    def __init__(self, x, tag=None, cost=None):
        self.x = x; self.tag = tag
        if callable(x): self.valu = False; self.cost = 1 if cost is None else cost
        else:
            ls = [y.strip() for y in x.split("\n")]
            self.valu = ls[0].startswith("v_")
            self.cost = sum(2 if y.split()[0] in hz.TRANS else 1 for y in ls) if cost is None else cost
    def __call__(self):
        if callable(self.x): return self.x()
        for y in self.x.split("\n"):
            y = y.strip()
            if y.startswith("ds_"): ds(y, self.tag)
            elif y.startswith(("buffer_", "global_")): vm(y, self.tag)
            else: e(y)
def items(lst, tag=None): return [x if isinstance(x, It) else It(x, tag) for x in lst]
def run(lst):
    for x in items(lst): x()
def sched(main, *streams):
    st = []
    for sp in streams:
        its = items(sp[0]); a = sp[1] if len(sp) > 1 else 0; b = sp[2] if len(sp) > 2 and sp[2] is not None else len(main)
        st.append(dict(its=its, a=a, b=b, k=0, acc=0, tot=sum(i.cost for i in its)))
    for g, m in enumerate(main):
        m()
        due = []
        for q in st:
            d = []
            if q["a"] <= g < q["b"]:
                t = (g - q["a"] + 1) * q["tot"] / (q["b"] - q["a"])
                while q["k"] < len(q["its"]) and (q["acc"] + q["its"][q["k"]].cost / 2.0 <= t or g == q["b"] - 1):
                    d.append(q["its"][q["k"]]); q["acc"] += d[-1].cost; q["k"] += 1
            due.append(d)
        for d in due:
            if d and not d[0].valu: d.pop(0)(); break
        for d in due:
            for x in d: x()
def merge(a, b):
    if not a: return list(b)
    out = []
    for i, x in enumerate(a):
        out.append(x); out += b[i * len(b) // len(a):(i + 1) * len(b) // len(a)]
    return out
def retry(name, loads, nlater=0, chk=None):
    def f():
        lab(f"L_{name}retry")
        e(f"s_add_u32 s{sCNT}, s{sCNT}, 1"); e(f"s_cmp_gt_u32 s{sCNT}, {SPIN}"); e(f"s_cbranch_scc1 L_{name}ok")
        run(loads)
        e(f"s_waitcnt vmcnt({nlater})")
        if chk is None: e(f"s_branch L_{name}chk")
        else:
            for x in chk: e(x)
            e(f"s_branch L_{name}ok")
    tail.append(f)

SX, SLA, SAI, SCR, SCI, SLDT, SDSK = 8, 10, 12, 14, 16, 18, 20
SW1, SB1, SW2, SB2, SOUT, SWS = 24, 26, 28, 30, 32, 34
RWS, RW1, RW2 = 36, 40, 44
sHT, sLAM, sCQ, sFIN = 48, 49, 50, 51
sLDT, sDSK, sE, sONES = 52, 53, 54, 55
sTAG = 56
sO8 = 60
sKS, sWR = 68, 75
sOB1, sOB2, sZ0, sZ1, sHa, sHb = 82, 83, 84, 85, 88, 89
sCNT, sI, sB, sG, sCH, sT1, sM0, sG1a, sG1b, sCB = 90, 91, 92, 93, 94, 95, 96, 97, 98, 99
sW1g = (86, 87, 100, 101)
sPERMLO, sPERMHI = 22, 23
sRA = 12
vL16, vOBS, vDMA, vDMA1, vTR0, vTR1, vT2 = 2, 3, 4, 5, 6, 7, 28
vMASK, vD, vKW, vH1, vS1R, vUW, vS1W = 8, 9, 12, 14, 15, 16, 17
vTW, vTL, vTR, vAG, vXR, vRW, vRR, vS2W, vS2R, vZS, vXW, vB, vA, vX = 96, 104, 105, 107, 108, 109, 110, 111, 112, 113, 114, 115, 116, 120
ROT = OPT.get("rot", 1)

lab_name = KN + "_kernel"
hdr = open("cdna_kernels/" + KN + ".s.ref").read().split("; Override launch")[0]
pre = hdr + f"; @launch grid=(256,1,1) block=(256,1,1) lds={LDS_SIZE}\n" + \
    f'.amdgcn_target "amdgcn-amd-amdhsa--gfx950"\n.text\n.globl {lab_name}\n.p2align 8\n.type {lab_name},@function\n{lab_name}:\n'

B_role = [f"s_and_b32 s{sI}, s3, 15", "v_bfe_u32 v18, v1, 4, 1", f"s_lshr_b32 s{sG}, s3, 4", "v_lshlrev_b32 v18, 2, v18",
          f"s_and_b32 s{sB}, s{sG}, 1", "v_and_b32 v19, 7, v1", f"s_and_b32 s{sCB}, s3, 7", "v_xor_b32 v18, v18, v19",
          f"s_min_u32 s4, s{sI}, 13", "v_lshlrev_b32 v18, 4, v18", "s_lshl_b32 s4, s4, 8", "v_lshrrev_b32 v30, 3, v1",
          f"s_lshl_b32 s7, s{sB}, 7", f"v_lshl_add_u32 v{vDMA}, v30, 10, v18", "s_add_u32 s4, s4, s7", "v_mul_u32_u24 v20, 3584, v30",
          "s_lshl_b32 s7, s6, 1", "v_add3_u32 v20, v20, v18, s4", f"s_add_u32 s7, s7, s{sCB}" if ROT else "s_nop 0", f"v_add_u32 v21, {28672-1024}, v20",
          f"s_and_b32 s{sT1}, s7, 7", f"v_add_u32 v22, {2*(28672-1024)}, v20", f"s_mul_i32 s{sW1g[0]}, s{sT1}, {64*3584}", f"v_add_u32 v23, {3*(28672-1024)}, v20",
          f"s_add_u32 s{sW1g[1]}, s{sW1g[0]}, {32*3584}", "v_and_b32 v18, 31, v1", "s_add_u32 s7, s7, 1", "v_lshl_add_u32 v24, v18, 1, s4",
          "s_and_b32 s7, s7, 7", "v_xor_b32 v25, 128, v24", f"s_mul_i32 s{sW1g[2]}, s7, {64*3584}", f"s_lshl_b32 s4, s{sCB}, 7",
          f"s_add_u32 s{sW1g[3]}, s{sW1g[2]}, {32*3584}", "v_lshl_add_u32 v26, v19, 4, s4", f"s_lshl_b32 s{sM0}, s6, 14",
          f"s_lshr_b32 s{sCH}, s6, 1"]
B_ln1 = ["v_lshrrev_b32 v29, 5, v0", "v_and_b32 v30, 16, v0", "v_cmp_ne_u32 vcc, 0, v30", f"v_mov_b32 v30, {STAT1+128}", "v_lshlrev_b32 v28, 3, v29",
         f"v_add_u32 v28, {STAT1}, v28", f"v_cndmask_b32 v{vS1W}, v30, v28, vcc",
         "v_and_b32 v28, 1, v0", f"v_lshlrev_b32 v{vS1R}, 5, v28", f"v_add_u32 v{vS1R}, {STAT1}, v{vS1R}",
         f"v_mov_b32 v{vMASK}, {hex(MASK)}", "v_mov_b32 v52, 0", "v_mov_b32 v53, 0",
         "v_lshlrev_b32 v28, 4, v28", "v_lshrrev_b32 v30, 1, v0", f"v_lshl_add_u32 v{vH1}, v30, 13, v28",
         "v_and_b32 v30, 31, v0", "v_xor_b32 v30, v30, v29", "v_lshlrev_b32 v30, 4, v30", "v_and_b32 v29, 1, v29",
         "v_lshl_add_u32 v30, v29, 10, v30", f"v_add_u32 v{vXW}, s{sM0}, v30"]
B_ln1s = ["s_and_b32 s10, s3, 0xc0", "s_and_b32 s11, s3, 1", "s_lshl_b32 s11, s11, 5", "s_add_u32 s10, s10, s11",
          "s_bfe_u32 s11, s3, 0x50001", "s_add_u32 s10, s10, s11", "s_lshl_b32 s10, s10, 5",
          f"s_add_u32 s{sG1a}, s10, {OB1}", f"s_add_u32 s{sG1b}, s10, {OB1 + 128*8192}",
          "s_lshr_b32 s10, s3, 2", "s_lshl_b32 s10, s10, 15", "s_and_b32 s11, s3, 3", "s_lshl_b32 s11, s11, 7", "s_add_u32 s10, s10, s11",
          f"s_add_u32 s{sZ0}, s10, {ZB}", f"s_add_u32 s{sZ1}, s10, {ZB+4096}",
          f"s_mov_b32 s{sPERMLO}, 0x05040100", f"s_mov_b32 s{sPERMHI}, 0x07060302", f"s_mov_b32 s{sCNT}, 0"]
B_tab = ["v_and_b32 v29, 7, v1", "v_lshrrev_b32 v30, 3, v1", "s_lshl_b32 s4, s6, 4", "v_add_u32 v30, s4, v30",
         "v_lshlrev_b32 v28, 4, v29", f"v_lshl_add_u32 v{vZS}, v30, 9, v28",
         "v_lshlrev_b32 v28, 2, v29", f"v_lshl_add_u32 v{vAG}, v30, 15, v28",
         "v_xor_b32 v30, v30, v29", "v_lshlrev_b32 v30, 4, v30", "v_lshrrev_b32 v28, 1, v29", "v_lshl_add_u32 v30, v28, 14, v30",
         "v_and_b32 v28, 1, v29", f"v_lshl_add_u32 v{vXR}, v28, 10, v30",
         f"s_mul_i32 s4, s{sCH}, {TCH}", f"s_add_u32 s4, s4, {TB}",
         "v_and_b32 v29, 127, v0", f"v_lshl_add_u32 v{vTW}, v29, 2, s4"] + [f"v_add_u32 v{vTW+r}, {r*TROW}, v{vTW}" for r in range(1, 8)] + \
        ["v_and_b32 v18, 15, v1", "v_lshrrev_b32 v19, 4, v1", "v_lshl_add_u32 v28, v19, 4, s4", f"v_mov_b32 v30, {TROW}",
         f"v_mad_u32_u24 v{vTL}, v18, v30, v28",
         "v_cmp_lt_u32 vcc, 7, v18", "v_and_b32 v55, 7, v18", "v_or_b32 v55, 0x0c0c0c00, v55"]
CLS = [[("R1", 8), ("A", 3), ("B", 3), ("T7", 0)], [("R1", 3), ("R0", 16), ("A", 2), ("T5", 0)], [("R1", 2), ("A", 0), ("T4", 0), ("T6", 0)],
       [("R1", 1), ("R1", 4), ("T4", 1), ("T6", 1)], [("A", 4), ("B", 4), ("T6", 2), ("T7", 1)], [("R1", 5), ("R1", 7), ("B", 0), ("T5", 1)],
       [("R1", 6), ("A", 1), ("B", 1), ("T4", 2)], [("R1", 0), ("B", 2), ("T5", 2), ("T7", 2)]]
ROW = {n: 32 + 8 * j + c for c in range(8) for j, n in enumerate(CLS[c])}
for p in range(16): ROW[("R0", p)] = 16 + p
def rows(dst, tab0, tab1):
    pk = lambda t: [t[4*i] | t[4*i+1] << 8 | t[4*i+2] << 16 | t[4*i+3] << 24 for i in range(4)]
    a, b = pk(tab0), pk(tab1); o = []
    for i, r in enumerate((4, 10, 5, 11)): o += [f"s_mov_b32 s7, {hex(a[i])}", f"s_cselect_b32 s{r}, {hex(b[i])}, s7"]
    return o + ["v_mov_b32 v54, s4", f"v_mov_b32 v{dst}, s5", "v_perm_b32 v54, s10, v54, v55", f"v_perm_b32 v{dst}, s11, v{dst}, v55",
                f"v_cndmask_b32 v54, v54, v{dst}, vcc", f"v_mad_u32_u24 v{dst}, v54, v30, v28"]
B_rows = ["s_bitcmp1_b32 s6, 0"] + \
    rows(vTR, [16 + m for m in range(16)], [ROW[("AB"[q >> 1], 2*(q&1) + min(i, 2))] for q in range(4) for i in range(4)]) + \
    rows(vTR+1, [ROW[("R1", 2*q+i)] if i < 3 else ROW[("R0", 4*q+4)] for q in range(4) for i in range(4)], [ROW[(f"T{4+q}", min(i, 2))] for q in range(4) for i in range(4)])
B_pad = [f"v_mov_b32 v{64+r}, 0" for r in range(4)] + \
    [f"s_mul_i32 s4, s{sCH}, {USZ}", f"s_add_u32 s4, s4, {UB}", "v_add_u32 v28, s4, v2", f"s_mul_i32 s4, s6, {KCOPY}", f"s_add_u32 s4, s4, {KB+4096}", "v_add_u32 v29, s4, v2",
     "s_mov_b64 exec, 0x3fffffff\nds_write_b128 v28, v[64:67]\ns_mov_b64 exec, 15\nds_write_b128 v29, v[64:67]\ns_mov_b64 exec, -1"]
B_conv = ["s_and_b32 s5, s6, 1", f"v_lshlrev_b32 v{vUW}, 3, v0", "s_lshl_b32 s5, s5, 8", f"v_add_u32 v{vUW}, {UB+480}, v{vUW}",
          f"s_mul_i32 s4, s{sCH}, {USZ}", "v_lshlrev_b32 v28, 4, v19", f"s_add_u32 s4, s4, {UB+256}", f"v_lshl_add_u32 v{vB}, v18, 5, v28",
          "s_sub_u32 s4, s4, s5", f"v_add_u32 v{vB}, s4, v{vB}",
          f"s_mul_i32 s7, s{sCH}, {KSZ}", "v_lshlrev_b32 v29, 1, v18", f"s_add_u32 s7, s7, {KB}", "v_sub_u32 v28, v28, v29",
          "s_sub_u32 s4, s7, s5", "v_and_b32 v29, 1, v18", f"s_add_u32 s4, s4, {2*(2031-256*7-96) + KCOPY+2}", f"v_mul_u32_u24 v29, {KCOPY+2}, v29",
          "v_add_u32 v28, s4, v28", f"v_sub_u32 v{vA+3}, v28, v29"] + [f"v_add_u32 v{vA+b2}, {1024*(3-b2)}, v{vA+3}" for b2 in range(3)] + \
         ["v_lshlrev_b32 v29, 5, v18", "v_sub_u32 v29, s7, v29",
          "v_lshlrev_b32 v28, 3, v19", f"v_sub_u32 v{vKW-1}, v29, v28",
          "v_lshlrev_b32 v28, 9, v19", f"v_sub_u32 v{vKW+1}, v29, v28",
          "v_and_b32 v28, 2, v19", "v_lshlrev_b32 v28, 8, v28", "v_and_b32 v30, 1, v19", "v_lshl_add_u32 v28, v30, 4, v28", f"v_sub_u32 v{vKW}, v29, v28"]
B_w2 = [f"s_mov_b32 s{RW2}, s{SW2}", f"s_mov_b32 s{RW2+1}, s{SW2+1}", f"s_mov_b32 s{RW2+2}, {1792*512*2}", f"s_mov_b32 s{RW2+3}, 0x20000",
        f"s_lshl_b32 s4, s{sCB}, 7", f"s_lshl_b32 s5, s{sB}, 16", "s_add_u32 s4, s4, s5", f"v_add_u32 v{vDMA}, s4, v{vDMA}", f"v_add_u32 v{vDMA1}, 7168, v{vDMA}",
        "s_mul_i32 s4, s6, 7", "s_add_u32 s5, s4, 7", f"s_add_u32 s10, s4, s{sCB}" if ROT else "s_mov_b32 s10, s4"]
for n in range(7):
    B_w2 += ["s_cmp_ge_u32 s10, s5\ns_cselect_b32 s10, s4, s10", "s_and_b32 s11, s10, 30", "s_mul_i32 s11, s11, 3", "s_add_u32 s11, s11, s10",
             f"s_lshl_b32 s{sWR+n}, s11, 14"] + (["s_add_u32 s10, s10, 1"] if n < 6 else [])
B_post = ["v_lshl_add_u32 v29, v19, 2, v18", "v_and_b32 v29, 15, v29", "v_lshlrev_b32 v29, 4, v29", f"v_lshl_add_u32 v{vRW}, v19, 8, v29",
          "s_lshl_b32 s4, s6, 13", f"s_add_u32 s4, s4, {RED}", f"v_add_u32 v{vRW}, s4, v{vRW}",
          "v_and_b32 v30, 3, v1", "v_lshrrev_b32 v60, 2, v1",
          "v_lshl_add_u32 v29, v30, 2, v60", "v_and_b32 v29, 15, v29", "v_lshlrev_b32 v29, 4, v29", f"v_lshl_add_u32 v{vRR}, v30, 8, v29",
          "s_lshl_b32 s4, s6, 11", f"s_add_u32 s4, s4, {RED}", f"v_add_u32 v{vRR}, s4, v{vRR}",
          "v_and_b32 v63, 7, v1", "v_lshlrev_b32 v29, 3, v63", f"v_add_u32 v{vS2R}, {RED}, v29", f"v_add_u32 v{vS2W}, s4, v29",
          "v_and_b32 v61, 1, v19", f"v_lshl_add_u32 v{vS2W}, v61, 2, v{vS2W}",
          "v_and_b32 v29, 3, v60", "v_lshlrev_b32 v29, 7, v29", "v_lshl_add_u32 v29, v61, 5, v29", "v_lshl_add_u32 v29, v30, 3, v29",
          "v_bfe_u32 v61, v1, 3, 1", "v_lshl_add_u32 v29, v61, 6, v29", "v_lshrrev_b32 v61, 5, v1",
          f"v_lshl_add_u32 v{vTR0}, v61, 10, v29", f"v_xor_b32 v{vTR1}, 64, v{vTR0}",
          f"v_lshl_add_u32 v{vT2}, v61, 9, v29", f"s_add_u32 s4, s{sM0}, {LB}", f"v_add_u32 v{vT2}, s4, v{vT2}", f"v_xor_b32 v{vT2+1}, 64, v{vT2}",
          "v_lshlrev_b32 v30, 4, v30", "v_lshl_add_u32 v24, v60, 13, v30", "s_add_u32 s4, s4, 8192",
          "v_mul_u32_u24 v60, 80, v60", "v_add3_u32 v25, v60, v30, s4",
          "v_lshrrev_b32 v62, 3, v1", "v_mul_u32_u24 v60, 320, v63", "v_lshlrev_b32 v30, 2, v62", "v_add3_u32 v26, v60, v30, s4",
          "v_and_b32 v60, 31, v1", "v_xor_b32 v61, v61, v63", "v_lshlrev_b32 v61, 4, v61", "v_lshl_add_u32 v10, v60, 8, v61", f"v_add_u32 v10, s{sM0}, v10"] + \
         [f"v_xor_b32 v{10+g}, {32*g}, v10" for g in range(1, 4)] + \
         ["v_lshlrev_b32 v60, 1, v63", "v_xor_b32 v60, v60, v62", "v_lshlrev_b32 v60, 4, v60", "v_lshl_add_u32 v14, v62, 8, v60",
          "s_lshl_b32 s4, s6, 12", "v_add_u32 v14, s4, v14", "v_xor_b32 v15, 16, v14",
          "s_lshr_b32 s7, s3, 3", "s_lshl_b32 s7, s7, 1",
          "s_mul_i32 s4, s7, 114688", f"s_lshl_b32 s5, s{sB}, 12", "s_add_u32 s4, s4, s5", f"s_add_u32 s4, s4, {HB}",
          f"v_add_u32 v18, s4, v{vL16}", "v_add_u32 v19, 114688, v18", "v_xor_b32 v8, 4096, v18", "v_add_u32 v9, 114688, v8",
          "s_lshl_b32 s7, s7, 1", "s_add_u32 s7, s7, s6",
          f"s_lshl_b32 s4, s{sCB}, 18", "s_lshl_b32 s5, s7, 6", "s_add_u32 s4, s4, s5", f"s_add_u32 s{sRA}, s4, {OB2}", f"s_add_u32 s{sRA+1}, s4, {OB2 + 16*8192}",
          "s_lshl_b32 s4, s7, 14", f"s_lshl_b32 s5, s{sCB}, 7", "s_add_u32 s4, s4, s5",
          "v_lshlrev_b32 v60, 4, v63", "v_lshl_add_u32 v16, v62, 10, v60", "v_add_u32 v16, s4, v16", "v_add_u32 v17, 8192, v16",
          "v_mov_b32 v27, 0x60006000"]
B_posts = ["s_lshl_b32 s10, s3, 5"] + [f"s_add_u32 s{sO8+4*k+i}, s10, {OB2 + (32*k+i)*8192}" for k in range(2) for i in range(4)] + \
          [f"s_lshr_b32 s{sKS+n}, s{sWR+n}, 4" for n in range(7)] + \
          [f"s_lshl_b32 s10, s{sG}, 2", "s_add_u32 s10, s10, s6", "s_mul_i32 s10, s10, 114688", f"s_lshl_b32 s11, s{sI}, 13", "s_add_u32 s10, s10, s11",
           f"s_add_u32 s10, s10, {HB}", f"s_lshl_b32 s11, s{sB}, 12", f"s_add_u32 s{sHa}, s10, s11", "s_xor_b32 s11, s11, 4096", f"s_add_u32 s{sHb}, s10, s11",
           f"s_lshl_b32 s{sT1}, s6, 13", f"s_mov_b32 s{sCNT}, 0",
           f"s_mov_b32 s{sLAM}, {hx(2.0**32)}", f"s_mov_b32 s{sCQ}, {hx(C0*2.0**-32)}", f"s_mov_b32 s{sFIN}, {hx(2.0**32/SS)}",
           f"s_bitcmp1_b32 s{sHT}, 30\ns_cselect_b32 s{sLAM}, {hx(2.0**-32)}, s{sLAM}\ns_cselect_b32 s{sCQ}, {hx(C0*2.0**32)}, s{sCQ}\ns_cselect_b32 s{sFIN}, {hx(2.0**-32/SS)}, s{sFIN}"]

def dma_w1(region, n0, n1, tag):
    out = []
    if tag in OPT.get("skip", "").split("+"): return out
    for n in range(n0, n1):
        g, i = divmod(n, 4)
        if n == n0: out.append(It(f"s_add_u32 m0, s{sM0}, {region + 4096*g}"))
        x = f"buffer_load_dwordx4 v{20+i}, {S(RW1,4)}, s{sW1g[g]} offen offset:{1024*i} lds"
        if i == 3 and n + 1 < n1: x += "\ns_add_u32 m0, m0, 4096"
        out.append(It(x, tag))
    return out
def dma_w2(ns, lbase, tag, sbase=None):
    if tag in OPT.get("skip", "").split("+"): return []
    out = [It(f"s_add_u32 m0, s{sbase or sM0}, {lbase}")]
    for x, n in enumerate(ns):
        out.append(It(f"buffer_load_dwordx4 v{vDMA}, {S(RW2,4)}, s{sWR+n} offen lds", tag))
        out.append(It(f"buffer_load_dwordx4 v{vDMA1}, {S(RW2,4)}, s{sWR+n} offen offset:1024 lds" + ("\ns_add_u32 m0, m0, 2048" if x + 1 < len(ns) else ""), tag))
    return out
def w2_round(x): return [It(f"v_xor_b32 v{vDMA}, {hex(x)}, v{vDMA}\nv_xor_b32 v{vDMA1}, {hex(x)}, v{vDMA1}")]
def t2_move(x): return [It(f"v_add_u32 v{vT2}, {x}, v{vT2}\nv_add_u32 v{vT2+1}, {x}, v{vT2+1}")]
W2R = lambda r, n, ct: 56 * r + 8 * n + 4 * ct
def tr_w2(r, ns, off=0):
    return [It(f"ds_read_b64_tr_b16 {A(W2R(r,n,ct)+2*hf,2)}, v{vT2+ct} offset:{off+2048*x+1024*hf}", ("w2", r))
            for x, n in enumerate(ns) for ct in range(2) for hf in range(2)]

st_pool += [60, 62, 64, 66]
e("s_cmp_ge_u32 s2, 256"); e("s_cbranch_scc1 L_end")
e("s_load_dwordx16 s[8:23], s[0:1], 0")
e("s_load_dwordx2 s[34:35], s[0:1], 112")
e("s_load_dwordx8 s[24:31], s[0:1], 64")
e("s_load_dwordx2 s[32:33], s[0:1], 96")
stamp("start")
if OPT.get("diag"): e("s_memrealtime s[68:69]")
e("s_getpc_b64 s[36:37]"); lab("L_pc")
e("s_lshr_b32 s7, s2, 3"); e("s_lshl_b32 s4, s7, 10"); e("s_add_u32 s38, s4, 1024"); e("s_min_u32 s38, s38, L_end-L_pc"); e("s_mov_b32 s39, 0x20000")
e("v_lshlrev_b32 v10, 7, v0")
vm("buffer_load_dword a255, v10, s[36:39], s4 offen", "pf")
e("s_and_b32 s3, s2, 7"); e("v_lshrrev_b32 v12, 6, v0"); e("s_lshl_b32 s3, s3, 5"); e("v_and_b32 v1, 63, v0")
e("s_add_u32 s3, s3, s7"); e("v_readfirstlane_b32 s6, v12")
e("s_lshl_b32 s7, s3, 13"); e("v_lshrrev_b32 v13, 5, v0")
e("s_lshl_b32 s4, s3, 9"); e("v_and_b32 v14, 31, v0")
e("s_lshl_b32 s5, s3, 2"); e("v_lshlrev_b32 v14, 4, v14")
e(f"s_add_u32 s{sOB1}, s7, {OB1}"); e("v_lshl_add_u32 v13, v13, 10, v14")
e(f"s_add_u32 s{sOB2}, s7, {OB2}"); e("v_add_u32 v13, s7, v13")
e("v_lshrrev_b32 v14, 1, v0"); e("v_and_b32 v15, 1, v0")
e("v_lshlrev_b32 v16, 3, v14"); e("v_lshl_add_u32 v16, v15, 12, v16"); e("v_add_u32 v16, s7, v16")
e("v_lshl_add_u32 v27, v0, 1, s4")
for r in range(48, 52): e(f"v_mov_b32 v{r}, 0")
e("v_lshlrev_b32 v2, 4, v1"); e("v_lshl_add_u32 v3, v12, 11, v2")
if OPT["stamps"]: e("v_mov_b32 v31, 0")
PRE = OPT.get("pre", 1)
blocks = [B_role, B_ln1, B_tab]
for b in blocks[:PRE]: run(b)
wlg0()
if OPT.get("diag") and not OPT.get("at"): e("v_mov_b32 v31, s68")
if OPT.get("diag") and OPT.get("at"): e("v_mov_b32 v31, s68")
stamp("karg")
vm(f"global_load_dwordx4 v[32:35], v13, {S(SX,2)}", "xs")
vm(f"global_load_dwordx4 v[36:39], v13, {S(SX,2)} offset:512", "xs")
e(f"s_load_dwordx2 s[{sE}:{sE+1}], {S(SWS,2)}, 0")
e(f"s_load_dword s{sLDT}, {S(SLDT,2)}, s5")
e(f"s_load_dword s{sDSK}, {S(SDSK,2)}, s5")
for i in range(4):
    vm(f"global_load_dwordx2 {V(40+2*i,2)}, v16, {S(SX,2)} offset:{1024*i}", "xg")
    e(f"v_mov_b32 v{60+i}, -1")
    e((f"s_mov_b32 s{RWS}, s{SWS}", f"s_mov_b32 s{RWS+1}, s{SWS+1}", f"s_mov_b32 s{RWS+2}, {WS_SIZE}", f"s_mov_b32 s{RWS+3}, 0x20000")[i])
for i, p in enumerate((SLA, SAI, SCR, SCI)): vm(f"global_load_short_d16_hi v{48+i}, v27, {S(p,2)}", "par")
for k in range(2): vm(f"buffer_store_dwordx4 v[60:63], v3, {S(RWS,4)}, s{sOB2} offen offset:{1024*k} sc1", "clr")
if PRE < 1: run(B_role)
NW1 = OPT.get("nw1", 4); NW2 = OPT.get("nw2", 12)
assert NW2 <= 12
mem = []
if OPT.get("touch", 1):
    mem += [It(f"s_cmp_lt_u32 s6, 2\ns_cselect_b32 s44, s{SW1}, s{SW2}\ns_cselect_b32 s45, s{SW1+1}, s{SW2+1}"),
            It("s_and_b32 s12, s6, 1\ns_lshl_b32 s13, s2, 1"), It("s_add_u32 s12, s12, s13\ns_mul_i32 s12, s12, 3584"), It("s_add_u32 s46, s12, 3584\ns_mov_b32 s47, 0x20000"),
            It("v_lshlrev_b32 v10, 7, v1"), It("buffer_load_dword a255, v10, s[44:47], s12 offen", "pf")]
mem += [It(f"global_load_ushort a{224+r}, v{24+(r>>1)}, {S(SB1,2)} offset:{64*(r&1)}", "b1") for r in range(4)]
mem += [It(f"global_load_dwordx4 v[56:59], v26, {S(SB2,2)}", "b2")]
mem += [It(f"s_cmp_lt_u32 s{sI}, 14\ns_cselect_b32 s{RW1+2}, {512*1792*2}, 0"), It(f"s_mov_b32 s{RW1}, s{SW1}\ns_mov_b32 s{RW1+1}, s{SW1+1}\ns_mov_b32 s{RW1+3}, 0x20000")]
mem += dma_w1(LA, 0, NW1, "w1a")
rest = [x for b in blocks[max(PRE, 1):] for x in b]
run(merge(merge(rest, B_ln1s), mem))
run(B_rows); run(B_pad)
stamp("setup")

wlg0()
st_pool[:] = [14, 16, 18, 20]
tg = [f"s_bfe_u32 s4, s{sE+1}, 0x2001d", f"s_mov_b32 s{sHT}, 0x20002000", f"s_cmp_eq_u32 s4, 1\ns_cselect_b32 s{sHT}, 0x40004000, s{sHT}",
      f"s_add_u32 s{sE}, s{sE}, 1", f"s_mov_b32 s{sE+1}, s{sE}"]
for j, r in enumerate((4, 7, 10, 13)): tg += [f"s_lshr_b64 s[4:5], s[{sE}:{sE+1}], {r}", f"s_and_b32 s{sTAG+j}, s4, {hex(MASK)}"]
tg += [f"s_cmp_eq_u32 s{sTAG}, s{sTAG+1}\ns_cselect_b32 s4, 0x1000, 0", f"s_xor_b32 s{sTAG+1}, s{sTAG+1}, s4",
       f"s_cmp_eq_u32 s{sCH}, 0\ns_cselect_b32 s4, 16, 0", f"s_lshl_b32 s{sLDT}, s{sLDT}, s4", f"s_and_b32 s{sLDT}, s{sLDT}, 0xffff0000",
       f"s_lshl_b32 s{sDSK}, s{sDSK}, s4", f"s_and_b32 s{sDSK}, s{sDSK}, 0xffff0000", f"s_mov_b32 s{sONES}, 0x3f803f80"]
e("s_mov_b32 s7, 0x3f803f80")
wvm("xs")
stamp("x_in")
for i in range(8):
    e(f"v_dot2c_f32_bf16 v52, s7, v{32+i}"); e(f"v_dot2c_f32_bf16 v53, v{32+i}, v{32+i}")
unp = []
for d in range(8): unp += [f"v_lshlrev_b32 v{64+2*d}, 16, v{40+d}", f"v_and_b32 v{65+2*d}, 0xffff0000, v{40+d}"]
run(tg[:2])
k = 2
for d in ("quad_perm:[1,0,3,2]", "quad_perm:[2,3,0,1]", "row_half_mirror", "row_mirror", "row_bcast:15 row_mask:0xa"):
    e(f"v_add_f32 v52, v52, v52 {d}"); e(f"v_add_f32 v53, v53, v53 {d}")
    if k < 6: run(tg[k:k+1]); k += 1
e(f"v_mul_f32 v52, {hx(1/512)}, v52")
e(f"v_mul_f32 v53, {hx(1/512)}, v53")
e("v_fma_f32 v53, -v52, v52, v53")
e("v_max_f32 v53, 0, v53")
e(f"v_add_f32 v53, {hx(EPS)}, v53")
e("v_rsq_f32 v53, v53")
wvm("xg")
e(f"v_mul_f32 v54, {hx(1/16)}, v53")
e(f"v_mul_f32 v52, v52, v54"); e(f"v_sub_f32 v55, {hx(C0)}, v52")
ds(f"ds_write_b64 v{vS1W}, v[54:55]")
run(unp[:12])
e("s_waitcnt vmcnt(%d) lgkmcnt(0)" % cnt(vmq, "clr")); flush_st()
e("s_barrier")
ds(f"ds_read_b128 v[84:87], v{vS1R}", "st"); ds(f"ds_read_b128 v[88:91], v{vS1R} offset:16", "st")
run(merge(tg[6:15], unp[12:]))
e(f"s_mov_b32 s4, {hx(-C0)}")
wlg0()
for par in range(2):
    for i in range(4): e(f"v_pk_fma_f32 {V(64+2*(2*i+par),2)}, {V(64+2*(2*i+par),2)}, {V(84+2*i,2)}, {V(84+2*i,2)} op_sel:[0,0,1] op_sel_hi:[1,0,1]")
    for i in range(4): e(f"v_pk_add_f32 {V(64+2*(2*i+par),2)}, {V(64+2*(2*i+par),2)}, s[4:5] op_sel_hi:[1,0]")
    for i in range(4): e(f"v_cvt_pk_bf16_f32 v{40+4*par+i}, v{64+2*(2*i+par)}, v{65+2*(2*i+par)}")
    for i in range(4): e(f"v_bfi_b32 v{40+4*par+i}, v{vMASK}, s{sTAG+i}, v{40+4*par+i}")
    vm(f"buffer_store_dwordx4 {V(40+4*par,4)}, v3, {S(RWS,4)}, s{sOB1} offen offset:{1024*par} sc1", "ob1")
stamp("u_out")

run(tg[15:])
kbg = [It(f"buffer_store_dwordx4 v[60:63], v{vZS}, {S(RWS,4)}, s{sr} offen sc1", "clr2") for sr in (sZ0, sZ1)] + dma_w1(LA, NW1, NW2, "w1a")
e(f"v_mov_b32 v80, {hx(LOG2E)}")
e(f"v_mul_f32 v81, s{sLDT}, v80"); e("v_mul_f32 v82, v48, v80")
e("v_exp_f32 v81, v81"); e("v_exp_f32 v82, v82")
ds(f"ds_write_b128 v{vXW}, v[32:35] offset:12288")
e("v_cvt_pk_bf16_f32 v81, v81, v82")
e("v_and_b32 v82, 0xffff0000, v81"); e("v_lshlrev_b32 v81, 16, v81")
e("v_mul_f32 v82, v82, v81"); e("v_mul_f32 v83, v49, v81")
e(f"v_mul_f32 v82, {hx(-LOG2E)}, v82"); e("v_mul_f32 v83, 0.15915494, v83")
e(f"v_mul_f32 v84, {hx(32.0)}, v81")
ZP = lambda p: 128 + 2 * p
ZT = lambda t: 160 + 2 * t
CE, CO, T0, T1 = 176, 178, 188, 190
e(f"v_pk_mul_f32 {V(CE,2)}, v[50:51], v[84:85] op_sel_hi:[1,0]")
anch = ((1, ZP(1)), (16, ZP(16)), (256, ZT(1)))
for k, (p, d) in enumerate(anch):
    if p == 1:
        e(f"v_exp_f32 v{86+k}, v82"); e(f"v_fract_f32 v{90+k}, v83")
    else:
        e(f"v_mul_f32 v{86+k}, {hx(p)}, v82"); e(f"v_mul_f32 v{90+k}, {hx(p)}, v83")
        e(f"v_exp_f32 v{86+k}, v{86+k}"); e(f"v_fract_f32 v{90+k}, v{90+k}")
for k, (p, d) in enumerate(anch):
    e(f"v_cos_f32 v{d}, v{90+k}"); e(f"v_sin_f32 v{d+1}, v{90+k}")
ds(f"ds_write_b128 v{vXW}, v[36:39] offset:12800")
for k, (p, d) in enumerate(anch):
    s0 = 86 + k
    e(f"v_pk_mul_f32 {V(d,2)}, {V(d,2)}, {V(s0 & ~1,2)} op_sel:[0,{s0&1}] op_sel_hi:[1,{s0&1}]")
def cmuls(lst):
    for d, a, b in lst:
        e(f"v_pk_mul_f32 {V(d,2)}, {V(a,2)}, {V(b,2)} op_sel_hi:[1,0]")
        e(f"v_pk_fma_f32 {V(d,2)}, {V(a,2)}, {V(b,2)}, {V(d,2)} op_sel:[1,1,0] op_sel_hi:[0,1,1] neg_lo:[1,0,0]")
rot = [0]
h1_loads = [It(f"buffer_load_dwordx4 v[32:35], v{vH1}, {S(RWS,4)}, s{sG1a} offen sc1", "h1"),
            It(f"buffer_load_dwordx4 v[36:39], v{vH1}, {S(RWS,4)}, s{sG1b} offen sc1", "h1")]
H1AT = OPT.get("h1at", 32); KBN = OPT.get("kbgn", 20)
def put(r, jj, a, b, neg=False):
    t = 92 + 2 * (rot[0] % 2); rot[0] += 1
    n = "-" if neg else ""
    e(f"v_cvt_pk_bf16_f32 v{t}, v{a}, {n}v{a+1}" if a is not None else f"v_mov_b32 v{t}, 0x3f80")
    e(f"v_cvt_pk_bf16_f32 v{t+1}, v{b}, {n}v{b+1}")
    ds(f"ds_write2st64_b32 v{vTW+r}, v{t}, v{t+1} offset0:{17*jj} offset1:{17*(jj+1)}")
    if rot[0] <= KBN: run(kbg[(rot[0]-1) * len(kbg) // KBN: rot[0] * len(kbg) // KBN])
    if rot[0] == H1AT: run(h1_loads)
cmuls([(T0, ZP(16), ZP(16)), (T1, T0, T0), (T0, T1, T1), (CO, CE, T0)])
put(0, 0, CE, CO, True)
cur = (CE, CO)
for r in range(1, 8):
    nx = (184, 186) if cur[0] == CE else (CE, CO)
    cmuls([(nx[0], cur[0], ZP(16)), (nx[1], cur[1], ZP(16))]); put(r, 0, nx[0], nx[1], True); cur = nx
cmuls([(ZP(2), ZP(1), ZP(1)), (ZP(4), ZP(2), ZP(2)), (ZP(8), ZP(4), ZP(4))])
put(0, 2, None, ZP(8))
more = {1: (ZT(2), ZT(1), ZT(1)), 2: (ZT(3), ZT(2), ZT(1)), 3: (ZP(3), ZP(2), ZP(1)), 4: (ZT(4), ZT(2), ZT(2)),
        5: (ZP(5), ZP(4), ZP(1)), 6: (ZP(6), ZP(4), ZP(2)), 7: (ZP(7), ZP(4), ZP(3))}
for r in range(1, 8): cmuls([more[r], (ZP(8+r), ZP(8), ZP(r))]); put(r, 2, ZP(r), ZP(8+r))
have = {1, 2, 3, 4}
def rowval(n, tmp):
    k, i = n
    if k == "R0": return ZP(16)
    t, st = {"R1": (1, 2), "A": (2, 4), "B": (3, 4)}.get(k) or (int(k[1]), 8)
    if t not in have: cmuls([(ZT(t), ZT(4), ZT(t - 4))]); have.add(t)
    if i == 0: return ZT(t)
    cmuls([(tmp, ZT(t), ZP(st * i))]); return tmp
for j in (0, 2):
    for c in range(8): put(c, 4 + j, rowval(CLS[c][j], T0), rowval(CLS[c][j+1], T1))
assert rot[0] == 32
wlg0(); e("s_barrier")
stamp("tables")
def rdK(ks):
    if ks < 8:
        ds(f"ds_read_b128 {V(128+12*ks,4)}, v{vTL} offset:{64*ks}")
        for t in range(2): ds(f"ds_read_b128 {V(132+12*ks+4*t,4)}, v{vTR+t} offset:{64*ks}", ("ka", ks))
    elif ks == 8:
        ds(f"ds_read_b128 {V(vX,4)}, v{vXR} offset:12288"); ds(f"ds_read_b128 {V(vX+4,4)}, v{vXR} offset:12416")
for ks in range(4): rdK(ks)
kf = B_conv + ["v_and_b32 v30, 127, v0", "v_cmp_eq_u32 vcc, 0, v30", f"v_mov_b32 v30, {hx(16.0)}", f"v_mul_f32 v30, s{sDSK}, v30", f"v_cndmask_b32 v{vD}, 0, v30, vcc",
               "s_bitcmp1_b32 s6, 0"]
run(kf[:8])
def kstep(ks):
    wlg(("ka", ks))
    for t in range(2): e(f"v_mfma_f32_16x16x32_bf16 {V(64+4*t,4)}, {V(132+12*ks+4*t,4)}, {V(128+12*ks,4)}, {V(64+4*t,4) if ks else 0}")
    rdK(ks + 4)
sched([lambda ks=ks: kstep(ks) for ks in range(8)], (kf[8:],))
e("s_nop 3")
e("s_cbranch_scc1 L_kw1")
cv = lambda d, lo, hi: e(f"v_cvt_pk_bf16_f32 v{d}, v{lo}, v{hi}")
o0 = 2 * (2044 - 256)
e(f"v_add_f32 v64, v64, v{vD}")
cv(40, 67, 66); cv(41, 65, 64); ds(f"ds_write_b64 v{vKW-1}, v[40:41] offset:{o0+512}")
cv(42, 71, 67); cv(43, 66, 65); ds(f"ds_write_b64 v{vKW-1}, v[42:43] offset:{o0+512+KCOPY}")
cv(44, 70, 69); cv(45, 68, 68); ds(f"ds_write_b64 v{vKW-1}, v[44:45] offset:{o0}")
cv(46, 70, 70); cv(47, 69, 68); ds(f"ds_write_b64 v{vKW-1}, v[46:47] offset:{o0+KCOPY}")
e("s_mov_b64 exec, 1"); ds(f"ds_write_b16_d16_hi v{vKW-1}, v41 offset:{o0+512+KCOPY+8}"); e("s_mov_b64 exec, -1")
lab("L_kw2")
def kw1():
    lab("L_kw1")
    o1 = 2 * (2040 - 512); o2 = 2 * (2032 - 1024)
    cv(40, 66, 66); cv(41, 65, 65); cv(42, 65, 64); cv(43, 64, 64); e(f"ds_write_b128 v{vKW}, v[40:43] offset:{o1}")
    cv(44, 66, 66); cv(45, 66, 65); cv(46, 65, 65); cv(47, 64, 64); e(f"ds_write_b128 v{vKW}, v[44:47] offset:{o1+KCOPY}")
    cv(72, 70, 70); cv(73, 70, 70); cv(74, 69, 69); cv(75, 69, 69); e(f"ds_write_b128 v{vKW+1}, v[72:75] offset:{o2}")
    cv(76, 69, 69); cv(77, 69, 68); cv(78, 68, 68); cv(79, 68, 68); e(f"ds_write_b128 v{vKW+1}, v[76:79] offset:{o2+16}")
    cv(74, 70, 69); e(f"ds_write_b128 v{vKW+1}, v[72:75] offset:{o2+KCOPY}")
    cv(77, 69, 69); e(f"ds_write_b128 v{vKW+1}, v[76:79] offset:{o2+KCOPY+16}")
    e("s_branch L_kw2")
tail.append(kw1)
stamp("K_out")

wvm("h1")
lab("L_h1chk")
for d in range(8): e(f"v_xor_b32 v{32+d}, s{sTAG+(d&3)}, v{32+d}")
e("v_or3_b32 v40, v32, v33, v34"); e("v_or3_b32 v41, v35, v36, v37"); e("v_or3_b32 v40, v40, v38, v39")
e(f"v_bitop3_b32 v40, v40, v41, v{vMASK} bitop3:0xa8")
e("v_cmp_ne_u32 vcc, 0, v40")
e("s_mov_b32 s4, 0x30003000")
e("s_cbranch_vccnz L_h1retry")
lab("L_h1ok")
retry("h1", h1_loads)
for g in range(2):
    b = 32 + 4 * g; o = 40 + 4 * g
    e(f"v_perm_b32 v{o}, v{b+1}, v{b}, s{sPERMLO}"); e(f"v_perm_b32 v{o+1}, v{b+3}, v{b+2}, s{sPERMLO}")
    e(f"v_perm_b32 v{o+2}, v{b+1}, v{b}, s{sPERMHI}"); e(f"v_perm_b32 v{o+3}, v{b+3}, v{b+2}, s{sPERMHI}")
    for i in range(4): e(f"v_or_b32 v{o+i}, s4, v{o+i}")
    ds(f"ds_write_b64 v{vUW}, {V(o,2)} offset:{2048*g}"); ds(f"ds_write_b64 v{vUW}, {V(o+2,2)} offset:{2048*g+USZ}")
count("h1")
wlg0(); e("s_barrier")
stamp("u_in")

FA = lambda st, d1: 128 + 64 * (st & 1) + 4 * d1
FB = lambda st, sg: 160 + 64 * (st & 1) + 4 * sg
def rdC(st):
    out = []
    for t in range(8):
        for hf in range(2):
            o = 128 * (1 - (t & 1)) + 16 * (3 - st) + 2 * hf
            out.append(It(f"ds_read2_b32 {V(FA(st,t)+2*hf,2)}, v{vA+(t>>1)} offset0:{o} offset1:{o+1}", ("c", st, t)))
        out.append(It(f"ds_read_b128 {V(FB(st,t),4)}, v{vB} offset:{512*t+64*(3-st)}", ("c", st, t)))
    return out
first = rdC(0)
run(first[:12])
e("s_cmp_lg_u32 s2, 0"); e("s_cbranch_scc1 L_noepoch")
e(f"v_mov_b32 v32, s{sE}"); e(f"v_mov_b32 v33, s{sHT}"); e("v_mov_b32 v28, 0")
e(f"buffer_store_dwordx2 v[32:33], v28, {S(RWS,4)}, 0 offen sc1")
lab("L_noepoch")
ACC = lambda t: 64 + 4 * t
seq = [(t, d1, t - d1) for t in range(8) for d1 in range(t + 1)]
def cmf(st, t, d1, sg):
    if OPT.get("fine") and t == 0 and st > 0: stamp(f"s{st}")
    if d1 == 0 and (st < 3 or t == 0):
        if st < 3: wlg(("c", st, t))
        else: wlg0(); e("s_barrier")
    e(f"v_mfma_f32_16x16x32_bf16 {V(ACC(t),4)}, {V(FA(st,d1),4)}, {V(FB(st,sg),4)}, {0 if (st == 0 and d1 == 0) else V(ACC(t),4)}")
main = [lambda st=st, q=q: cmf(st, *q) for st in range(4) for q in seq]
xun = []
for d in range(8): xun += [f"v_lshlrev_b32 v{32+2*d}, 16, v{vX+d}", f"v_and_b32 v{33+2*d}, 0xffff0000, v{vX+d}"]
redw = [([It(f"ds_write_b128 v{vRW}, {V(ACC(t),4)} offset:{1024*t}")], min(143, 108 + t*(t+1)//2 + t + 6), min(143, 108 + t*(t+1)//2 + t + 6) + 1) for t in range(8)]
R0A = OPT.get("r0a", 36); R0B = OPT.get("r0b", 130)
sched(main, (first[12:], 0, 6), (rdC(1), 6, 34), (rdC(2), 36, 69), (rdC(3), 72, 104),
      (dma_w1(LA, NW2, 16, "w1a"), 0, R0A), (dma_w2(range(7), LB, "w2r0"), R0A, R0B),
      (B_w2, 0, R0A), (merge(B_post, B_posts) + xun, R0A, 140), *redw)
stamp("conv")
wlg0()
e("s_barrier")
for k in range(2):
    for src in range(4): ds(f"ds_read_b128 {V(64+16*k+4*src,4)}, v{vRR} offset:{8192*src+1024*k}", ("red", k))
for k in range(2):
    b = 64 + 16 * k
    wlg(("red", k))
    for c in range(2):
        for hf in range(2): e(f"v_pk_add_f32 {V(b+8*c+2*hf,2)}, {V(b+8*c+2*hf,2)}, {V(b+8*c+4+2*hf,2)}")
    for i in range(4): e(f"v_cvt_pk_bf16_f32 v{48+4*k+i}, v{b+i}, v{b+8+i}")
    vm(f"buffer_store_dwordx4 {V(48+4*k,4)}, v3, {S(RWS,4)}, s{sOB2} offen offset:{1024*k} sc1", "ob2")
stamp("a_out")

run(w2_round(0x10000) + [f"s_lshl_b32 s4, s{sB}, 8", "s_sub_u32 s4, 128, s4"] + [f"v_add_u32 v{20+i}, s4, v{20+i}" for i in range(4)])
wvm("w2r0")
run(tr_w2(0, range(7)))
wlg0()
stamp("r0")
run(dma_w2(range(7), LB, "w2r2"))
h2_loads = [It(f"buffer_load_dword v{128+d}, v{vAG}, {S(RWS,4)}, s{sO8+d} offen sc1", "h2") for d in range(8)]
wvm("ob2")
run(h2_loads)
stamp("poll2")
wvm("w2r2")
run(tr_w2(2, range(7)))
e("v_mov_b32 v52, 0"); e("v_mov_b32 v53, 0")
wvm("h2")
lab("L_h2chk")
e("v_max3_u32 v60, v128, v129, v130"); e("v_max3_u32 v61, v131, v132, v133"); e("v_max3_u32 v60, v60, v134, v135"); e("v_max_u32 v60, v60, v61")
e("v_cmp_eq_u32 vcc, -1, v60")
e("s_cbranch_vccnz L_h2retry")
lab("L_h2ok")
retry("h2", h2_loads)
count("h2")
stamp("a_in")
for d in range(8):
    e(f"v_lshlrev_b32 v{64+2*d}, 16, v{128+d}"); e(f"v_and_b32 v{65+2*d}, 0xffff0000, v{128+d}")
for d in range(8): e(f"v_pk_add_f32 {V(64+2*d,2)}, {V(64+2*d,2)}, {V(32+2*d,2)}")
for d in range(8): e(f"v_cvt_pk_bf16_f32 v{40+d}, v{64+2*d}, v{65+2*d}")
for d in range(8):
    e(f"v_dot2c_f32_bf16 v52, s{sONES}, v{40+d}"); e(f"v_dot2c_f32_bf16 v53, v{40+d}, v{40+d}")
run(unp[:2])
e("v_add_f32 v52, v52, v52 row_ror:8"); e("v_add_f32 v53, v53, v53 row_ror:8")
run(unp[2:4])
e("v_permlane16_swap_b32 v52, v53")
e("v_add_f32 v52, v52, v53")
e("v_mov_b32 v53, v52")
run(unp[4:6])
e("v_permlane32_swap_b32 v52, v53")
e("v_add_f32 v52, v52, v53")
ds(f"ds_write_b32 v{vS2W}, v52")
run(unp[6:10])
wlg0(); e("s_barrier")
ds(f"ds_read2st64_b64 v[32:35], v{vS2R} offset0:0 offset1:4"); ds(f"ds_read2st64_b64 v[36:39], v{vS2R} offset0:8 offset1:12")
e(f"s_mov_b32 s4, {hx(1/512)}")
run(unp[10:])
wlg0()
e("v_pk_add_f32 v[32:33], v[32:33], v[34:35]"); e("v_pk_add_f32 v[36:37], v[36:37], v[38:39]"); e("v_pk_add_f32 v[32:33], v[32:33], v[36:37]")
e("v_pk_mul_f32 v[32:33], v[32:33], s[4:5] op_sel_hi:[1,0]")
e("v_fma_f32 v33, -v32, v32, v33"); e("v_max_f32 v33, 0, v33")
e(f"v_add_f32 v34, {hx(EPS)}, v33"); e("v_rsq_f32 v34, v34")
e("v_mul_f32 v33, v33, v34"); e(f"v_fmaak_f32 v33, v33, v34, {hx(EPS)}"); e("v_rsq_f32 v33, v33")
e(f"v_mul_f32 v34, {hx(SS)}, v34"); e("v_mul_f32 v34, v34, v33"); e("v_mul_f32 v35, -v32, v34")
for k in range(2):
    for d in range(4 * k, 4 * k + 4): e(f"v_pk_fma_f32 {V(64+2*d,2)}, {V(64+2*d,2)}, v[34:35], v[34:35] op_sel:[0,0,1] op_sel_hi:[1,0,1]")
    for d in range(4 * k, 4 * k + 4): e(f"v_cvt_pk_bf16_f32 v{48+d}, v{64+2*d}, v{65+2*d}")
    vm(f"buffer_store_dwordx4 {V(48+4*k,4)}, v{vZS}, {S(RWS,4)}, s{sZ0+k} offen sc1", "zst")
stamp("z_out")

G1 = lambda r: 64 + 16 * r
WF = lambda n: 224 + 4 * (n % 8)
wseq = [(s, r) for s in range(32) for r in (0, 1)] + [(s, 2) for s in range(32)] + [(s, 3) for s in range(32)]
def rdW(n):
    if n >= len(wseq): return
    s, r = wseq[n]
    if n == 64: e(f"v_add_u32 v{vTR0}, {LB}, v{vTR0}"); e(f"v_add_u32 v{vTR1}, {LB}, v{vTR1}")
    for hf in range(2): ds(f"ds_read_b64_tr_b16 {A(WF(n)+2*hf,2)}, v{vTR0+(r&1)} offset:{2048*s+512*hf}", ("w", n))
DEPTH = 6
adr = [f"s_lshl_b32 s4, s{sG}, 2", "s_add_u32 s4, s4, s6", "s_lshl_b32 s4, s4, 15", f"s_add_u32 s4, s4, {ZB}", f"s_lshl_b32 s5, s{sCB}, 12" if ROT else "s_mov_b32 s5, 0"]
for c in range(8): adr += [f"s_add_u32 s{sO8+c}, s4, s5"] + (["s_add_u32 s5, s5, 4096", "s_and_b32 s5, s5, 0x7fff"] if c < 7 else [])
adr += w2_round(0x18000) + t2_move(hex(2**32 - LB))
sh = bf16_rne(SS); sl = bf16_rne(SS - bf16_val(sh))
for r in range(4):
    adr += [f"v_accvgpr_read_b32 v{32+4*r}, a{224+r}"] + [f"v_mov_b32 v{32+4*r+i}, 0" for i in range(1, 4)] + [f"v_lshl_or_b32 v{32+4*r}, v{32+4*r}, 16, v{32+4*r}"]
adr += ["v_cmp_gt_u32 vcc, 32, v1", f"v_mov_b32 v48, {hex(sh | (sl << 16))}", "v_mov_b32 v49, 0", "v_mov_b32 v50, 0", "v_mov_b32 v51, 0", "v_cndmask_b32 v48, 0, v48, vcc",
        f"s_mov_b32 s{sCNT}, 0"]
adr += [It(lambda n=n: rdW(n)) for n in range(DEPTH)]
adr += [f"v_mfma_f32_32x32x16_bf16 {V(G1(r),16)}, {V(32+4*r,4)}, v[48:51], 0" for r in range(4)]
run(merge(dma_w1(LB, 0, 16, "w1b"), adr))
stamp("w1b")
e(f"s_cmp_ge_u32 s{sI}, 14"); e("s_cbranch_scc1 L_idle")
HF = lambda q, tt: 128 + 8 * (q % 16) + 4 * tt
def h_load(q0, q1):
    out = []
    for q in range(q0, min(q1, 28)):
        r, n = divmod(q, 7)
        out += [It(f"buffer_load_dwordx4 {V(HF(q,tt),4)}, v{(8 if r >> 1 else 18)+tt}, {S(RWS,4)}, s{sKS+n} offen offset:{2048*(r&1)} sc1", ("h", q >> 1)) for tt in range(2)]
    return out
def w2_mid():
    if OPT.get("nomid"): return [], []
    return dma_w2(range(7), LA, "w2r1"), w2_round(0x10000) + dma_w2([4], LA + 14336, "w2r3") + dma_w2(range(4), LC, "w2r3", sT1)
w2_late = lambda: [] if OPT.get("nomid") else dma_w2([5, 6], LB, "w2r3b")
HA0 = OPT.get("ha0", 6); HA = OPT.get("ha", 6); HE = OPT.get("he", 0)
def idle():
    lab("L_idle")
    e("s_waitcnt vmcnt(0) lgkmcnt(0)"); e("s_barrier")
    a, b = w2_mid(); run(a + b + w2_late())
    lab("L_idle1")
    e(f"s_add_u32 s{sCNT}, s{sCNT}, 1"); e(f"s_cmp_gt_u32 s{sCNT}, {SPIN}"); e("s_cbranch_scc1 L_idle2")
    e(f"buffer_load_dword v32, v18, {S(RWS,4)}, s{sKS} offen offset:2052 sc1")
    e("s_waitcnt vmcnt(0)")
    e(f"v_bitop3_b32 v32, v32, s{sHT}, v27 bitop3:0x28"); e("v_cmp_ne_u32 vcc, 0, v32"); e("s_cbranch_vccnz L_idle1")
    lab("L_idle2")
    run(h_load(0, HA0))
    e("s_waitcnt vmcnt(0)"); e("s_branch L_g2")
tail.append(idle)

ZF = lambda s: 128 + 4 * s
def z_chunk(c0, c1):
    return [It(f"buffer_load_dwordx4 {V(ZF(4*c+i),4)}, v{vL16}, {S(RWS,4)}, s{sO8+c} offen offset:{1024*i} sc1", ("z", c)) for c in range(c0, min(c1, 8)) for i in range(4)]
ZA = OPT.get("za", 2)
wvm("zst")
run(z_chunk(0, ZA))
stamp("zpoll")
def g1_mfma(n):
    s, r = wseq[n]
    if n % 2 == 0: wlg(("w", n + 1))
    e(f"v_mfma_f32_32x32x16_bf16 {V(G1(r),16)}, {A(WF(n),4)}, {V(ZF(s),4)}, {V(G1(r),16)}")
    rdW(n + DEPTH)
def chk16(name, base):
    o = [f"v_max3_u32 v60, v{base}, v{base+1}, v{base+2}", f"v_max3_u32 v61, v{base+3}, v{base+4}, v{base+5}"]
    for i in range(6, 16, 4):
        o.append(f"v_max3_u32 v60, v60, v{base+i}, v{base+i+1}")
        if i + 2 < 16: o.append(f"v_max3_u32 v61, v61, v{base+i+2}, v{base+i+3}")
    return o + ["v_max_u32 v60, v60, v61", "v_cmp_eq_u32 vcc, -1, v60", f"s_cbranch_vccnz L_{name}retry"]
def chkH(name, base):
    o = [f"v_bitop3_b32 v{60+g}, v{base+4*g+1}, v{base+4*g+3}, s{sHT} bitop3:0x7e" for g in range(4)]
    return o + ["v_or3_b32 v60, v60, v61, v62", "v_bitop3_b32 v60, v60, v63, v27 bitop3:0xa8", "v_cmp_ne_u32 vcc, 0, v60", f"s_cbranch_vccnz L_{name}retry"]
def checked(name, tag, base, reload, nlater, fn):
    c = fn(name, base)
    retry(name, reload, nlater, c)
    return [It(lambda: wvm(tag))] + c[:-1] + [It(lambda: (e(c[-1]), lab(f"L_{name}ok")))]
def z_checked(c, top): return checked(f"z{c}", ("z", c), ZF(4 * c), z_chunk(c, top), 4 * (top - c - 1), chk16)
run(z_checked(0, ZA))
count("z0")
stamp("z_in")
CK = OPT.get("ck", 5)
for c in range(8):
    if c == 7: e("s_barrier")
    sched([lambda n=n: g1_mfma(n) for n in range(8 * c, 8 * c + 8)], (z_chunk(c + ZA, c + ZA + 1), 0, 4),
          (z_checked(c + 1, min(8, c + ZA + 1)) if c < 7 else [], CK, 8))
    if OPT.get("fine") and c < 7: stamp(f"a{c}")
count("z")
stamp("g1a")
e(f"s_mov_b32 s4, {hx(GC)}")
def gelu(r, pk):
    a = G1(r); out = []
    for hh in range(2):
        b = a + 8 * hh; t = 40
        if pk:
            for i in range(0, 8, 2): out.append(f"v_pk_fma_f32 {V(t+i,2)}, {V(b+i,2)}, {V(b+i,2)}, s[4:5] op_sel_hi:[1,1,0]")
            for i in range(0, 8, 2): out.append(f"v_pk_mul_f32 {V(t+i,2)}, {V(t+i,2)}, {V(b+i,2)}")
        else:
            for i in range(8): out.append(f"v_fma_f32 v{t+i}, v{b+i}, v{b+i}, s4")
            for i in range(8): out.append(f"v_mul_f32 v{t+i}, v{t+i}, v{b+i}")
        for i in range(8): out.append(f"v_exp_f32 v{t+i}, v{t+i}")
        if pk:
            for i in range(0, 8, 2): out.append(f"v_pk_fma_f32 {V(t+i,2)}, {V(t+i,2)}, s[{sHT}:{sLAM}], s[{sHT}:{sLAM}] op_sel:[0,1,1] op_sel_hi:[1,1,1]")
        else:
            for i in range(8): out.append(f"v_fma_f32 v{t+i}, v{t+i}, s{sLAM}, s{sLAM}")
        for i in range(8): out.append(f"v_rcp_f32 v{t+i}, v{t+i}")
        if pk:
            for i in range(0, 8, 2):
                out.append(f"v_pk_fma_f32 {V(t+i,2)}, {V(t+i,2)}, {V(b+i,2)}, s[{sCQ}:{sFIN}] op_sel_hi:[1,1,0]" if i & 2 else f"v_pk_mul_f32 {V(t+i,2)}, {V(t+i,2)}, {V(b+i,2)}")
            for i in (2, 6): out.append(f"v_pk_add_f32 {V(t+i,2)}, {V(t+i,2)}, s[{sCQ}:{sFIN}] op_sel_hi:[1,0] neg_lo:[0,1] neg_hi:[0,1]")
        else:
            for i in range(8): out.append(f"v_fma_f32 v{t+i}, v{t+i}, v{b+i}, s{sCQ}" if i & 2 else f"v_mul_f32 v{t+i}, v{t+i}, v{b+i}")
            for i in (2, 3, 6, 7): out.append(f"v_subrev_f32 v{t+i}, s{sCQ}, v{t+i}")
        for i in range(4): out.append(f"v_cvt_pk_bf16_f32 v{32+4*hh+i}, v{t+2*i}, v{t+2*i+1}")
        for i in (1, 3): out.append(f"v_or_b32 v{32+4*hh+i}, s{sHT}, v{32+4*hh+i}")
        out.append(f"buffer_store_dwordx4 {V(32+4*hh,4)}, v{vL16}, {S(RWS,4)}, s{sHa if r < 2 else sHb} offen offset:{2048*(r&1)+1024*hh} sc1")
    return items(out, "hst2")
m = [lambda n=n: g1_mfma(n) for n in range(64, 128)]
m[0](); m[1](); e("s_barrier")
ma, mb = w2_mid(); MS = OPT.get("ms", 36)
sched(m[2:], (ma, 0, MS), (mb, MS, 62 - HE), (h_load(0, HE), 62 - HE, 62), (gelu(0, False) + gelu(1, False),))
stamp("g1b")
g23 = gelu(2, True) + gelu(3, True)
GL = OPT.get("gl", 100)
run(g23[:8]); e("s_barrier")
run(merge(g23[8:GL], h_load(HE, HA0) + w2_late()) + g23[GL:])

lab("L_g2")
stamp("gelu")
e(f"s_mov_b32 s{sCNT}, 0")
run(h_load(HA0, HA))
G2 = lambda ct, tt: 64 + 32 * tt + 16 * ct
def g2_mfma(q, ct, tt):
    r, n = divmod(q, 7)
    if n == 0 and ct == 0 and tt == 0 and r in (1, 3): wlg(("w2", r))
    e(f"v_mfma_f32_32x32x16_bf16 {V(G2(ct,tt),16)}, {A(W2R(r,n,ct),4)}, {V(HF(q,tt),4)}, {V(G2(ct,tt),16) if q else 0}")
def h_checked(c, top): return checked(f"hh{c}", ("h", c), HF(2 * c, 0), h_load(2 * c, top), 2 * (top - 2 * c - 2), chkH)
run(h_checked(0, HA))
count("h0")
stamp("h_in")
NMAIN = OPT.get("nmain", 22)
t1 = tr_w2(1, range(7)) + tr_w2(3, [4], 14336)
t3 = t2_move(LB) + tr_w2(3, [5, 6]) + [f"s_sub_u32 s4, {LC-LB}, s{sT1}"] + t2_move("s4") + tr_w2(3, range(4))
rld = [It(f"buffer_load_dwordx4 {V(48+4*k,4)}, v24, {S(RWS,4)}, s{sRA+k} offen sc1", "ra") for k in range(2)]
rld += [It(f"global_load_dwordx4 {V(40+4*k,4)}, v{16+k}, {S(SX,2)}", "ra") for k in range(2)]
res = []
for d in range(8):
    res += [f"v_lshlrev_b32 v20, 16, v{32+d}", f"v_and_b32 v21, 0xffff0000, v{32+d}", f"v_lshlrev_b32 v22, 16, v{40+d}", f"v_and_b32 v23, 0xffff0000, v{40+d}",
            "v_add_f32 v20, v20, v22", "v_add_f32 v21, v21, v23", f"v_cvt_pk_bf16_f32 v{48+d}, v20, v21"]
for d in range(8): res += [f"v_lshlrev_b32 v{32+2*d}, 16, v{48+d}", f"v_and_b32 v{33+2*d}, 0xffff0000, v{48+d}"]
for d in range(4): res += [f"v_lshlrev_b32 v{48+2*d}, 16, v{56+d}", f"v_and_b32 v{49+2*d}, 0xffff0000, v{56+d}"]
for d in range(16): res += [f"v_add_f32 v{32+d}, v{32+d}, v{48+(d&7)}"]
extra = {0: t1[:11], 1: rld[:2] + t1[11:22], 2: rld[2:] + t1[22:], 3: t3[:14], 4: t3[14:],
         5: [It(lambda: wvm("ra")), "ds_write_b128 v25, v[48:51]", "ds_write_b128 v25, v[52:55] offset:1280"],
         6: [It(wlg0)] + [f"ds_read2_b32 {V(32+4*k+2*i,2)}, v26 offset0:{8*k+40*i} offset1:{8*k+40*i+20}" for k in range(2) for i in range(2)],
         7: [It(wlg0)] + res[:20], 8: res[20:40], 9: res[40:60]}
assert HA0 <= 6 and NMAIN >= 20
res = res[60:]
nxt = HA
for c in range(NMAIN // 2):
    m = [lambda q=q, ct=ct, tt=tt: g2_mfma(q, ct, tt) for q in (2 * c, 2 * c + 1) for tt in range(2) for ct in range(2)]
    n2 = min(28, nxt + 2) if c < NMAIN // 2 - 1 else 28
    ld = h_load(nxt, n2); nxt = n2
    sched(m, (ld, 0, 4), (extra.get(c, []), 0, 8), (h_checked(c + 1, nxt), CK, 8))
    if OPT.get("fine"): stamp(f"c{c}")
tiles = [(ct, tt) for tt in range(2) for ct in range(2)]
def red_w(ct, tt): return [f"ds_write_b128 v{10+g}, {V(G2(ct,tt)+4*g,4)} offset:{8192*tt+128*ct}" for g in range(4)]
prev = None; NT = 28 - NMAIN
for i, (ct, tt) in enumerate(tiles):
    m = [lambda q=q: g2_mfma(q, ct, tt) for q in range(NMAIN, 28)]
    if i == 0:
        sched(m, *[(h_checked(c, 28), 2 * c - NMAIN - 2, 2 * c - NMAIN) for c in range(NMAIN // 2 + 1, 14)])
        count("h")
    else:
        sched(m, (res[(i-1) * 12:i * 12], 0, 2), (red_w(*prev), 2, NT))
    prev = (ct, tt)
stamp("g2m")
run(red_w(*prev))
wlg0(); e("s_barrier")
stamp("g2")
for k in range(2):
    for src in range(4):
        for hf in range(2): ds(f"ds_read_b128 {V(64+32*k+8*src+4*hf,4)}, v{14+hf} offset:{16384*src+2048*k}", ("r2", k, src))
for k in range(2):
    b = 64 + 32 * k
    wlg(("r2", k, 1))
    for i in range(0, 8, 2): e(f"v_pk_add_f32 {V(b+i,2)}, {V(b+i,2)}, {V(b+8+i,2)}")
    wlg(("r2", k, 3))
    for i in range(0, 8, 2): e(f"v_pk_add_f32 {V(b+16+i,2)}, {V(b+16+i,2)}, {V(b+24+i,2)}")
    for i in range(0, 8, 2): e(f"v_pk_add_f32 {V(b+i,2)}, {V(b+i,2)}, {V(b+16+i,2)}")
    for i in range(0, 8, 2): e(f"v_pk_fma_f32 {V(b+i,2)}, {V(b+i,2)}, s[{sCQ}:{sFIN}], {V(32+8*k+i,2)} op_sel:[0,1,0] op_sel_hi:[1,1,1]")
    for i in range(4): e(f"v_cvt_pk_bf16_f32 v{48+4*k+i}, v{b+2*i}, v{b+2*i+1}")
    vm(f"global_store_dwordx4 v{16+k}, {V(48+4*k,4)}, {S(SOUT,2)}", "out")
if OPT["stamps"]:
    stamp("end"); wlg0()
    e("s_lshl_b32 s4, s2, 2"); e("s_add_u32 s4, s4, s6"); e("s_lshl_b32 s4, s4, 8"); e(f"s_add_u32 s4, s4, {STAMP}")
    e("v_lshlrev_b32 v30, 2, v1")
    e(f"buffer_store_dword v31, v30, {S(RWS,4)}, s4 offen")
if OPT.get("diag"):
    e("v_readfirstlane_b32 s10, v31")
    lab("L_diag")
    e("s_memrealtime s[14:15]"); e("s_waitcnt lgkmcnt(0)"); e("s_sub_u32 s14, s14, s10"); e(f"s_cmp_lt_u32 s14, {OPT['diag']}"); e("s_cbranch_scc1 L_diag")
e("s_endpgm")
i = 0
while i < len(tail): tail[i](); i += 1
lab("L_end")
e("s_endpgm")

body, added = hz.fix(L, verbose=OPT.get("hz", False))
if OPT.get("align", 1): body, pads = hz.align(body)
if OPT["stamps"]: print("model:", " ".join("%s %d" % x for x in zip([n for n in stamp_names if n[0] != "#"], hz.simulate(body))))
post = f""".section .rodata,"a"
.p2align 6
.amdhsa_kernel {lab_name}
  .amdhsa_next_free_vgpr 512
  .amdhsa_next_free_sgpr 102
  .amdhsa_accum_offset 256
  .amdhsa_group_segment_fixed_size 0
  .amdhsa_kernarg_size 120
  .amdhsa_user_sgpr_count 2
  .amdhsa_user_sgpr_kernarg_segment_ptr 1
  .amdhsa_system_sgpr_workgroup_id_x 1
.end_amdhsa_kernel
"""
open(sys.argv[1], "w").write(pre + "\n".join(body) + "\n" + post)
if OPT["stamps"]: open(sys.argv[1] + ".stamps", "w").write(" ".join(stamp_names))
print("instructions:", sum(1 for x in body if hz.Ins(x).is_ins), "nop states added:", added)
```

```python
import re

TRANS = ("v_exp_f32", "v_log_f32", "v_rcp_f32", "v_rsq_f32", "v_sqrt_f32", "v_sin_f32", "v_cos_f32")
REG = re.compile(r"^(-|abs\()?([vas])(?:(\d+)|\[(\d+):(\d+)\])\)?$")


def regs_of(tok):
    tok = tok.strip()
    if tok in ("vcc",): return {("s", "vcc")}
    if tok in ("exec",): return {("s", "exec")}
    if tok == "m0": return {("s", "m0")}
    m = REG.match(tok)
    if not m: return set()
    k = m.group(2)
    if m.group(3) is not None: return {(k, int(m.group(3)))}
    return {(k, i) for i in range(int(m.group(4)), int(m.group(5)) + 1)}


class Ins:
    def __init__(self, text):
        self.text = text
        t = text.split(";")[0].strip()
        self.is_ins = bool(t) and not t.endswith(":") and not t.startswith(".")
        self.kind = None; self.w = set(); self.r = set(); self.states = 0
        self.srcC = set(); self.srcAB = set(); self.dpp = False; self.wide_store = set(); self.op = ""
        if not self.is_ins: return
        parts = t.split(None, 1)
        op = parts[0]; self.op = op
        rest = parts[1] if len(parts) > 1 else ""
        ops = []; cur = ""; depth = 0
        for ch in rest:
            if ch == "[": depth += 1
            if ch == "]": depth -= 1
            if ch == "," and depth == 0: ops.append(cur); cur = ""
            else: cur += ch
        ops.append(cur)
        last = ops[-1].strip().split()
        mods = " ".join(last[1:]) if last else ""
        if last: ops[-1] = last[0]
        ops = [o.strip() for o in ops if o.strip()]
        self.states = 1
        R = [regs_of(o) for o in ops]
        if op == "s_nop":
            self.kind = "nop"; self.states = int(ops[0], 0) + 1
        elif op.startswith("v_mfma"):
            self.kind = "mfma"; self.passes = 8 if "32x32" in op else 4
            self.w = R[0]; self.srcAB = R[1] | R[2]; self.srcC = R[3]; self.r = self.srcAB | self.srcC
        elif op.startswith("v_"):
            self.kind = "valu"
            base = op.replace("_e32", "").replace("_e64", "").replace("_dpp", "").replace("_sdwa", "")
            self.base = base
            self.trans = base in TRANS
            self.dot = base.startswith("v_dot")
            self.dpp = any(k in mods for k in ("quad_perm", "row_", "wave_"))
            self.w = set(R[0]); self.r = set().union(*R[1:]) if len(R) > 1 else set()
            if base.startswith("v_permlane") or base == "v_swap_b32":
                self.w = R[0] | R[1]; self.r = R[0] | R[1]
            if base in ("v_fmac_f32", "v_dot2c_f32_bf16", "v_writelane_b32") or self.dpp: self.r |= R[0]
            if base in ("v_add_co_u32", "v_addc_co_u32", "v_sub_co_u32"):
                self.w = R[0] | R[1]; self.r = set().union(*R[2:])
            if self.dot:
                self.srcAB = R[1] | R[2]; self.srcC = R[3] if len(R) > 3 else R[0]
        elif op.startswith("ds_"):
            self.kind = "ds"
            if op.startswith("ds_read") or op.startswith("ds_bpermute") or op.startswith("ds_swizzle"):
                self.w = R[0]; self.r = set().union(*R[1:])
            else:
                self.r = set().union(*R)
        elif op.startswith("buffer_") or op.startswith("global_"):
            self.kind = "vmem"
            self.lds = " lds" in (" " + mods) or "load_lds" in op
            if "load" in op and not self.lds:
                self.w = R[0]; self.r = set().union(*R[1:])
            else:
                self.r = set().union(*R) if R else set()
                if "store" in op and ("x4" in op or "x3" in op):
                    self.wide_store = R[0] if op.startswith("buffer_") else R[1]
            if self.lds: self.r |= {("s", "m0")}
        elif op.startswith("s_"):
            self.kind = "salu"
            if op.startswith(("s_cmp", "s_cbranch", "s_branch", "s_waitcnt", "s_barrier", "s_endpgm", "s_sleep", "s_setprio", "s_setpc", "s_bitcmp")):
                self.r = set().union(*R) if R else set()
            else:
                self.w = set(R[0]); self.r = set().union(*R[1:]) if len(R) > 1 else set()
                if "saveexec" in op: self.w |= {("s", "exec")}
        else:
            raise ValueError("unknown instruction: " + text)


def need(p, c):
    n = 0
    vec = lambda s: {x for x in s if x[0] in "va"}
    sca = lambda s: {x for x in s if x[0] == "s"}
    if p.kind == "valu":
        pw = vec(p.w); ps = sca(p.w)
        if c.kind == "mfma" and pw & c.r: n = max(n, 3 if p.dot else 2)
        if c.kind == "valu":
            if p.trans and pw & c.r: n = max(n, 1)
            if c.dpp and pw & c.r: n = max(n, 2)
            if c.base.startswith("v_permlane") and pw & c.r: n = max(n, 2)
            if c.base in ("v_readlane_b32", "v_readfirstlane_b32") and pw & c.r: n = max(n, 1)
            cr = set(c.r)
            if ps & cr: n = max(n, 4 if c.base in ("v_readlane_b32", "v_writelane_b32") else 2)
            if p.dot:
                if c.dot and c.base == p.base:
                    if pw & c.srcAB: n = max(n, 3)
                elif pw & (c.r | c.w): n = max(n, 3)
        if c.kind in ("ds", "vmem") and p.dot and pw & (c.r | c.w): n = max(n, 3)
        if c.kind == "vmem" and ps & c.r: n = max(n, 5)
        if c.kind == "salu" and ps & c.r and ("s", "vcc") not in ps: n = max(n, 1)
    if p.kind == "mfma":
        big = 12 if p.passes == 8 else 8
        if c.kind == "mfma":
            if p.w & c.srcAB: n = max(n, big)
            if p.w & c.srcC and not (p.w == c.srcC and p.passes == c.passes): n = max(n, big - 2)
            if p.w & c.w and not (p.w == c.w and p.passes == c.passes): n = max(n, big)
            if p.w == c.w and not c.srcC: n = max(n, 0)
        elif c.kind in ("valu", "ds", "vmem"):
            if p.w & (c.r | c.w): n = max(n, big)
            if c.kind == "valu" and p.srcC & c.w: n = max(n, 7 if p.passes == 8 else 3)
    if p.kind == "salu" and ("s", "m0") in p.w and c.kind == "vmem" and c.lds: n = max(n, 1)
    if p.kind == "vmem" and p.wide_store & c.w:
        n = max(n, 2 if c.kind in ("valu", "mfma") else 1)
    return n


def fix(lines, verbose=False):
    out = []; hist = []
    added = 0
    for ln in lines:
        ins = Ins(ln)
        if not ins.is_ins:
            out.append(ln); continue
        dist = 0; pad = 0
        for p in reversed(hist):
            if dist >= 20: break
            k = need(p, ins) - dist
            if k > pad: pad = k; why = p
            dist += p.states
        if pad > 0:
            nop = Ins(f"  s_nop {pad - 1}")
            out.append(f"  s_nop {pad - 1}"); hist.append(nop); added += pad
            if verbose: print(f"pad {pad}: [{why.text.strip()}] -> [{ln.strip()}]")
        out.append(ln); hist.append(ins)
        if ins.op in ("s_branch", "s_endpgm", "s_setpc_b64"): hist = []
    return out, added


def sizes(lines):
    import subprocess
    src = '.amdgcn_target "amdgcn-amd-amdhsa--gfx950"\n.text\n' + "\n".join(lines) + "\n"
    src += "".join(f"L_hop{p}:\n" for p in range(512) if f"L_hop{p}:" not in src)
    r = subprocess.run(["llvm-mc", "-triple=amdgcn-amd-amdhsa", "-mcpu=gfx950", "-show-encoding"], input=src, capture_output=True, text=True)
    assert r.returncode == 0, r.stderr[:2000]
    enc = [l.split("encoding: [")[1].count(",") + 1 for l in r.stdout.split("\n") if "encoding: [" in l]
    out = []; k = 0
    for l in lines:
        if Ins(l).is_ins: out.append(enc[k]); k += 1
        else: out.append(None)
    assert k == len(enc)
    return out

WIDEN = ("v_mov_b32", "v_add_f32", "v_mul_f32", "v_sub_f32", "v_add_u32", "v_and_b32", "v_or_b32", "v_xor_b32", "v_lshlrev_b32", "v_lshrrev_b32",
         "v_exp_f32", "v_rcp_f32", "v_rsq_f32", "v_sin_f32", "v_cos_f32", "v_fract_f32", "v_max_f32", "v_max_u32", "v_subrev_f32", "v_sub_u32")
def align(lines, minrun=7, hops=None, step=4096):
    sz = sizes(lines); out = []; addr = 0; n = len(lines); last4 = None; pads = 0
    page = 0
    for i, l in enumerate(lines):
        if hops and sz[i] and addr // step > page:
            page = addr // step
            if page in hops: out += [f"L_hop{page}:", f"  s_cbranch_execz {hops[page]}"]; addr += 4; last4 = len(out) - 1
        if sz[i] == 8 and addr % 8 == 4 and last4 is not None:
            run = 0; j = i; mf = 0
            while j < n and sz[j] in (8, None):
                if sz[j]: run += 1; mf += lines[j].strip().startswith("v_mfma")
                j += 1
            if run >= minrun and mf * 3 < run:
                op = out[last4].split()[0]
                if op in WIDEN: out[last4] = out[last4].replace(op, op + "_e64", 1)
                else: out.append("  s_nop 0"); pads += 1
                addr += 4
        out.append(l)
        if sz[i]:
            last4 = len(out) - 1 if sz[i] == 4 else None
            addr += sz[i]
    return out, pads

def simulate(lines, pen=None):
    t = 0; mfree = 0; vfree = 0; last = 0; res = []; vend = -99; lost = 0
    for l in lines:
        ins = Ins(l)
        if not ins.is_ins: continue
        if ins.op == "s_endpgm": break
        if ins.op in ("s_memtime", "s_memrealtime"):
            res.append(t - last); last = t
            if pen is not None: pen.append(lost)
            lost = 0
        if ins.kind == "mfma":
            t = max(t, mfree, vfree); mfree = t + 4 * ins.passes; vfree = t + 8; t += 4; vend = -99
        elif ins.kind == "valu":
            t = max(t, vfree)
            if ins.op.startswith("v_pk_") and "f32" in ins.op: t = max(t, mfree)
            t += 8 if ins.trans else 4; vend = t
        elif ins.kind == "nop": t += 4 * ins.states
        elif ins.kind in ("ds", "vmem"):
            t = max(t, vfree); t2 = max(t, vend + (8 if ins.kind == "ds" else 12)); lost += t2 - t; t = t2
            t += icost(ins.op) * 4
        else: t += 4
    return res
def icost(op):
    if op in TRANS or op.replace("_e64", "") in TRANS: return 2
    if op.startswith("ds_write"): return 5 if "b128" in op else 3 if ("b64" in op or "write2" in op) else 2
    if "_store_" in op: return 5 if "x4" in op else 2
    return 1
```

```python
import sys, math, struct
sys.path.insert(0, "exp")
import hz

KN = "sequential_preLN__ssm_conv_s4d__mixer_channel_mlp__prompt"
OPT = dict(stamps=False)
for a in sys.argv[2:]:
    k, _, v = a.partition("=")
    OPT[k] = (int(v) if v.lstrip("-").isdigit() else v) if v else True

def f2u(x): return struct.unpack("<I", struct.pack("<f", x))[0]
def hx(x): return "0x%08x" % f2u(x)
def bf16_rne(x):
    u = f2u(x); return ((u + 0x7FFF + ((u >> 16) & 1)) >> 16) & 0xFFFF
def bf16_val(h): return struct.unpack("<f", struct.pack("<I", h << 16))[0]

OB1, OB2, ZB, HB, STAMP, PB = 0x100000, 0x300000, 0x500000, 0x900000, 0x1100000, 0x2000000
WS_SIZE = 0x2600000
LA, LB, LC = 0, 65536, 131072
TB = LB
TROW, TCH = 544, 34816
UB = LC + 4096; USZ = 4576
KB = UB + 2 * USZ; KCOPY = 4160; KSZ = 2 * KCOPY
STAT1 = KB + 2 * KSZ
RED = LC
LDS_SIZE = 163840
LOG2E = 1.4426950408889634
K1 = 2.0 * math.sqrt(2.0 / math.pi) * LOG2E
K2 = K1 * 0.044715
SS = -(K2 ** (1.0 / 3.0))
GC = K1 / abs(SS)
C0 = 1.5 * 2.0 ** -8
EPS = 1e-5
MASK = 0x70007000
SPIN = 20000

L = []
vmq = []; lgq = []
def e(s):
    for x in s.split("\n"): L.append("  " + x.strip())
def lab(s): L.append(s + ":")
def vm(s, tag=None): e(s); vmq.append(tag)
def ds(s, tag=None): e(s); lgq.append(tag)
def cnt(q, tag):
    idx = max(i for i, t in enumerate(q) if t == tag)
    return len(q) - 1 - idx
def wvm(tag):
    if tag in vmq: e("s_waitcnt vmcnt(%d)" % min(cnt(vmq, tag), 63))
def wlg(tag): e("s_waitcnt lgkmcnt(%d)" % min(cnt(lgq, tag), 15))
def wlg0(): e("s_waitcnt lgkmcnt(0)"); flush_st()
def V(a, n=1): return f"v{a}" if n == 1 else f"v[{a}:{a+n-1}]"
def A(a, n=1): return f"a{a}" if n == 1 else f"a[{a}:{a+n-1}]"
def S(a, n=1): return f"s{a}" if n == 1 else f"s[{a}:{a+n-1}]"
nstamp = [0]; stamp_names = []; pend_st = []; st_pool = []
def flush_st():
    while pend_st:
        r, i = pend_st.pop(0); e(f"v_writelane_b32 v31, s{r}, {i}"); st_pool.append(r)
def stamp(name):
    if OPT.get("at") == name:
        e("s_memrealtime s[14:15]"); e("s_waitcnt lgkmcnt(0)"); e("v_mov_b32 v31, s14")
    if not OPT["stamps"]: return
    if not st_pool:
        r, i = pend_st.pop(0); e(f"v_writelane_b32 v31, s{r}, {i}"); st_pool.append(r)
    r = st_pool.pop(0)
    e(f"s_memtime s[{r}:{r+1}]" if OPT.get("cyc") else f"s_memrealtime s[{r}:{r+1}]")
    pend_st.append((r, nstamp[0])); nstamp[0] += 1; stamp_names.append(name)
def stamp2(name):
    if OPT.get("f2"): stamp(name)
hops = {}; STEP = OPT.get("step", 256)
def warm(name):
    if name not in OPT: return
    if OPT[name][0] == "i": pl = [int(x) for x in OPT[name][1:].split(".")]
    else: pl = list(range(*[int(x) * 1024 // STEP for x in OPT[name].split("-")]))
    e("s_mov_b64 exec, 0")
    for w in range(4):
        ps = pl[len(pl) * w // 4:len(pl) * (w + 1) // 4]
        for p, q in zip(ps, ps[1:] + [None]): hops[p] = f"L_hop{q}" if q else f"L_{name}"
        if ps: e(f"s_cmp_eq_u32 s6, {w}"); e(f"s_cbranch_scc1 L_hop{ps[0]}")
    lab(f"L_{name}"); e("s_mov_b64 exec, -1")
def count(name):
    if not OPT["stamps"]: return
    e(f"v_writelane_b32 v31, s{sCNT}, {nstamp[0]}"); nstamp[0] += 1; stamp_names.append("#" + name)

tail = []
class It:
    def __init__(self, x, tag=None, cost=None):
        self.x = x; self.tag = tag
        if callable(x): self.kind = "s"; self.cost = 1 if cost is None else cost
        else:
            ls = [y.strip() for y in x.split("\n")]
            self.kind = "s" if ls[0].startswith("s_") else "v" if ls[0].startswith("v_") else "m"
            self.cost = sum(hz.icost(y.split()[0]) for y in ls) if cost is None else cost
        self.scalar = self.kind == "s"
    def __call__(self):
        if callable(self.x): return self.x()
        for y in self.x.split("\n"):
            y = y.strip()
            if y.startswith("ds_"): ds(y, self.tag)
            elif y.startswith(("buffer_", "global_")): vm(y, self.tag)
            else: e(y)
def items(lst, tag=None): return [x if isinstance(x, It) else It(x, tag) for x in lst]
def run(lst):
    for x in items(lst): x()
def indep(x, y):
    if x.kind == "s" or y.kind != "v" or "\n" in x.x + y.x: return False
    p, q = hz.Ins(x.x), hz.Ins(y.x)
    return not (p.w & (q.r | q.w) or q.w & p.r)
def sched(main, *streams, cap=6, fill=(), waits=None):
    n = len(main); gaps = [[] for _ in range(n + 1)]
    for sp in streams:
        its = items(sp[0]); a = sp[1] if len(sp) > 1 else 0; b = sp[2] if len(sp) > 2 and sp[2] is not None else n
        tot = sum(i.cost for i in its); k = 0; acc = 0
        for g in range(a, n + 1):
            d = []; t = (g - a + 1) * tot / (b - a)
            while k < len(its) and (acc + its[k].cost / 2.0 <= t or g >= b - 1):
                if its[k].kind == "m" and any(x.kind == "v" for x in d) and g < n and b - a > 1: break
                d.append(its[k]); acc += its[k].cost; k += 1
            if d: gaps[g].append(d)
    if waits:
        skip = False
        for g in range(n - 1):
            if skip: skip = False; continue
            skip = g < n - 2 and any(d[0].scalar for d in gaps[g + 1])
            gaps[g].insert(sum(d[0].cost == 2 and d[0].scalar for d in gaps[g][:1]), [waits(g + 1 + skip)])
    def load(g):
        return sum(x.cost for d in gaps[g] for x in d) - any(d[0].scalar for d in gaps[g])
    for its, a, b in fill:
        its = items(its); free = [max(0, cap - load(g)) for g in range(a, b)]
        for extra in range(0, 400):
            q = list(its); out = []
            for j in range(b - a):
                f = free[j] + (j + 1) * extra // (b - a) - j * extra // (b - a); d = []
                while q:
                    k = next((k for k in range(q[0].kind == "m" and any(x.kind == "v" for x in d), min(6, len(q))) if q[k].cost <= f and all(indep(q[i], q[k]) for i in range(k))
                              and not (d and d[-1].cost == 2 and q[k].kind == "v" and not indep(d[-1], q[k]))), None)
                    if q[0].kind == "m" and not d: k = 0
                    if k is None: break
                    f -= q[k].cost; d.append(q.pop(k))
                out.append(d)
            if all(x.kind != "v" for x in q): break
        out.append(q)
        for j, d in enumerate(out):
            if d: gaps[a + j].append(d)
    for g in range(n + 1):
        if g < n: main[g]()
        due = gaps[g]
        for d in due:
            if d[0].scalar: d.pop(0)(); break
        for d in due:
            while d and (d[0].kind == "m" or (d[0].scalar and any(x.kind == "m" for x in d) or all(x.scalar for x in d))): d.pop(0)()
        for d in due:
            for x in d: x()
def at(pairs):
    return [(x if isinstance(x, list) else [x], g, g + 1) for g, x in pairs]
def merge(a, b):
    if not a: return list(b)
    out = []
    for i, x in enumerate(a):
        out.append(x); out += b[i * len(b) // len(a):(i + 1) * len(b) // len(a)]
    return out
def retry(name, loads, nlater=0, chk=None):
    def f():
        lab(f"L_{name}retry")
        e(f"s_add_u32 s{sCNT}, s{sCNT}, 1"); e(f"s_cmp_gt_u32 s{sCNT}, {SPIN}"); e(f"s_cbranch_scc1 L_{name}ok")
        run(loads)
        e(f"s_waitcnt vmcnt({nlater})")
        if chk is None: e(f"s_branch L_{name}chk")
        else:
            for x in chk: e(x)
            e(f"s_branch L_{name}ok")
    tail.append(f)

SX, SLA, SAI, SCR, SCI, SLDT, SDSK = 8, 10, 12, 14, 16, 18, 20
SW1, SB1, SW2, SB2, SOUT, SWS = 24, 26, 28, 30, 32, 36
sLM = 34
RWS, RW1, RW2 = 36, 40, 44
sHT, sLAM, sCQ, sFIN = 48, 49, 50, 51
sLDT, sDSK, sE, sONES = 52, 53, 54, 55
sTAG = 56
sO8 = 60
sHS, sHD, sHL, sM7, sPS, sPD, sW2 = 68, 69, 70, 71, 72, 73, 74
sOB1, sOB2, sZ0, sZ1, sW1a, sW1b = 82, 83, 84, 85, 86, 87
sCNT, sK, sB, sG, sCH, sM8, sM0, sG1a, sG1b, sJ = 90, 91, 92, 93, 94, 95, 96, 97, 98, 99
sZa, sW3, sM4, sTD = 75, 76, 77, 78
sPERMLO, sPERMHI = 22, 23
vL16, vOBS, vDMA, vZC, vT1, vT2 = 2, 3, 4, 8, 9, 28
vLC, vFF, vHC, vOUT, vRA = 10, 11, 12, 16, 17
vZCs, vT2s = (8, 9, 14), (28, 29, 15)
vMASK, vD, vKW, vH1, vS1R, vUW, vS1W = 8, 9, 12, 14, 15, 16, 17
vTW, vTL, vTR, vAG, vXR, vRW, vRR, vS2W, vS2R, vZS, vXW, vB, vA, vX = 96, 104, 105, 107, 108, 109, 110, 111, 112, 113, 114, 115, 116, 120
PAR = OPT.get("par", 0); XM = OPT.get("xm", 0)
HTAG = 0x40004000
LAM1, LAM0, DELTA = 2.0 ** 84, 2.0 ** -32, 2.0 ** -34
A0, A1, B0, B1, CC = 0, 32768, 65536, 98304, 131072

lab_name = KN + "_kernel"
hdr = open("cdna_kernels/" + KN + ".s.ref").read().split("; Override launch")[0]
pre = hdr + f"; @launch grid=(256,1,1) block=(256,1,1) lds={LDS_SIZE}\n" + \
    f'.amdgcn_target "amdgcn-amd-amdhsa--gfx950"\n.text\n.globl {lab_name}\n.p2align 12\n.p2align 8\n.type {lab_name},@function\n{lab_name}:\n'

r0 = [f"s_and_b32 s{sJ}, s3, 3"] + \
     {0: [f"s_bfe_u32 s{sK}, s3, 0x20002", f"s_lshr_b32 s{sG}, s3, 4"],
      1: [f"s_bfe_u32 s{sK}, s3, 0x10002", "s_bfe_u32 s4, s3, 0x10005", f"s_lshl1_add_u32 s{sK}, s4, s{sK}", f"s_bfe_u32 s{sG}, s3, 0x20003", "s_lshr_b32 s4, s3, 6", f"s_lshl2_add_u32 s{sG}, s4, s{sG}"],
      2: [f"s_bfe_u32 s{sK}, s3, 0x20005", f"s_bfe_u32 s{sG}, s3, 0x30002", "s_lshr_b32 s4, s3, 7", f"s_lshl3_add_u32 s{sG}, s4, s{sG}"]}[XM]
B_role = r0 + ["v_lshrrev_b32 v18, 4, v1", "v_lshlrev_b32 v19, 2, v18", "v_and_b32 v30, 15, v1", "v_xor_b32 v19, v19, v30", "v_lshlrev_b32 v19, 4, v19",
               f"s_lshl_b32 s5, s{sJ}, 8", f"s_mul_i32 s4, s{sK}, 896", "s_add_u32 s4, s4, s5", f"s_cmp_eq_u32 s{sJ}, 3\ns_cselect_b32 s7, 0x70, -1",
               "v_mul_u32_u24 v20, 3584, v18", "v_cmp_lt_u32 vcc, s7, v19", "v_add3_u32 v20, v20, v19, s4", f"v_lshl_add_u32 v{vDMA}, v18, 10, v19",
               "v_mov_b32 v30, 0x7ff00000", "v_cndmask_b32 v20, v20, v30, vcc"] + [f"v_add_u32 v{20+i}, {i*(14336-1024)}, v20" for i in range(1, 4)] + \
              [f"s_and_b32 s{sB}, s{sG}, {PAR}", f"s_lshl2_add_u32 s7, s{sB}, s6", f"s_mul_i32 s{sW1a}, s7, {64*3584}", "s_xor_b32 s7, s7, 4", f"s_mul_i32 s{sW1b}, s7, {64*3584}",
               f"s_lshl_b32 s{sM0}, s6, 14", f"s_lshr_b32 s{sCH}, s6, 1"]
B_ln1 = ["v_lshrrev_b32 v29, 5, v0", "v_and_b32 v30, 16, v0", "v_cmp_ne_u32 vcc, 0, v30", f"v_mov_b32 v30, {STAT1+128}", "v_lshlrev_b32 v28, 3, v29",
         f"v_add_u32 v28, {STAT1}, v28", f"v_cndmask_b32 v{vS1W}, v30, v28, vcc",
         "v_and_b32 v28, 1, v0", f"v_lshlrev_b32 v{vS1R}, 5, v28", f"v_add_u32 v{vS1R}, {STAT1}, v{vS1R}",
         f"v_mov_b32 v{vMASK}, {hex(MASK)}", "v_mov_b32 v52, 0", "v_mov_b32 v53, 0",
         "v_lshlrev_b32 v28, 4, v28", "v_lshrrev_b32 v30, 1, v0", f"v_lshl_add_u32 v{vH1}, v30, 13, v28"]
B_ln1s = ["s_and_b32 s10, s3, 0xc0", "s_and_b32 s11, s3, 1", "s_lshl_b32 s11, s11, 5", "s_add_u32 s10, s10, s11",
          "s_bfe_u32 s11, s3, 0x50001", "s_add_u32 s10, s10, s11", "s_lshl_b32 s10, s10, 5",
          f"s_add_u32 s{sG1a}, s10, {OB1}", f"s_add_u32 s{sG1b}, s10, {OB1 + 128*8192}",
          "s_lshr_b32 s10, s3, 2", "s_lshl_b32 s10, s10, 15", "s_and_b32 s11, s3, 3", "s_lshl_b32 s11, s11, 7", "s_add_u32 s10, s10, s11",
          f"s_add_u32 s{sZ0}, s10, {ZB}", f"s_add_u32 s{sZ1}, s10, {ZB+4096}",
          f"s_mov_b32 s{sPERMLO}, 0x05040100", f"s_mov_b32 s{sPERMHI}, 0x07060302", f"s_mov_b32 s{sCNT}, 0"]
B_tab = ["v_and_b32 v29, 7, v1", "v_lshrrev_b32 v30, 3, v1", "s_lshl_b32 s4, s6, 4", "v_add_u32 v30, s4, v30",
         "v_lshlrev_b32 v28, 4, v29", f"v_lshl_add_u32 v{vZS}, v30, 9, v28",
         f"s_mul_i32 s4, s{sCH}, {TCH}", f"s_add_u32 s4, s4, {TB}",
         "v_and_b32 v29, 127, v0", f"v_lshl_add_u32 v{vTW}, v29, 2, s4"] + [f"v_add_u32 v{vTW+r}, {r*TROW}, v{vTW}" for r in range(1, 8)] + \
        ["v_and_b32 v18, 15, v1", "v_lshrrev_b32 v19, 4, v1", "v_lshl_add_u32 v28, v19, 4, s4", f"v_mov_b32 v30, {TROW}",
         f"v_mad_u32_u24 v{vTL}, v18, v30, v28",
         "v_cmp_lt_u32 vcc, 7, v18", "v_and_b32 v55, 7, v18", "v_or_b32 v55, 0x0c0c0c00, v55"]
CLS = [[("R1", 8), ("A", 3), ("B", 3), ("T7", 0)], [("R1", 3), ("R0", 16), ("A", 2), ("T5", 0)], [("R1", 2), ("A", 0), ("T4", 0), ("T6", 0)],
       [("R1", 1), ("R1", 4), ("T4", 1), ("T6", 1)], [("A", 4), ("B", 4), ("T6", 2), ("T7", 1)], [("R1", 5), ("R1", 7), ("B", 0), ("T5", 1)],
       [("R1", 6), ("A", 1), ("B", 1), ("T4", 2)], [("R1", 0), ("B", 2), ("T5", 2), ("T7", 2)]]
ROW = {n: 32 + 8 * j + c for c in range(8) for j, n in enumerate(CLS[c])}
for p in range(16): ROW[("R0", p)] = 16 + p
def rows(dst, tab0, tab1):
    pk = lambda t: [t[4*i] | t[4*i+1] << 8 | t[4*i+2] << 16 | t[4*i+3] << 24 for i in range(4)]
    a, b = pk(tab0), pk(tab1); o = []
    for i, r in enumerate((4, 10, 5, 11)): o += [f"s_mov_b32 s7, {hex(a[i])}", f"s_cselect_b32 s{r}, {hex(b[i])}, s7"]
    return o + ["v_mov_b32 v54, s4", f"v_mov_b32 v{dst}, s5", "v_perm_b32 v54, s10, v54, v55", f"v_perm_b32 v{dst}, s11, v{dst}, v55",
                f"v_cndmask_b32 v54, v54, v{dst}, vcc", f"v_mad_u32_u24 v{dst}, v54, v30, v28"]
B_rows = ["s_bitcmp1_b32 s6, 0"] + \
    rows(vTR, [16 + m for m in range(16)], [ROW[("AB"[q >> 1], 2*(q&1) + min(i, 2))] for q in range(4) for i in range(4)]) + \
    rows(vTR+1, [ROW[("R1", 2*q+i)] if i < 3 else ROW[("R0", 4*q+4)] for q in range(4) for i in range(4)], [ROW[(f"T{4+q}", min(i, 2))] for q in range(4) for i in range(4)])
B_pad = [f"v_mov_b32 v{64+r}, 0" for r in range(4)] + \
    [f"s_mul_i32 s4, s{sCH}, {USZ}", f"s_add_u32 s4, s4, {UB}", "v_add_u32 v28, s4, v2", f"s_mul_i32 s4, s6, {KCOPY}", f"s_add_u32 s4, s4, {KB+4096}", "v_add_u32 v29, s4, v2",
     "s_mov_b64 exec, 0x3fffffff\nds_write_b128 v28, v[64:67]\ns_mov_b64 exec, 15\nds_write_b128 v29, v[64:67]\ns_mov_b64 exec, -1"]
B_conv = ["s_and_b32 s5, s6, 1", f"v_lshlrev_b32 v{vUW}, 3, v0", "s_lshl_b32 s5, s5, 8", f"v_add_u32 v{vUW}, {UB+480}, v{vUW}",
          f"s_mul_i32 s4, s{sCH}, {USZ}", "v_lshlrev_b32 v28, 4, v19", f"s_add_u32 s4, s4, {UB+256}", f"v_lshl_add_u32 v{vB}, v18, 5, v28",
          "s_sub_u32 s4, s4, s5", f"v_add_u32 v{vB}, s4, v{vB}",
          f"s_mul_i32 s7, s{sCH}, {KSZ}", "v_lshlrev_b32 v29, 1, v18", f"s_add_u32 s7, s7, {KB}", "v_sub_u32 v28, v28, v29",
          "s_sub_u32 s4, s7, s5", "v_and_b32 v29, 1, v18", f"s_add_u32 s4, s4, {2*(2031-256*7-96) + KCOPY+2}", f"v_mul_u32_u24 v29, {KCOPY+2}, v29",
          "v_add_u32 v28, s4, v28", f"v_sub_u32 v{vA+3}, v28, v29"] + [f"v_add_u32 v{vA+b2}, {1024*(3-b2)}, v{vA+3}" for b2 in range(3)] + \
         ["v_lshlrev_b32 v29, 5, v18", "v_sub_u32 v29, s7, v29",
          "v_lshlrev_b32 v28, 3, v19", f"v_sub_u32 v{vKW-1}, v29, v28",
          "v_lshlrev_b32 v28, 9, v19", f"v_sub_u32 v{vKW+1}, v29, v28",
          "v_and_b32 v28, 2, v19", "v_lshlrev_b32 v28, 8, v28", "v_and_b32 v30, 1, v19", "v_lshl_add_u32 v28, v30, 4, v28", f"v_sub_u32 v{vKW}, v29, v28"]
B_w2 = ["v_and_b32 v30, 3, v1", "v_and_b32 v61, 1, v19", "v_bfe_u32 v60, v1, 2, 2", "v_lshrrev_b32 v26, 5, v1",
        "v_xor_b32 v28, s6, v60", "v_lshlrev_b32 v28, 6, v28", "v_lshl_add_u32 v28, v60, 8, v28",
        "v_lshl_add_u32 v29, v30, 3, v28", "v_lshl_add_u32 v29, v61, 5, v29", f"v_lshl_add_u32 v{vT1}, v26, 11, v29",
        "v_lshl_add_u32 v28, v26, 10, v28", "v_lshl_add_u32 v28, v61, 4, v28", "v_and_b32 v29, 1, v1", "v_lshl_add_u32 v28, v29, 5, v28",
        "v_bfe_u32 v29, v1, 1, 1", f"v_lshl_add_u32 v{vT2}, v29, 3, v28",
        f"s_mov_b32 s{RW2}, s{SW2}", f"s_mov_b32 s{RW2+1}, s{SW2+1}", f"s_mov_b32 s{RW2+2}, {1792*512*2}", f"s_mov_b32 s{RW2+3}, 0x20000",
        f"s_lshl_b32 s{sM8}, s6, 13", f"s_lshl_b32 s{sM4}, s6, 12", f"s_lshl_b32 s4, s{sJ}, 8", f"s_mul_i32 s5, s{sK}, {448*1024}", "s_add_u32 s4, s4, s5",
        f"s_lshl2_add_u32 s{sW2}, s{sM4}, s4",
        "v_and_b32 v63, 7, v1", "v_lshrrev_b32 v62, 3, v1"] + [f"v_add_u32 v{vDMA+i}, {3072*i}, v{vDMA}" for i in range(1, 4)]
B_x2 = ["s_lshl_b32 s4, s6, 4", "v_add_u32 v60, s4, v62", f"v_lshlrev_b32 v{vAG}, 2, v63", f"v_lshl_add_u32 v{vAG}, v60, 15, v{vAG}",
        "s_lshl_b32 s4, s3, 13", f"v_lshl_add_u32 v{vXR}, v60, 4, s4", f"v_lshl_add_u32 v{vXR}, v63, 10, v{vXR}",
        f"s_lshl2_add_u32 s5, s{sJ}, s6", f"s_mul_i32 s4, s{sK}, 14", "s_add_u32 s4, s4, s5", "s_min_u32 s4, s4, 55", "s_lshl_b32 s4, s4, 6",
        "v_and_b32 v25, 31, v1", "v_lshl_add_u32 v24, v25, 1, s4", It(f"global_load_ushort a112, v24, {S(SB1,2)}", "b1"),
        It(f"global_load_dwordx4 {V(vX,4)}, v{vXR}, {S(SX,2)}", "x2"), It(f"global_load_dwordx4 {V(vX+4,4)}, v{vXR}, {S(SX,2)} offset:128", "x2")]
B_red = ["v_lshl_add_u32 v60, v19, 2, v18", "v_and_b32 v60, 15, v60", "v_lshlrev_b32 v60, 4, v60", f"v_lshl_add_u32 v{vRW}, v19, 8, v60",
         f"s_add_u32 s4, s{sM8}, {RED}", f"v_add_u32 v{vRW}, s4, v{vRW}",
         "v_lshrrev_b32 v60, 2, v1", "v_lshl_add_u32 v60, v30, 2, v60", "v_and_b32 v60, 15, v60", "v_lshlrev_b32 v60, 4, v60", f"v_lshl_add_u32 v{vRR}, v30, 8, v60",
         "s_lshl_b32 s4, s6, 11", f"s_add_u32 s4, s4, {RED}", f"v_add_u32 v{vRR}, s4, v{vRR}",
         "v_lshlrev_b32 v60, 3, v63", f"v_add_u32 v{vS2R}, {RED}, v60", f"v_add_u32 v{vS2W}, s4, v60", f"v_lshl_add_u32 v{vS2W}, v61, 2, v{vS2W}"]
B_post = [f"v_mov_b32 v27, {hex(HTAG)}", f"v_add_u32 v3, {B0}, v{vL16}", f"v_add_u32 v{vLC}, {CC}, v{vL16}", f"v_mov_b32 v{vFF}, {hx(1/SS)}",
          "v_add_u32 v60, v26, v62", "v_and_b32 v60, 3, v60", f"v_lshl_add_u32 v60, v60, 2, v{vL16}", f"v_add_u32 v{vZC}, s{sM4}, v60",
          "v_xor_b32 v60, v62, v19", "v_and_b32 v60, 1, v60", f"v_lshl_add_u32 v60, v60, 3, v{vL16}", f"v_add_u32 v{vHC}, s{sM7}, v60", f"v_add_u32 v{vHC+1}, 0x10000, v{vHC}",
          f"v_add_u32 v{vZCs[2]}, 0x20000, v{vZC}", f"v_add_u32 v{vT2s[1]}, 0x10000, v{vT2}", f"v_add_u32 v{vT2s[2]}, 0x20000, v{vT2}",
          f"s_xor_b32 s7, s{sK}, 3", f"s_lshl2_add_u32 s7, s{sG}, s7", f"s_lshl2_add_u32 s5, s{sJ}, s6", "s_lshl_b32 s4, s5, 6", "v_lshl_add_u32 v24, v26, 5, s4",
          "s_lshl_b32 s4, s7, 15", f"v_lshl_add_u32 v{vOUT}, v25, 10, v24", f"v_add_u32 v{vOUT}, s4, v{vOUT}",
          "s_lshl_b32 s4, s7, 7", "s_lshl_b32 s5, s5, 17", "s_add_u32 s4, s4, s5", f"v_lshlrev_b32 v{vRA}, 16, v26", f"v_lshl_add_u32 v{vRA}, v25, 2, v{vRA}", f"v_add_u32 v{vRA}, s4, v{vRA}"]
B_posts = ["s_lshl_b32 s10, s3, 5"] + [f"s_add_u32 s{sO8+4*k+i}, s10, {OB2 + (32*k+i)*8192}" for k in range(2) for i in range(4)] + \
          [f"s_lshl2_add_u32 s12, s{sG}, s{sK}",
           f"s_lshl2_add_u32 s10, s12, s{sK}", "s_lshl_b32 s10, s10, 15", f"s_add_u32 s10, s10, {HB}", f"s_lshl_b32 s{sM7}, s6, 12", f"s_min_u32 s{sM7}, s{sM7}, 10240", f"s_add_u32 s{sHL}, s10, s{sM7}",
           f"s_lshl2_add_u32 s11, s{sJ}, s6", "s_cmp_ge_u32 s11, 14\ns_cselect_b32 s11, 0x100000, s11", "s_lshl_b32 s11, s11, 10", f"s_add_u32 s{sHS}, s10, s11",
           f"s_lshl1_add_u32 s10, s12, s{sB}", "s_lshl2_add_u32 s10, s10, s6", "s_lshl_b32 s10, s10, 12", f"s_add_u32 s{sZa}, s10, {ZB}",
           f"s_lshl2_add_u32 s10, s12, s{sJ}", "s_lshl2_add_u32 s10, s10, s6", "s_lshl_b32 s10, s10, 11", f"s_add_u32 s{sPS}, s10, {PB}", f"s_mov_b32 s{sCNT}, 0",
           f"s_mov_b32 s{sLAM}, {hx(1/LAM0)}", f"s_mov_b32 s{sCQ}, {hx(DELTA*LAM0)}", f"s_mov_b32 s{sFIN}, {hx(1/LAM0/SS)}",
           f"s_bitcmp1_b32 s{sHT}, 30\ns_cselect_b32 s{sLAM}, {hx(1/LAM1)}, s{sLAM}\ns_cselect_b32 s{sCQ}, {hx(DELTA*LAM1)}, s{sCQ}\ns_cselect_b32 s{sFIN}, {hx(1/LAM1/SS)}, s{sFIN}",
           f"s_sub_u32 s{sLM}, 0x7f000000, s{sLAM}", f"s_mov_b32 s{sLM+1}, s{sCQ}", f"s_lshr_b32 s80, s{sLAM}, 16"]

SKIP = OPT.get("skip", "").split("+")
def dma_w1(half, n0, n1):
    out = []; tag = ("w1", half)
    for n in range(n0, n1):
        g, i = divmod(n, 4)
        if n == n0 or i == 0:
            out += [It(f"s_add_u32 m0, s{sM0}, {65536*half + 4096*g}"), It(f"s_add_u32 s{sTD}, s{sW1a+half}, {57344*g}")]
        out.append(It(f"buffer_load_dwordx4 v{20+i}, {S(RW1,4)}, s{sTD} offen offset:{1024*i} lds", tag))
    return out
W1F = lambda s: 128 + 4 * s
def tr_w1(half):
    o = [It(f"v_add_u32 v{vT1}, 0x10000, v{vT1}")] if half else []
    return o + [It(f"ds_read_b64_tr_b16 {V(W1F(16*half+s)+2*hf,2)}, v{vT1} offset:{4096*s+1024*hf}", ("t1", half)) for s in range(16) for hf in range(2)]
iv = lambda k, d: [int(x) for x in str(OPT.get(k, d)).split("-") if x]
T1IN = OPT.get("t1in", 0); DEPTH = OPT.get("depth", 6); CKD = OPT.get("ckd", 4); DL = OPT.get("dl", 4)
NU = [int(c) for c in "%04d" % OPT.get("nu", 2101)]
PH = []; u = 0
for n in NU: PH.append(list(range(u, u + n))); u += n
PH.append(list(range(u, 7)))
X0 = lambda x: 16 * x if x <= 8 else 128 + 14 * (x - 8)
DX = [-10] * 3 + iv("dz", "0-5-11-34-41") + iv("gh", "84-100-114-130-146-162-176-190")
DY = dict(zip(PH[4], iv("dy", "17-25-50-58-66")))
BG = [[int(c, 16) for c in g] for g in OPT.get("bg", "0.1.23.45.67.8.9.a.b.c.d.e.f").split(".")]
BT = dict(zip(iv("bi", ""), iv("bt", "")))
BAR = [(-1, BG[0])] + [(min(X0(g[0]) - 1 - DEPTH, BT.get(g[0], 999)), g) for g in BG[1:]]
ckw = lambda g: 2 + (g[0] >= 8 and len(g) > 1)
ck0 = lambda b: b[0] - CKD - ckw(b[1]) - 2
YR = {y: -1 for y in PH[2] + PH[3]}
for y in PH[4]: YR[y] = next(b[0] for b in BAR[1:] if ck0(b) >= DY[y] + DL + OPT.get("yl", 14))
YT = {}; g = 0
for y in PH[2] + PH[3] + PH[4]:
    g = max(g, YR[y] + 1); YT[y] = (g, g + OPT.get("tl", 6)); g = YT[y][1]; assert g <= 128 + 2 * y - DEPTH
objs = [(t, ("y", y), -1 if p < 2 else next(b[0] for b in BAR[1:] if ck0(b) >= YT[y][1])) for p, t in enumerate((-59, -50, -30, -20)) for y in PH[p]]
objs += [(DY[y], ("y", y), next(b[0] for b in BAR[1:] if ck0(b) >= YT[y][1])) for y in PH[4]]
objs += [(DX[x], ("x", x), next((b[0] for b in BAR if b[0] >= X0(x + 1) - 1), 999)) for x in range(16)]
free = [-60] * 4 + [-58 if T1IN else -25] * 4 + [-1, -25 if T1IN else -45]
SLOT = {}
for t, o, f in sorted(objs, key=lambda q: q[0]):
    k = next((k for k in range(10) if free[k] < t), None)
    assert k is not None, ("no LDS for", o, t, free)
    SLOT[o] = 16384 * k; free[k] = f
ts = sorted(t for t, o, f in objs if t >= 0)
assert all(b - a >= DL for a, b in zip(ts, ts[1:])), ts
assert all(DX[x] + DL <= ck0(b) for b in BAR[1:] for x in b[1] if DX[x] >= 0) and all(a[0] < ck0(b) for a, b in zip(BAR[1:], BAR[2:]))
def dma_w2(u):
    if f"u{u}" in SKIP: return []
    return [It(f"s_add_u32 m0, s{sM4}, {SLOT['y', u]}"), It(f"s_add_u32 s{sTD}, s{sW2}, {65536*u}")] + \
           [It(f"buffer_load_dwordx4 v{vDMA+i}, {S(RW2,4)}, s{sTD} offen offset:{1024*i} lds", ("u", u)) for i in range(4)]
def tr_w2(u):
    hi, o = divmod(SLOT["y", u], 65536)
    return [It(f"ds_read_b64_tr_b16 {A(16*u+4*x+2*hf,2)}, v{vT2s[hi]} offset:{o+4096*x+2048*hf}", ("t2", u)) for x in range(4) for hf in range(2)]
WV = lambda tag: It(lambda: wvm(tag))
WL = lambda tag: It(lambda: wlg(tag))

st_pool += [60, 62, 64, 66]
e("s_cmpk_ge_u32 s2, 256"); e("s_cbranch_scc1 L_end")
e("s_load_dwordx16 s[8:23], s[0:1], 0")
e(f"s_load_dwordx2 {S(SWS,2)}, s[0:1], 112")
e("s_load_dwordx8 s[24:31], s[0:1], 64")
stamp("start")
if OPT.get("diag"): e("s_memrealtime s[76:77]")
e("v_lshlrev_b32 v10, 7, v0")
e("s_getpc_b64 s[40:41]"); lab("L_pc")
e("s_lshr_b32 s7, s2, 3"); e("s_lshl_b32 s4, s7, 10"); e("s_add_u32 s42, s4, 1024"); e("s_min_u32 s42, s42, L_end-L_pc"); e("s_mov_b32 s43, 0x20000")
vm("buffer_load_dword a113, v10, s[40:43], s4 offen", "pf")
e("s_and_b32 s3, s2, 7"); e("v_lshrrev_b32 v13, 5, v0"); e("s_lshl_b32 s3, s3, 5"); e("v_and_b32 v14, 31, v0")
e("s_add_u32 s3, s3, s7"); e("v_lshlrev_b32 v13, 10, v13")
e("s_lshl_b32 s7, s3, 13"); e("v_lshlrev_b32 v14, 4, v14")
e("s_lshl_b32 s4, s3, 9"); e("v_add3_u32 v13, v13, v14, s7")
e("v_lshl_add_u32 v27, v0, 1, s4")
e("s_lshl_b32 s5, s3, 2")
if OPT["stamps"]: e("v_mov_b32 v31, 0")
wlg0()
if OPT.get("diag"): e("v_mov_b32 v31, s76")
stamp("karg")
par = [It(f"global_load_ushort v{48+i}, v27, {S(p,2)}", "par") for i, p in enumerate((SLA, SAI, SCR, SCI))]
PF = OPT.get("pf", 1)
e(f"s_load_dword s{sLDT}, {S(SLDT,2)}, s5")
if PF == 1: run(par)
vm(f"global_load_dwordx4 v[32:35], v13, {S(SX,2)}", "xs")
vm(f"global_load_dwordx4 v[36:39], v13, {S(SX,2)} offset:512", "xs")
if PF == 2: run(par)
e("v_lshrrev_b32 v14, 1, v0"); e("v_and_b32 v15, 1, v0"); e("v_lshrrev_b32 v12, 6, v0")
e("v_lshlrev_b32 v16, 3, v14"); e("v_lshlrev_b32 v15, 12, v15"); e("v_readfirstlane_b32 s6, v12")
e("v_and_b32 v1, 63, v0"); e("v_lshlrev_b32 v10, 7, v1"); e("v_add3_u32 v16, v16, v15, s7")
e(f"s_load_dwordx8 s[68:75], {S(SWS,2)}, 0")
e(f"s_load_dword s{sDSK}, {S(SDSK,2)}, s5")
e(f"s_load_dwordx2 {S(SOUT,2)}, s[0:1], 96")
for i in range(4): vm(f"global_load_dwordx2 {V(40+2*i,2)}, v16, {S(SX,2)} offset:{1024*i}", "xg")
if PF == 0: run(par)
if OPT.get("touch", 1):
    run([f"s_cmp_lt_u32 s6, 2", f"s_cselect_b32 s44, s{SW1}, s{SW2}", f"s_cselect_b32 s45, s{SW1+1}, s{SW2+1}", "s_and_b32 s4, s6, 1", "s_lshl_b32 s5, s2, 1",
         "s_add_u32 s4, s4, s5", "s_mul_i32 s4, s4, 3584", "s_add_u32 s46, s4, 3584", "s_mov_b32 s47, 0x20000", It("buffer_load_dword a113, v10, s[44:47], s4 offen", "pf")])
e("v_lshlrev_b32 v2, 4, v1"); e("v_lshl_add_u32 v3, v12, 11, v2")
e(f"s_add_u32 s{sOB1}, s7, {OB1}"); e(f"s_add_u32 s{sOB2}, s7, {OB2}"); e(f"s_mov_b32 s{RWS+2}, {WS_SIZE}"); e(f"s_mov_b32 s{RWS+3}, 0x20000")
NW1 = OPT.get("nw1", 0); NW2 = OPT.get("nw2", 12); NW3 = max(NW2, OPT.get("nw3", 0))
run(B_role)
run([f"s_mov_b32 s{RW1+2}, {512*1792*2}", f"s_mov_b32 s{RW1}, s{SW1}", f"s_mov_b32 s{RW1+1}, s{SW1+1}"] + dma_w1(0, 0, NW1))
run(B_ln1 + B_ln1s + B_tab + B_rows + B_pad)
stamp("setup")

tg = [f"s_add_u32 s{sE}, s68, 1", f"s_mov_b32 s{sE+1}, s{sE}"]
maj = [f"s_mov_b32 s12, {hex(HTAG)}", "s_mov_b32 s13, s12"] + [x for r in (70, 72, 74) for x in (f"s_and_b64 s[{r}:{r+1}], s[{r}:{r+1}], s[12:13]", f"s_bcnt1_i32_b64 s{r}, s[{r}:{r+1}]")] + \
      ["s_add_u32 s70, s70, s72", "s_add_u32 s70, s70, s74", f"s_cmp_lt_u32 s70, 6\ns_cselect_b32 s{sHT}, s12, 0", None,
       f"s_lshl_b32 s{sDSK}, s{sDSK}, s101", f"s_and_b32 s{sDSK}, s{sDSK}, 0xffff0000"]
for j, r in enumerate((4, 7, 10, 13)): tg += [f"s_lshr_b64 s[4:5], s[{sE}:{sE+1}], {r}", f"s_and_b32 s{sTAG+j}, s4, {hex(MASK)}"]
tg += [f"s_cmp_eq_u32 s{sTAG}, s{sTAG+1}\ns_cselect_b32 s4, 0x1000, 0", f"s_xor_b32 s{sTAG+1}, s{sTAG+1}, s4", f"s_mov_b32 s{sONES}, 0x3f803f80"]
ZP = lambda p: 128 + 2 * p
ZT = lambda t: 160 + 2 * t
CE, CO, T0, T1 = 176, 178, 188, 190
kg = [f"s_cmp_eq_u32 s{sCH}, 0\ns_cselect_b32 s101, 16, 0", f"s_lshl_b32 s{sLDT}, s{sLDT}, s101", f"s_and_b32 s{sLDT}, s{sLDT}, 0xffff0000",
      f"v_mov_b32 v80, {hx(LOG2E)}", f"v_mul_f32 v81, s{sLDT}, v80", "v_exp_f32 v81, v81", WV("par")] + [f"v_lshlrev_b32 v{48+i}, 16, v{48+i}" for i in range(2)] + \
     ["v_mul_f32 v82, v48, v80", "v_exp_f32 v82, v82"] + [f"v_lshlrev_b32 v{48+i}, 16, v{48+i}" for i in range(2, 4)] + \
     ["v_cvt_pk_bf16_f32 v81, v81, v82", "v_and_b32 v82, 0xffff0000, v81", "v_lshlrev_b32 v81, 16, v81",
      "v_mul_f32 v82, v82, v81", "v_mul_f32 v83, v49, v81", f"v_mul_f32 v82, {hx(-LOG2E)}, v82", "v_mul_f32 v83, 0.15915494, v83",
      f"v_mul_f32 v84, {hx(32.0)}, v81", f"v_pk_mul_f32 {V(CE,2)}, v[50:51], v[84:85] op_sel_hi:[1,0]"]
anch = ((1, ZP(1)), (16, ZP(16)), (256, ZT(1)))
for k, (p, d) in enumerate(anch):
    if p == 1: kg += [f"v_exp_f32 v{86+k}, v82", f"v_fract_f32 v{90+k}, v83"]
    else: kg += [f"v_mul_f32 v{86+k}, {hx(p)}, v82", f"v_mul_f32 v{90+k}, {hx(p)}, v83", f"v_exp_f32 v{86+k}, v{86+k}", f"v_fract_f32 v{90+k}, v{90+k}"]
for k, (p, d) in enumerate(anch): kg += [f"v_cos_f32 v{d}, v{90+k}", f"v_sin_f32 v{d+1}, v{90+k}"]
for k, (p, d) in enumerate(anch):
    s0 = 86 + k
    kg.append(f"v_pk_mul_f32 {V(d,2)}, {V(d,2)}, {V(s0 & ~1,2)} op_sel:[0,{s0&1}] op_sel_hi:[1,{s0&1}]")
def cmuls(lst):
    for d, a, b in lst:
        kg.append(f"v_pk_mul_f32 {V(d,2)}, {V(a,2)}, {V(b,2)} op_sel_hi:[1,0]")
        kg.append(f"v_pk_fma_f32 {V(d,2)}, {V(a,2)}, {V(b,2)}, {V(d,2)} op_sel:[1,1,0] op_sel_hi:[0,1,1] neg_lo:[1,0,0]")
rot = [0]
h1_loads = [It(f"buffer_load_dwordx4 v[32:35], v{vH1}, {S(RWS,4)}, s{sG1a} offen sc1", "h1"),
            It(f"buffer_load_dwordx4 v[36:39], v{vH1}, {S(RWS,4)}, s{sG1b} offen sc1", "h1")]
H1AT = OPT.get("h1at", 8)
KBT = 4; pend = []
kbg = [It(f"buffer_store_dwordx4 v[60:63], v{vZS}, {S(RWS,4)}, s{sr} offen sc1", "clr2") for sr in (sZ0, sZ1)] + dma_w1(0, NW1, NW2)
KB0 = OPT.get("kb0", 3); KB1 = OPT.get("kb1", 7)
def put(r, jj, a, b, neg=False):
    t = 192 + 2 * (rot[0] % 8); rot[0] += 1
    n = "-" if neg else ""
    kg.append(f"v_cvt_pk_bf16_f32 v{t}, v{a}, {n}v{a+1}" if a is not None else f"v_mov_b32 v{t}, 0x3f80")
    kg.append(f"v_cvt_pk_bf16_f32 v{t+1}, v{b}, {n}v{b+1}")
    pend.append(f"ds_write2st64_b32 v{vTW+r}, v{t}, v{t+1} offset0:{17*jj} offset1:{17*(jj+1)}")
    if rot[0] % KBT: return
    bt = rot[0] // KBT
    kg.append("\n".join([x for x in maj[:2] if x] + pend)); del maj[:2]; pend.clear()
    if KB0 <= bt < KB1: kg.extend(kbg[(bt - KB0) * len(kbg) // (KB1 - KB0): (bt + 1 - KB0) * len(kbg) // (KB1 - KB0)])
    if bt == H1AT: kg.extend(h1_loads)
cmuls([(T0, ZP(16), ZP(16)), (T1, T0, T0), (T0, T1, T1), (CO, CE, T0)])
put(0, 0, CE, CO, True)
cur = (CE, CO)
for r in range(1, 8):
    nx = (184, 186) if cur[0] == CE else (CE, CO)
    cmuls([(nx[0], cur[0], ZP(16)), (nx[1], cur[1], ZP(16))]); put(r, 0, nx[0], nx[1], True); cur = nx
cmuls([(ZP(2), ZP(1), ZP(1)), (ZP(4), ZP(2), ZP(2)), (ZP(8), ZP(4), ZP(4))])
put(0, 2, None, ZP(8))
more = {1: (ZT(2), ZT(1), ZT(1)), 2: (ZT(3), ZT(2), ZT(1)), 3: (ZP(3), ZP(2), ZP(1)), 4: (ZT(4), ZT(2), ZT(2)),
        5: (ZP(5), ZP(4), ZP(1)), 6: (ZP(6), ZP(4), ZP(2)), 7: (ZP(7), ZP(4), ZP(3))}
for r in range(1, 8): cmuls([more[r], (ZP(8+r), ZP(8), ZP(r))]); put(r, 2, ZP(r), ZP(8+r))
have = {1, 2, 3, 4}
def rowval(n, tmp):
    k, i = n
    if k == "R0": return ZP(16)
    t, st = {"R1": (1, 2), "A": (2, 4), "B": (3, 4)}.get(k) or (int(k[1]), 8)
    if t not in have: cmuls([(ZT(t), ZT(4), ZT(t - 4))]); have.add(t)
    if i == 0: return ZT(t)
    cmuls([(tmp, ZT(t), ZP(st * i))]); return tmp
for j in (0, 2):
    for c in range(8): put(c, 4 + j, rowval(CLS[c][j], T0), rowval(CLS[c][j+1], T1))
assert rot[0] == 32 and not maj
kg = items(kg)
def kgen(n):
    while kg and n > 0:
        assert not (kg[0].tag in ("clr2", "h1") and "ob1" not in vmq)
        n -= kg[0].cost; kg.pop(0)()
KS = [int(x) for x in OPT.get("ks", "60-40-0-12").split("-")]

wlg0()
st_pool[:] = [14, 16, 18, 20]
kgen(KS[0])
stamp2("k_pro")
e("s_mov_b32 s7, 0x3f803f80")
wvm("xs")
stamp("x_in")
for i in range(8):
    e(f"v_dot2c_f32_bf16 v52, s7, v{32+i}"); e(f"v_dot2c_f32_bf16 v53, v{32+i}, v{32+i}")
unp = []
for d in range(8): unp += [f"v_lshlrev_b32 v{64+2*d}, 16, v{40+d}", f"v_and_b32 v{65+2*d}, 0xffff0000, v{40+d}"]
run(tg[:2])
k = 2
for d in ("quad_perm:[1,0,3,2]", "quad_perm:[2,3,0,1]", "row_half_mirror", "row_mirror", "row_bcast:15 row_mask:0xa"):
    e(f"v_add_f32 v52, v52, v52 {d}"); e(f"v_add_f32 v53, v53, v53 {d}")
    if k < 6: run(tg[k:k+1]); k += 1
e(f"v_mul_f32 v52, {hx(1/512)}, v52")
e(f"v_mul_f32 v53, {hx(1/512)}, v53")
e("v_fma_f32 v53, -v52, v52, v53")
e("v_max_f32 v53, 0, v53")
e(f"v_add_f32 v53, {hx(EPS)}, v53")
e("v_rsq_f32 v53, v53")
run(tg[6:7])
e(f"v_mul_f32 v54, {hx(1/16)}, v53")
e(f"v_mul_f32 v52, v52, v54"); e(f"v_sub_f32 v55, {hx(C0)}, v52")
run(tg[7:9])
ds(f"ds_write_b64 v{vS1W}, v[54:55]")
run(tg[9:])
kgen(KS[1])
stamp2("l_st")
wlg0()
e("s_barrier")
stamp2("l_bar")
ds(f"ds_read_b128 v[208:211], v{vS1R}", "st"); ds(f"ds_read_b128 v[212:215], v{vS1R} offset:16", "st")
kgen(KS[2])
wvm("xg")
run(unp)
kgen(KS[3])
e(f"s_mov_b32 s4, {hx(-C0)}")
wlg("st")
stamp2("l_rd")
for par in range(2):
    for i in range(4): e(f"v_pk_fma_f32 {V(64+2*(2*i+par),2)}, {V(64+2*(2*i+par),2)}, {V(208+2*i,2)}, {V(208+2*i,2)} op_sel:[0,0,1] op_sel_hi:[1,0,1]")
    for i in range(4): e(f"v_pk_add_f32 {V(64+2*(2*i+par),2)}, {V(64+2*(2*i+par),2)}, s[4:5] op_sel_hi:[1,0]")
    for i in range(4): e(f"v_cvt_pk_bf16_f32 v{40+4*par+i}, v{64+2*(2*i+par)}, v{65+2*(2*i+par)}")
    for i in range(4): e(f"v_bfi_b32 v{40+4*par+i}, v{vMASK}, s{sTAG+i}, v{40+4*par+i}")
for par in range(2): vm(f"buffer_store_dwordx4 {V(40+4*par,4)}, v3, {S(RWS,4)}, s{sOB1} offen offset:{1024*par} sc1", "ob1")
stamp("u_out")
for i in range(4): e(f"v_mov_b32 v{60+i}, -1")
kgen(9999)
stamp2("k_tab")
wlg0(); e("s_barrier")
stamp("tables")
def rdK(ks):
    if ks < 8:
        ds(f"ds_read_b128 {V(128+12*ks,4)}, v{vTL} offset:{64*ks}")
        for t in range(2): ds(f"ds_read_b128 {V(132+12*ks+4*t,4)}, v{vTR+t} offset:{64*ks}", ("ka", ks))
for ks in range(4): rdK(ks)
kf = B_conv + ["v_and_b32 v30, 127, v0", "v_cmp_eq_u32 vcc, 0, v30", f"v_mov_b32 v30, {hx(16.0)}", f"v_mul_f32 v30, s{sDSK}, v30", f"v_cndmask_b32 v{vD}, 0, v30, vcc"]
run(kf[:8])
kw = dma_w1(0, NW2, NW3); K0 = max(H1AT - 9, 0); KN_ = 9 - K0
def kmem(ks):
    if H1AT == 9 + ks: run(h1_loads)
    if ks >= K0: run(kw[(ks - K0) * len(kw) // KN_:(ks + 1 - K0) * len(kw) // KN_])
def kstep(ks):
    wlg(("ka", ks))
    if ks == 0: stamp2("k_rd")
    for t in range(2): e(f"v_mfma_f32_16x16x32_bf16 {V(64+4*t,4)}, {V(132+12*ks+4*t,4)}, {V(128+12*ks,4)}, {V(64+4*t,4) if ks else 0}")
    rdK(ks + 4); kmem(ks)
sched([lambda ks=ks: kstep(ks) for ks in range(8)], (kf[8:],))
stamp2("k_mf")
e("s_bitcmp1_b32 s6, 0")
e("s_nop 2")
e("s_cbranch_scc1 L_kw1")
cv = lambda d, lo, hi: e(f"v_cvt_pk_bf16_f32 v{d}, v{lo}, v{hi}")
o0 = 2 * (2044 - 256)
e(f"v_add_f32 v64, v64, v{vD}")
cv(40, 67, 66); cv(41, 65, 64); cv(42, 71, 67); cv(43, 66, 65); cv(44, 70, 69); cv(45, 68, 68); cv(46, 70, 70); cv(47, 69, 68)
e("s_mov_b64 exec, 1"); ds(f"ds_write_b16_d16_hi v{vKW-1}, v41 offset:{o0+512+KCOPY+8}"); e("s_mov_b64 exec, -1")
for r, o in ((40, o0 + 512), (42, o0 + 512 + KCOPY), (44, o0), (46, o0 + KCOPY)): ds(f"ds_write_b64 v{vKW-1}, {V(r,2)} offset:{o}")
e("s_branch L_kw2")
lab("L_kw1")
o1 = 2 * (2040 - 512); o2 = 2 * (2032 - 1024)
cv(72, 70, 70); cv(73, 70, 70); cv(74, 69, 69); cv(75, 69, 69); cv(76, 69, 69); cv(77, 69, 68); cv(78, 68, 68); cv(79, 68, 68)
cv(40, 66, 66); cv(41, 65, 65); cv(42, 65, 64); cv(43, 64, 64)
e(f"ds_write_b128 v{vKW+1}, v[72:75] offset:{o2}"); e(f"ds_write_b128 v{vKW+1}, v[76:79] offset:{o2+16}"); e(f"ds_write_b128 v{vKW}, v[40:43] offset:{o1}")
cv(74, 70, 69); cv(77, 69, 69); cv(41, 66, 65); cv(42, 65, 65)
e(f"ds_write_b128 v{vKW+1}, v[72:75] offset:{o2+KCOPY}"); e(f"ds_write_b128 v{vKW+1}, v[76:79] offset:{o2+KCOPY+16}"); e(f"ds_write_b128 v{vKW}, v[40:43] offset:{o1+KCOPY}")
lab("L_kw2")
kmem(8)
stamp("K_out")

warm("wh")
wvm("h1")
stamp2("h1w")
lab("L_h1chk")
for d in range(8): e(f"v_xor_b32 v{32+d}, s{sTAG+(d&3)}, v{32+d}")
e("v_or3_b32 v40, v32, v33, v34"); e("v_or3_b32 v41, v35, v36, v37"); e("v_or3_b32 v40, v40, v38, v39")
e(f"v_bitop3_b32 v40, v40, v41, v{vMASK} bitop3:0xa8")
e("v_cmp_ne_u32 vcc, 0, v40")
e("s_mov_b32 s4, 0x30003000")
e("s_cbranch_vccnz L_h1retry")
lab("L_h1ok")
retry("h1", h1_loads)
for g in range(2):
    b = 32 + 4 * g; o = 40 + 4 * g
    e(f"v_perm_b32 v{o}, v{b+1}, v{b}, s{sPERMLO}"); e(f"v_perm_b32 v{o+1}, v{b+3}, v{b+2}, s{sPERMLO}")
    e(f"v_perm_b32 v{o+2}, v{b+1}, v{b}, s{sPERMHI}"); e(f"v_perm_b32 v{o+3}, v{b+3}, v{b+2}, s{sPERMHI}")
    for i in range(4): e(f"v_or_b32 v{o+i}, s4, v{o+i}")
    ds(f"ds_write_b64 v{vUW}, {V(o,2)} offset:{2048*g}"); ds(f"ds_write_b64 v{vUW}, {V(o+2,2)} offset:{2048*g+USZ}")
count("h1")
stamp2("u_wr")
TA0 = OPT.get("ta0", 0)
if TA0: assert NW3 == 16; wvm(("w1", 0))
wlg0(); e("s_barrier")
stamp("u_in")

FA = lambda st, d1: 128 + 64 * (st & 1) + 4 * d1
FB = lambda st, sg: 160 + 64 * (st & 1) + 4 * sg
def rdC(st):
    out = []
    for t in range(8):
        for hf in range(2):
            o = 128 * (1 - (t & 1)) + 16 * (3 - st) + 2 * hf
            out.append(It(f"ds_read2_b32 {A(FA(st,t)+2*hf,2)}, v{vA+(t>>1)} offset0:{o} offset1:{o+1}", ("c", st, t)))
        out.append(It(f"ds_read_b128 {A(FB(st,t),4)}, v{vB} offset:{512*t+64*(3-st)}", ("c", st, t)))
    return out
first = rdC(0)
run(first[:12])
e("s_cmp_lg_u32 s2, 0"); e("s_cbranch_scc1 L_noepoch")
e(f"v_mov_b32 v32, s{sHT}"); e(f"v_writelane_b32 v32, s{sE}, 0"); e("v_lshlrev_b32 v28, 2, v1"); e("s_mov_b64 exec, 0xff")
e(f"buffer_store_dword v32, v28, {S(RWS,4)}, 0 offen sc1"); e("s_mov_b64 exec, -1")
lab("L_noepoch")
ACC = lambda t: 64 + 4 * t
seq = [(t, d1, t - d1) for t in range(8) for d1 in range(t + 1)]
def cmf(st, t, d1, sg):
    if OPT.get("fine") and t == 0 and st > 0: stamp(f"s{st}")
    e(f"v_mfma_f32_16x16x32_bf16 {V(ACC(t),4)}, {A(FA(st,d1),4)}, {A(FB(st,sg),4)}, {0 if (st == 0 and d1 == 0) else V(ACC(t),4)}")
main = [lambda st=st, q=q: cmf(st, *q) for st in range(4) for q in seq]
cw = [(36 * st + t * (t + 1) // 2 - 1, It(lambda st=st, t=t: wlg(("c", st, t)))) for st in range(3) for t in range(8) if st or t]
cw.append((107, It(lambda: (wlg0(), e("s_barrier")))))
xun = []
for d in range(8): xun += [f"v_lshlrev_b32 v{32+2*d}, 16, v{vX+d}", f"v_and_b32 v{33+2*d}, 0xffff0000, v{vX+d}"]
if OPT.get("red64", 0):
    redw = [(min(143, 108 + t*(t+1)//2 + t + 6 + 2 * hf), It(f"ds_write_b64 v{vRW}, {V(ACC(t)+2*hf,2)} offset:{1024*t+8*hf}")) for t in range(8) for hf in range(2)]
else:
    redw = [(min(143, 108 + t*(t+1)//2 + t + 6), It(f"ds_write_b128 v{vRW}, {V(ACC(t),4)} offset:{1024*t}")) for t in range(8)]
WA = OPT.get("wa", 16); WB = OPT.get("wb", 60 if T1IN else 106); TA = OPT.get("ta", 36 if T1IN else 50); TB_ = OPT.get("tb", 72); WE = OPT.get("we", 143)
dmas = lambda us: [x for u in us for x in dma_w2(u)]
trs_ = lambda us: [x for u in us for x in tr_w2(u)]
wlg(("c", 0, 0))
wst = [] if TA0 else at([(TA - 1, [WV(("w1", 0)), It("s_barrier")])])
if T1IN:
    wst += at([(TB_ - 1, [WV(("w1", 1)), WL(("t1", 0)), It("s_barrier")])]) + \
          [(tr_w1(0), TA, TB_ - 4), (tr_w1(1), TB_ - 2, 104), (dmas(PH[0]), TB_, WE)]
else:
    wst += [(tr_w1(0), TA, 104), (dmas(PH[0]), 108, WE)]
sched(main, *at(cw), (first[12:], 0, 6), (rdC(1), 6, 34), (rdC(2), 36, 69), (rdC(3), 72, 104), *wst,
      (B_posts, 36, 140), (dma_w1(0, NW3, 16), 0, max(WA, 1)), (dma_w1(1, 0, 16), WA, WB),
      (B_w2, 8, TA - 1), (B_red + B_x2, TA, 106), *at(redw), cap=2)
stamp("conv")
wlg0()
e("s_barrier")
stamp2("c_bar")
for k in range(2):
    for src in range(4): ds(f"ds_read_b128 {V(64+16*k+4*src,4)}, v{vRR} offset:{8192*src+1024*k}", ("red", k))
for k in range(2):
    b = 64 + 16 * k
    wlg(("red", k))
    for c in range(2):
        for hf in range(2): e(f"v_pk_add_f32 {V(b+8*c+2*hf,2)}, {V(b+8*c+2*hf,2)}, {V(b+8*c+4+2*hf,2)}")
    for c in range(2):
        for hf in range(2): e(f"v_pk_fma_f32 {V(b+8*c+2*hf,2)}, {V(b+8*c+2*hf,2)}, {S(sLM,2)}, {S(sLM,2)} op_sel:[0,0,1] op_sel_hi:[1,0,1]")
    for i in range(4): e(f"v_cvt_pk_bf16_f32 v{48+4*k+i}, v{b+i}, v{b+8+i}")
    vm(f"buffer_store_dwordx4 {V(48+4*k,4)}, v3, {S(RWS,4)}, s{sOB2} offen offset:{1024*k} sc1", "ob2")
stamp("a_out")

run(dmas(PH[1]))
if not T1IN:
    t1 = tr_w1(1); run(t1[:1]); wvm(("w1", 1)); e("s_barrier"); run(t1[1:])
run(B_post)
wvm("x2")
run(xun)
h2_loads = [It(f"buffer_load_dword v{80+d}, v{vAG}, {S(RWS,4)}, s{sO8+d} offen sc1", "h2") for d in range(8)]
stamp("r0")
wvm("ob2")
run(h2_loads)
stamp("poll2")
warm("wb2")
e("v_mov_b32 v52, 0"); e("v_mov_b32 v53, 0")
wvm("h2")
lab("L_h2chk")
for g in range(4): e(f"v_bitop3_b32 v{60+g}, v{80+2*g}, v{81+2*g}, s{sHT} bitop3:0x7e")
e("v_or3_b32 v60, v60, v61, v62"); e("v_bitop3_b32 v60, v60, v63, v27 bitop3:0xa8"); e("v_cmp_ne_u32 vcc, 0, v60")
for d in range(4):
    e(f"v_lshlrev_b32 v{64+2*d}, 16, v{80+d}"); e(f"v_and_b32 v{65+2*d}, 0xffff0000, v{80+d}")
e("s_cbranch_vccnz L_h2retry")
lab("L_h2ok")
retry("h2", h2_loads)
count("h2")
stamp("a_in")
run(dmas(PH[2]))
for d in range(4, 8):
    e(f"v_lshlrev_b32 v{64+2*d}, 16, v{80+d}"); e(f"v_and_b32 v{65+2*d}, 0xffff0000, v{80+d}")
for d in range(8): e(f"v_pk_fma_f32 {V(64+2*d,2)}, {V(64+2*d,2)}, s[{sHT}:{sLAM}], {V(32+2*d,2)} op_sel:[0,1,0] op_sel_hi:[1,1,1]")
for d in range(8): e(f"v_cvt_pk_bf16_f32 v{40+d}, v{64+2*d}, v{65+2*d}")
for d in range(8):
    e(f"v_dot2c_f32_bf16 v52, s{sONES}, v{40+d}"); e(f"v_dot2c_f32_bf16 v53, v{40+d}, v{40+d}")
run(unp[:2])
e("v_add_f32 v52, v52, v52 row_ror:8"); e("v_add_f32 v53, v53, v53 row_ror:8")
run(unp[2:4])
e("v_permlane16_swap_b32 v52, v53")
e("v_add_f32 v52, v52, v53")
e("v_mov_b32 v53, v52")
run(unp[4:6])
e("v_permlane32_swap_b32 v52, v53")
e("v_add_f32 v52, v52, v53")
ds(f"ds_write_b32 v{vS2W}, v52")
run(unp[6:10])
stamp2("z_st")
wlg0(); e("s_barrier")
stamp2("z_bar")
ds(f"ds_read2st64_b64 v[32:35], v{vS2R} offset0:0 offset1:4"); ds(f"ds_read2st64_b64 v[36:39], v{vS2R} offset0:8 offset1:12")
e(f"s_mov_b32 s4, {hx(1/512)}")
run(unp[10:])
wlg0()
e("v_pk_add_f32 v[32:33], v[32:33], v[34:35]"); e("v_pk_add_f32 v[36:37], v[36:37], v[38:39]"); e("v_pk_add_f32 v[32:33], v[32:33], v[36:37]")
e("v_pk_mul_f32 v[32:33], v[32:33], s[4:5] op_sel_hi:[1,0]")
e("v_fma_f32 v33, -v32, v32, v33"); e("v_max_f32 v33, 0, v33")
e(f"v_add_f32 v34, {hx(EPS)}, v33"); e("v_rsq_f32 v34, v34")
e("v_mul_f32 v33, v33, v34"); e(f"v_fmaak_f32 v33, v33, v34, {hx(EPS)}"); e("v_rsq_f32 v33, v33")
e(f"v_mul_f32 v34, {hx(SS)}, v34"); e("v_mul_f32 v34, v34, v33"); e("v_mul_f32 v35, -v32, v34")
for k in range(2):
    for d in range(4 * k, 4 * k + 4): e(f"v_pk_fma_f32 {V(64+2*d,2)}, {V(64+2*d,2)}, v[34:35], v[34:35] op_sel:[0,0,1] op_sel_hi:[1,0,1]")
    for d in range(4 * k, 4 * k + 4): e(f"v_cvt_pk_bf16_f32 v{48+d}, v{64+2*d}, v{65+2*d}")
    vm(f"buffer_store_dwordx4 {V(48+4*k,4)}, v{vZS}, {S(RWS,4)}, s{sZ0+k} offen sc1", "zst")
stamp("z_out")

G1 = lambda t: 64 + 16 * (t & 1)
BIAS = 112
sh = bf16_rne(SS); sl = bf16_rne(SS - bf16_val(sh))
adr = ["v_accvgpr_read_b32 v32, a112", "v_mov_b32 v33, 0", "v_mov_b32 v34, 0", "v_mov_b32 v35, 0", "v_lshl_or_b32 v32, v32, 16, v32",
       "v_cmp_gt_u32 vcc, 32, v1", f"v_mov_b32 v36, {hex(sh | (sl << 16))}", "v_mov_b32 v37, 0", "v_mov_b32 v38, 0", "v_mov_b32 v39, 0", "v_cndmask_b32 v36, 0, v36, vcc",
       f"s_mov_b32 s{sCNT}, 0", f"s_mov_b32 s10, {hx(GC)}", f"v_mfma_f32_32x32x16_bf16 {V(BIAS,16)}, v[32:35], v[36:39], 0"]
run(dmas(PH[3]))
run(trs_(PH[0] + PH[1]))
run(adr + [f"v_add_u32 v{vZC+1}, 0x10000, v{vZC}"] + [f"s_mov_b32 s{sO8+d}, {OB2 + 8192*d}" for d in range(8)])
warm("wz")
stamp("w1b")
wvm("zst")

T0_ = lambda t: X0(2 * t)
def tile_of(n): return (n // 32, n % 32) if n < 128 else (4 + (n - 128) // 28, (n - 128) % 28)
def x_dma(x, tmp=None):
    tmp = tmp or sTD
    return [It(f"s_add_u32 m0, s{sM4 if x < 8 else sM7}, {SLOT['x', x]}"),
            It(f"s_xor_b32 s{tmp}, s{sZa}, {16384*x}" if x < 8 else f"s_xor_b32 s{tmp}, s{sHL}, {131072*(x//2-4) + 16384*(x&1)}")] + \
           [It(f"buffer_load_dwordx4 v{vL16}, {S(RWS,4)}, s{tmp} offen offset:{1024*i} sc1 lds", ("x", x)) for i in range(4)]
def x_check(xs):
    name = f"x{xs[0]}"; rd = []
    for k, x in enumerate(xs):
        o = SLOT["x", x]; hi = o >= 65536
        if x < 8: rd += [f"ds_read2st64_b32 {V(48+4*k+2*i,2)}, v{vZCs[o//65536]} offset0:{o%65536//256+8*i} offset1:{o%65536//256+8*i+4}" for i in range(2)]
        else: rd += [f"ds_read2st64_b64 {V(44+8*k+4*i,4)}, v{vHC+hi} offset0:{o//512-128*hi+4*i} offset1:{o//512-128*hi+4*i+2}" for i in range(2)]
    if xs[0] < 8:
        ck = ["v_max3_u32 v48, v48, v49, v50"]
        ck += ["v_max3_u32 v52, v52, v53, v54", "v_max3_u32 v48, v48, v51, v55", "v_max_u32 v48, v48, v52"] if len(xs) == 2 else ["v_max_u32 v48, v48, v51"]
        ck += ["v_cmp_eq_u32 vcc, -1, v48"]
    else:
        ck = [f"v_bitop3_b32 v{44+2*i}, v{44+2*i}, v{45+2*i}, s{sHT} bitop3:0x7e" for i in range(4 * len(xs))]
        ck += ["v_or3_b32 v44, v44, v46, v48"] + ["v_or3_b32 v50, v50, v52, v54", "v_or3_b32 v44, v44, v56, v58"] * (len(xs) - 1)
        ck += ["v_bitop3_b32 v44, v44, v50, v27 bitop3:0xa8", "v_cmp_ne_u32 vcc, 0, v44"]
    br = f"s_cbranch_vccnz L_{name}retry"
    def fin():
        again = sorted({q[1] for q in vmq if isinstance(q, tuple) and q[0] == "x" and q[1] >= xs[0]})
        retry(name, [It("s_mov_b32 s4, m0")] + [i for q in again for i in x_dma(q, 5)] + [It("s_mov_b32 m0, s4")], 0, rd + ["s_waitcnt lgkmcnt(0)"] + ck + [br])
        e(br); lab(f"L_{name}ok"); e("s_barrier")
    return (items(rd, ("zc", name)), [WL(("zc", name))] + ck, [It(fin, cost=2)])
ZR = lambda n: 224 + 4 * (n % 8)
def rdZ(n):
    x = max(x for x in range(16) if X0(x) <= n); hi, o = divmod(SLOT["x", x], 65536)
    return [It(f"ds_read_b128 {A(ZR(n),4)}, v{(vL16, 3, vLC)[hi]} offset:{o + 1024*(n - X0(x))}", ("zr", n))]
run(x_dma(0) + x_dma(1) + x_dma(2))
stamp("zpoll")
wvm(("x", BG[0][-1]))
for x in x_check(BG[0]): run(x)
count("z0")
stamp("z_in")
for n in range(DEPTH): run(rdZ(n))
G2 = lambda t: 96 + 16 * (t & 1)
def g_mfma(n):
    t, s = tile_of(n)
    if s == 0 and t == 4: count("z"); stamp("g1b")
    elif OPT.get("fine") and s == 0 and t: stamp(f"t{t-1}")
    elif OPT.get("f8") and n % 8 == 0 and n: stamp(f"n{n}")
    if t < 4: e(f"v_mfma_f32_32x32x16_bf16 {V(G1(t),16)}, {V(W1F(s),4)}, {A(ZR(n),4)}, {V(G1(t) if s else BIAS,16)}")
    else: e(f"v_mfma_f32_32x32x16_bf16 {V(G2(t),16)}, {A(8*(s%14)+4*(s//14),4)}, {A(ZR(n),4)}, {V(G2(t),16) if s else 0}")
def chk_at(b):
    c = x_check(b[1]); tags = [("x", x) for x in b[1]] + [("u", y) for y in PH[4] if YR[y] == b[0]]
    w = It(lambda: wvm(min((t for t in tags if t in vmq), key=lambda t: cnt(vmq, t))))
    return at([(b[0], c[2])]), [([w] + c[0], ck0(b), ck0(b) + 2), (c[1], b[0] - 1 - ckw(b[1]), b[0] - 1)]
def gelu(r):
    a = G1(r); out = []
    for i in range(0, 16, 2):
        t = 40 + (i & 2); b = a + i
        if OPT.get("nog"): out.append(f"v_mov_b32 v{32+i//2}, s{sHT}")
        else:
            for k in range(2): out += [f"v_fma_f32 v{t+k}, v{b+k}, v{b+k}, s10", f"v_mul_f32 v{t+k}, v{t+k}, v{b+k}", f"v_exp_f32 v{t+k}, v{t+k}"]
            for k in range(2): out += [f"v_fma_f32 v{t+k}, v{t+k}, s{sLAM}, s{sLAM}", f"v_rcp_f32 v{t+k}, v{t+k}"]
            for k in range(2): out += [f"v_fma_f32 v{t+k}, v{t+k}, v{b+k}, s{sCQ}"]
            out.append(f"v_cvt_pk_bf16_f32 v{32+i//2}, v{t}, v{t+1}")
        if i in (2, 10): out.append(f"s_xor_b32 s{sHD}, s{sHS}, {131072*r + 16384*(i//8)}")
        if i in (6, 14): out.append(It(f"buffer_store_dwordx4 {V(32+4*(i//8),4)}, v{vL16}, {S(RWS,4)}, s{sHD} offen sc1", ("hst", r, i // 8)))
    return items(out)

cks = [chk_at(b) for b in BAR[1:]]
plan = [([WV(("hst", x // 2 - 4, x & 1))] * (OPT.get("pace", 1) and x >= 8) + x_dma(x), DX[x], DX[x] + DL) for x in range(3, 16)]
plan += [(dma_w2(y), DY[y], DY[y] + DL) for y in PH[4]] + [(tr_w2(y), *YT[y]) for y in YT]
PR = lambda s: 128 + 8 * s
PS = lambda s: 152 + 8 * s
def p_pack(s):
    a = G2(s)
    return [x for i in range(8) for x in (f"v_fma_f32 v{a+2*i}, v{a+2*i}, v{vFF}, s{sCQ}", f"v_fma_f32 v{a+2*i+1}, v{a+2*i+1}, v{vFF}, s{sCQ}", f"v_cvt_pk_bf16_f32 v{PS(s)+i}, v{a+2*i}, v{a+2*i+1}")]
def p_store(s, i):
    return [f"s_xor_b32 s{sPD}, s{sPS}, {(s << 21) | ((3 ^ s) << 15)}"] * (1 - i) + [It(f"buffer_store_dwordx4 {V(PS(s)+4*i,4)}, v{vL16}, {S(RWS,4)}, s{sPD} offen offset:{1024*i} sc1", ("pst", s))]
def p_load(s):
    return [It(f"s_add_u32 s79, s{sPS}, {s << 21}")] + [It(f"buffer_load_dwordx4 {V(PR(s)+4*i,4)}, v{vL16}, {S(RWS,4)}, s79 offen offset:{1024*i} sc1", ("p", s)) for i in range(2)]
def p_check(s):
    name = f"p{s}"; a = PR(s)
    ck = [f"v_bitop3_b32 v60, v{a+1}, v{a+3}, s{sHT} bitop3:0x7e", f"v_bitop3_b32 v61, v{a+5}, v{a+7}, s{sHT} bitop3:0x7e", "v_bitop3_b32 v60, v60, v61, v27 bitop3:0xa8", "v_cmp_ne_u32 vcc, 0, v60"]
    br = f"s_cbranch_vccnz L_{name}retry"
    retry(name, p_load(s), 0, ck + [br])
    return [WV(("p", s))] + ck, [It(lambda: (e(br), lab(f"L_{name}ok")))]
p_add = lambda s, d: [f"v_dot2c_f32_bf16 v{d+i}, s{sLAM if i & 1 else 80}, v{PR(s)+i//2}" for i in range(16)]
RX, RA_, RB, RS = (20, 21, 22, 23, 60, 61, 62, 63), (4, 5, 6, 7, 18, 19, 25, 26), 192, 200
r_load = [It(f"global_load_dwordx4 {V(RX[4*i],4)}, v{vOUT}, {S(SX,2)} offset:{16*i}", "rl") for i in range(2)] + \
         [It(f"buffer_load_dword v{RA_[d]}, v{vRA}, {S(RWS,4)}, s{sO8+d} offen sc1", "rl") for d in range(8)] + \
         [It(f"global_load_dwordx4 {V(RB+4*i,4)}, v24, {S(SB2,2)} offset:{16*i}", "rl") for i in range(2)]
resid = [WV("rl")]
for d in range(8):
    resid += [f"v_lshlrev_b32 v216, 16, v{RA_[d]}", f"v_and_b32 v217, 0xffff0000, v{RA_[d]}", f"v_lshlrev_b32 v218, 16, v{RX[d]}", f"v_and_b32 v219, 0xffff0000, v{RX[d]}",
              f"v_fma_f32 v216, v216, s{sLAM}, v218", f"v_fma_f32 v217, v217, s{sLAM}, v219", "v_cvt_pk_bf16_f32 v216, v216, v217",
              f"v_lshlrev_b32 v218, 16, v{RB+d}", f"v_and_b32 v219, 0xffff0000, v{RB+d}", "v_and_b32 v217, 0xffff0000, v216", "v_lshlrev_b32 v216, 16, v216",
              f"v_add_f32 v{RS+2*d}, v216, v218", f"v_add_f32 v{RS+2*d+1}, v217, v219"]
GP = iv("gp", "166-176-192-200-217-219"); GL = iv("gl", "210-224-228-240"); GR = iv("gr", "68-76-90-96-136-172-204")
PK = [OPT.get("pk0", 160), T0_(6) + 2, T0_(7) + 2]
plan += [(p_pack(s), PK[s], PK[s] + 5) for s in range(3)] + at([(GP[x], p_store(x // 2, x & 1)) for x in range(6)])
assert all(PK[s] + 3 <= GP[2*s] and PK[s] + 5 <= GP[2*s+1] for s in range(3)) and GL[1] > BAR[-1][0] and GL[2] > GL[1] + 2 and GR[6] <= GL[1]
assert GR[2] > max(b[0] for b in BAR if 7 in b[1]) and GR[2] >= max([0] + list(DY.values())) + DL and GR[4] >= 128
pc = [p_check(s) for s in range(3)]
plan += [(r_load[:2], GR[0], GR[1]), (r_load[2:10], GR[2], GR[3]), (r_load[10:], GR[4], GR[4] + 2), (p_load(0), GL[0], GL[0] + 2), (pc[0][0], GL[1], GL[1] + 1), (p_load(1), GL[2], GL[2] + 2), (p_add(0, RS), GL[1] + 3, GL[1] + 8)]
if GL[3] < 240: plan.append((p_load(2), GL[3], GL[3] + 1))
G3E = OPT.get("g3e", 160)
wlg(("zr", 0))
sched([lambda n=n: g_mfma(n) for n in range(240)], *[x for c in cks for x in c[0]], *at([(GL[1] + 2, pc[0][1])]),
      *at([(n, rdZ(n + DEPTH)) for n in range(240 - DEPTH)]), *[x for c in cks for x in c[1]], *plan,
      waits=lambda n: WL(("zr", n)), fill=[(gelu(0), 33, 64), (gelu(1), 65, 96), (gelu(2), 97, 128), (gelu(3), 129, G3E), (resid, GR[5], GR[6])])
count("h")
stamp("g2m")
if GL[3] == 240: wvm(("pst", 2)); run(p_load(2))
b = G2(3)
run(pc[1][0])
for i in range(0, 16, 2): e(f"v_pk_fma_f32 {V(b+i,2)}, {V(b+i,2)}, s[{sCQ}:{sFIN}], {V(RS+i,2)} op_sel:[0,1,0] op_sel_hi:[1,1,1]")
run(pc[1][1] + p_add(1, b))
stamp("pst")
run(pc[2][0] + pc[2][1])
count("p")
stamp("p_in")
run(p_add(2, b))
for i in range(8): e(f"v_cvt_pk_bf16_f32 v{32+i}, v{b+2*i}, v{b+2*i+1}")
for k in range(2): vm(f"global_store_dwordx4 v{vOUT}, {V(32+4*k,4)}, {S(SOUT,2)} offset:{16*k}", "out")
if OPT["stamps"]:
    stamp("end"); wlg0()
    e("s_lshl_b32 s4, s2, 2"); e("s_add_u32 s4, s4, s6"); e("s_lshl_b32 s4, s4, 8"); e(f"s_add_u32 s4, s4, {STAMP}")
    e("v_lshlrev_b32 v30, 2, v1")
    e(f"buffer_store_dword v31, v30, {S(RWS,4)}, s4 offen")
if OPT.get("pc"):
    e("s_load_dwordx2 s[4:5], s[0:1], 104"); e("s_getpc_b64 s[10:11]"); lab("L_pc2"); e(f"s_sub_u32 s10, s10, L_pc2-L_pc+40")
    e("v_mov_b32 v32, s10"); e("v_mov_b32 v33, s11"); e("v_mov_b32 v30, 0"); e("s_waitcnt lgkmcnt(0)"); e("global_store_dwordx2 v30, v[32:33], s[4:5]")
if OPT.get("diag"):
    e("v_readfirstlane_b32 s10, v31")
    lab("L_diag")
    e("s_memrealtime s[14:15]"); e("s_waitcnt lgkmcnt(0)"); e("s_sub_u32 s14, s14, s10"); e(f"s_cmp_lt_u32 s14, {OPT['diag']}"); e("s_cbranch_scc1 L_diag")
e("s_endpgm")
i = 0
while i < len(tail): tail[i](); i += 1
lab("L_end")
e("s_endpgm")

body, added = hz.fix(L, verbose=OPT.get("hz", False))
if OPT.get("align", 1): body, pads = hz.align(body, hops=hops, step=STEP)
if OPT["stamps"]:
    pen = []; sim = hz.simulate(body, pen)
    print("model:", " ".join("%s %d(%d)" % x for x in zip([n for n in stamp_names if n[0] != "#"], sim, pen)))
post = f""".section .rodata,"a"
.p2align 6
.amdhsa_kernel {lab_name}
  .amdhsa_next_free_vgpr 512
  .amdhsa_next_free_sgpr 102
  .amdhsa_accum_offset 256
  .amdhsa_group_segment_fixed_size 0
  .amdhsa_kernarg_size 120
  .amdhsa_user_sgpr_count 2
  .amdhsa_user_sgpr_kernarg_segment_ptr 1
  .amdhsa_system_sgpr_workgroup_id_x 1
.end_amdhsa_kernel
"""
open(sys.argv[1], "w").write(pre + "\n".join(body) + "\n" + post)
if OPT["stamps"]: open(sys.argv[1] + ".stamps", "w").write(" ".join(stamp_names))
if OPT.get("plan"):
    sz = hz.sizes(body); ad = 0; nm = 0
    for l, z in zip(body, sz):
        if z and (ad + z) // 4096 > ad // 4096: print("page", (ad + z) // 4096, "after mfma", nm)
        if l.startswith("L_") and "retry" not in l: print(l, ad, end=" ")
        nm += "v_mfma" in l; ad += z or 0
if OPT.get("plan"): print(BAR, YR, YT, {k: v // 16384 for k, v in SLOT.items()})
print("instructions:", sum(1 for x in body if hz.Ins(x).is_ins), "nop states added:", added)
```

```python
import sys, math, struct
sys.path.insert(0, "exp")
import hz

KN = "sequential_preLN__ssm_conv_s4d__mixer_channel_mlp__prompt"
OPT = dict(stamps=False, wz="i45.61.77", wx="i13.29")
for a in sys.argv[2:]:
    k, _, v = a.partition("=")
    OPT[k] = (int(v) if v.lstrip("-").isdigit() else v) if v else True

def f2u(x): return struct.unpack("<I", struct.pack("<f", x))[0]
def hx(x): return "0x%08x" % f2u(x)
def bf16_rne(x):
    u = f2u(x); return ((u + 0x7FFF + ((u >> 16) & 1)) >> 16) & 0xFFFF
def bf16_val(h): return struct.unpack("<f", struct.pack("<I", h << 16))[0]

OB1, OB2, ZB, HB, STAMP, PB = 0x100000, 0x300000, 0x500000, 0x900000, 0x1100000, 0x2000000
WS_SIZE = 0x2600000
LA, LB, LC = 0, 65536, 131072
TB = LB
TROW, TCH = 544, 34816
UB = LC + 4096; USZ = 4576
KB = UB + 2 * USZ; KCOPY = 4160; KSZ = 2 * KCOPY
STAT1 = KB + 2 * KSZ
RED = LC
LDS_SIZE = 163840
LOG2E = 1.4426950408889634
K1 = 2.0 * math.sqrt(2.0 / math.pi) * LOG2E
K2 = K1 * 0.044715
SS = -(K2 ** (1.0 / 3.0))
GC = K1 / abs(SS)
C0 = 1.5 * 2.0 ** -8
EPS = 1e-5
MASK = 0x70007000
SPIN = 20000

L = []
vmq = []; lgq = []
def e(s):
    for x in s.split("\n"): L.append("  " + x.strip())
def lab(s): L.append(s + ":")
def vm(s, tag=None): e(s); vmq.append(tag)
def ds(s, tag=None): e(s); lgq.append(tag)
def cnt(q, tag):
    idx = max(i for i, t in enumerate(q) if t == tag)
    return len(q) - 1 - idx
def wvm(tag):
    if tag in vmq: e("s_waitcnt vmcnt(%d)" % min(cnt(vmq, tag), 63))
def wlg(tag): e("s_waitcnt lgkmcnt(%d)" % min(cnt(lgq, tag), 15))
def wlg0(): e("s_waitcnt lgkmcnt(0)"); flush_st()
def V(a, n=1): return f"v{a}" if n == 1 else f"v[{a}:{a+n-1}]"
def A(a, n=1): return f"a{a}" if n == 1 else f"a[{a}:{a+n-1}]"
def S(a, n=1): return f"s{a}" if n == 1 else f"s[{a}:{a+n-1}]"
nstamp = [0]; stamp_names = []; pend_st = []; st_pool = []
def flush_st():
    while pend_st:
        r, i = pend_st.pop(0); e(f"v_writelane_b32 v31, s{r}, {i}"); st_pool.append(r)
def stamp(name):
    if OPT.get("at") == name:
        e("s_memrealtime s[14:15]"); e("s_waitcnt lgkmcnt(0)"); e("v_mov_b32 v31, s14")
    if not OPT["stamps"]: return
    if not st_pool:
        r, i = pend_st.pop(0); e(f"v_writelane_b32 v31, s{r}, {i}"); st_pool.append(r)
    r = st_pool.pop(0)
    e(f"s_memtime s[{r}:{r+1}]" if OPT.get("cyc") else f"s_memrealtime s[{r}:{r+1}]")
    pend_st.append((r, nstamp[0])); nstamp[0] += 1; stamp_names.append(name)
def stamp2(name):
    if OPT.get("f2"): stamp(name)
hops = {}; STEP = OPT.get("step", 256)
def warm(name):
    if not OPT.get(name): return
    if OPT[name][0] == "i": pl = [int(x) for x in OPT[name][1:].split(".")]
    else: pl = list(range(*[int(x) * 1024 // STEP for x in OPT[name].split("-")]))
    e("s_mov_b64 exec, 0")
    for w in range(4):
        ps = pl[len(pl) * w // 4:len(pl) * (w + 1) // 4]
        for p, q in zip(ps, ps[1:] + [None]): hops[p] = f"L_hop{q}" if q else f"L_{name}"
        if ps: e(f"s_cmp_eq_u32 s6, {w}"); e(f"s_cbranch_scc1 L_hop{ps[0]}")
    lab(f"L_{name}"); e("s_mov_b64 exec, -1")
def count(name):
    if not OPT["stamps"]: return
    e(f"v_writelane_b32 v31, s{sCNT}, {nstamp[0]}"); nstamp[0] += 1; stamp_names.append("#" + name)

tail = []
class It:
    def __init__(self, x, tag=None, cost=None):
        self.x = x; self.tag = tag
        if callable(x): self.kind = "s"; self.cost = 1 if cost is None else cost
        else:
            ls = [y.strip() for y in x.split("\n")]
            self.kind = "s" if ls[0].startswith("s_") else "v" if ls[0].startswith("v_") else "m"
            self.cost = sum(hz.icost(y.split()[0]) for y in ls) if cost is None else cost
        self.scalar = self.kind == "s"
    def __call__(self):
        if callable(self.x): return self.x()
        for y in self.x.split("\n"):
            y = y.strip()
            if y.startswith("ds_"): ds(y, self.tag)
            elif y.startswith(("buffer_", "global_")): vm(y, self.tag)
            else: e(y)
def items(lst, tag=None): return [x if isinstance(x, It) else It(x, tag) for x in lst]
def run(lst):
    for x in items(lst): x()
def indep(x, y):
    if x.kind == "s" or y.kind != "v" or "\n" in x.x + y.x: return False
    p, q = hz.Ins(x.x), hz.Ins(y.x)
    return not (p.w & (q.r | q.w) or q.w & p.r)
def sched(main, *streams, cap=6, fill=(), waits=None):
    n = len(main); gaps = [[] for _ in range(n + 1)]
    for sp in streams:
        its = items(sp[0]); a = sp[1] if len(sp) > 1 else 0; b = sp[2] if len(sp) > 2 and sp[2] is not None else n
        tot = sum(i.cost for i in its); k = 0; acc = 0
        for g in range(a, n + 1):
            d = []; t = (g - a + 1) * tot / (b - a)
            while k < len(its) and (acc + its[k].cost / 2.0 <= t or g >= b - 1):
                if its[k].kind == "m" and any(x.kind == "v" for x in d) and g < n and b - a > 1: break
                d.append(its[k]); acc += its[k].cost; k += 1
            if d: gaps[g].append(d)
    if waits:
        skip = False
        for g in range(n - 1):
            if skip: skip = False; continue
            skip = g < n - 2 and any(d[0].scalar for d in gaps[g + 1])
            gaps[g].insert(sum(d[0].cost == 2 and d[0].scalar for d in gaps[g][:1]), [waits(g + 1 + skip)])
    def load(g):
        return sum(x.cost for d in gaps[g] for x in d) - any(d[0].scalar for d in gaps[g])
    for its, a, b in fill:
        its = items(its); free = [max(0, cap - load(g)) for g in range(a, b)]
        for extra in range(0, 400):
            q = list(its); out = []
            for j in range(b - a):
                f = free[j] + (j + 1) * extra // (b - a) - j * extra // (b - a); d = []
                while q:
                    k = next((k for k in range(q[0].kind == "m" and any(x.kind == "v" for x in d), min(6, len(q))) if q[k].cost <= f and all(indep(q[i], q[k]) for i in range(k))
                              and not (d and d[-1].cost == 2 and q[k].kind == "v" and not indep(d[-1], q[k]))), None)
                    if q[0].kind == "m" and not d: k = 0
                    if k is None: break
                    f -= q[k].cost; d.append(q.pop(k))
                out.append(d)
            if all(x.kind != "v" for x in q): break
        out.append(q)
        for j, d in enumerate(out):
            if d: gaps[a + j].append(d)
    for g in range(n + 1):
        if g < n: main[g]()
        due = gaps[g]
        for d in due:
            if d[0].scalar: d.pop(0)(); break
        for d in due:
            while d and (d[0].kind == "m" or (d[0].scalar and any(x.kind == "m" for x in d) or all(x.scalar for x in d))): d.pop(0)()
        for d in due:
            for x in d: x()
def at(pairs):
    return [(x if isinstance(x, list) else [x], g, g + 1) for g, x in pairs]
def merge(a, b):
    if not a: return list(b)
    out = []
    for i, x in enumerate(a):
        out.append(x); out += b[i * len(b) // len(a):(i + 1) * len(b) // len(a)]
    return out
def retry(name, loads, nlater=0, chk=None):
    def f():
        lab(f"L_{name}retry")
        e(f"s_add_u32 s{sCNT}, s{sCNT}, 1"); e(f"s_cmp_gt_u32 s{sCNT}, {SPIN}"); e(f"s_cbranch_scc1 L_{name}ok")
        run(loads)
        e(f"s_waitcnt vmcnt({nlater})")
        if chk is None: e(f"s_branch L_{name}chk")
        else:
            for x in chk: e(x)
            e(f"s_branch L_{name}ok")
    tail.append(f)

SX, SLA, SAI, SCR, SCI, SLDT, SDSK = 8, 10, 12, 14, 16, 18, 20
SW1, SB1, SW2, SB2, SOUT, SWS = 24, 26, 28, 30, 32, 36
sLM = 34
RWS, RW1, RW2 = 36, 40, 44
sHT, sLAM, sCQ, sFIN = 48, 49, 50, 51
sLDT, sDSK, sE, sONES = 52, 53, 54, 55
sTAG = 56
sO8 = 60
sHS, sHD, sHL, sM7, sPS, sPD, sW2 = 68, 69, 70, 71, 72, 73, 74
sOB1, sOB2, sZ0, sZ1, sW1a, sW1b = 82, 83, 84, 85, 86, 87
sCNT, sK, sB, sG, sCH, sM8, sM0, sG1a, sG1b, sJ = 90, 91, 92, 93, 94, 95, 96, 97, 98, 99
sZa, sW3, sM4, sTD = 75, 76, 77, 78
sPERMLO, sPERMHI = 22, 23
vL16, vOBS, vDMA, vZC, vT1, vT2 = 2, 3, 4, 8, 9, 28
vLC, vFF, vHC, vOUT, vRA = 10, 11, 12, 16, 17
vZCs, vT2s = (8, 9, 14), (28, 29, 15)
vMASK, vD, vKW, vH1, vS1R, vUW, vS1W = 8, 9, 12, 14, 15, 16, 17
vTW, vTL, vTR, vAG, vXR, vRW, vRR, vS2W, vS2R, vZS, vXW, vB, vA, vX = 96, 104, 105, 107, 108, 109, 110, 111, 112, 113, 114, 115, 116, 120
PAR = OPT.get("par", 0); XM = OPT.get("xm", 0)
HTAG = 0x40004000
LAM1, LAM0, DELTA = 2.0 ** 51, 2.0 ** -13, 2.0 ** -24
A0, A1, B0, B1, CC = 0, 32768, 65536, 98304, 131072

lab_name = KN + "_kernel"
hdr = open("cdna_kernels/" + KN + ".s.ref").read().split("; Override launch")[0]
pre = hdr + f"; @launch grid=(256,1,1) block=(256,1,1) lds={LDS_SIZE}\n" + \
    f'.amdgcn_target "amdgcn-amd-amdhsa--gfx950"\n.text\n.globl {lab_name}\n.p2align 12\n.p2align 8\n.type {lab_name},@function\n{lab_name}:\n'

r0 = [f"s_and_b32 s{sJ}, s3, 3"] + \
     {0: [f"s_bfe_u32 s{sK}, s3, 0x20002", f"s_lshr_b32 s{sG}, s3, 4"],
      1: [f"s_bfe_u32 s{sK}, s3, 0x10002", "s_bfe_u32 s4, s3, 0x10005", f"s_lshl1_add_u32 s{sK}, s4, s{sK}", f"s_bfe_u32 s{sG}, s3, 0x20003", "s_lshr_b32 s4, s3, 6", f"s_lshl2_add_u32 s{sG}, s4, s{sG}"],
      2: [f"s_bfe_u32 s{sK}, s3, 0x20005", f"s_bfe_u32 s{sG}, s3, 0x30002", "s_lshr_b32 s4, s3, 7", f"s_lshl3_add_u32 s{sG}, s4, s{sG}"]}[XM]
B_role = r0 + ["v_lshrrev_b32 v18, 4, v1", "v_lshlrev_b32 v19, 2, v18", "v_and_b32 v30, 15, v1", "v_xor_b32 v19, v19, v30", "v_lshlrev_b32 v19, 4, v19",
               f"s_lshl_b32 s5, s{sJ}, 8", f"s_mul_i32 s4, s{sK}, 896", "s_add_u32 s4, s4, s5", f"s_cmp_eq_u32 s{sJ}, 3\ns_cselect_b32 s7, 0x70, -1",
               "v_mul_u32_u24 v20, 3584, v18", "v_cmp_lt_u32 vcc, s7, v19", "v_add3_u32 v20, v20, v19, s4", f"v_lshl_add_u32 v{vDMA}, v18, 10, v19",
               "v_mov_b32 v30, 0x7ff00000", "v_cndmask_b32 v20, v20, v30, vcc"] + [f"v_add_u32 v{20+i}, {i*(14336-1024)}, v20" for i in range(1, 4)] + \
              [f"s_and_b32 s{sB}, s{sG}, {PAR}", f"s_lshl2_add_u32 s7, s{sB}, s6", f"s_mul_i32 s{sW1a}, s7, {64*3584}", "s_xor_b32 s7, s7, 4", f"s_mul_i32 s{sW1b}, s7, {64*3584}",
               f"s_lshl_b32 s{sM0}, s6, 14", f"s_lshr_b32 s{sCH}, s6, 1"]
B_ln1 = ["v_lshrrev_b32 v29, 5, v0", "v_and_b32 v30, 16, v0", "v_cmp_ne_u32 vcc, 0, v30", f"v_mov_b32 v30, {STAT1+128}", "v_lshlrev_b32 v28, 3, v29",
         f"v_add_u32 v28, {STAT1}, v28", f"v_cndmask_b32 v{vS1W}, v30, v28, vcc",
         "v_and_b32 v28, 1, v0", f"v_lshlrev_b32 v{vS1R}, 5, v28", f"v_add_u32 v{vS1R}, {STAT1}, v{vS1R}",
         f"v_mov_b32 v{vMASK}, {hex(MASK)}", "v_mov_b32 v52, 0", "v_mov_b32 v53, 0",
         "v_lshlrev_b32 v28, 4, v28", "v_lshrrev_b32 v30, 1, v0", f"v_lshl_add_u32 v{vH1}, v30, 13, v28"]
B_ln1s = ["s_and_b32 s10, s3, 0xc0", "s_and_b32 s11, s3, 1", "s_lshl_b32 s11, s11, 5", "s_add_u32 s10, s10, s11",
          "s_bfe_u32 s11, s3, 0x50001", "s_add_u32 s10, s10, s11", "s_lshl_b32 s10, s10, 5",
          f"s_add_u32 s{sG1a}, s10, {OB1}", f"s_add_u32 s{sG1b}, s10, {OB1 + 128*8192}",
          "s_lshr_b32 s10, s3, 2", "s_lshl_b32 s10, s10, 15", "s_and_b32 s11, s3, 3", "s_lshl_b32 s11, s11, 7", "s_add_u32 s10, s10, s11",
          f"s_add_u32 s{sZ0}, s10, {ZB}", f"s_add_u32 s{sZ1}, s10, {ZB+4096}",
          f"s_mov_b32 s{sPERMLO}, 0x05040100", f"s_mov_b32 s{sPERMHI}, 0x07060302", f"s_mov_b32 s{sCNT}, 0"]
B_tab = ["v_and_b32 v29, 7, v1", "v_lshrrev_b32 v30, 3, v1", "s_lshl_b32 s4, s6, 4", "v_add_u32 v30, s4, v30",
         "v_lshlrev_b32 v28, 4, v29", f"v_lshl_add_u32 v{vZS}, v30, 9, v28",
         f"s_mul_i32 s4, s{sCH}, {TCH}", f"s_add_u32 s4, s4, {TB}",
         "v_and_b32 v29, 127, v0", f"v_lshl_add_u32 v{vTW}, v29, 2, s4"] + [f"v_add_u32 v{vTW+r}, {r*TROW}, v{vTW}" for r in range(1, 8)] + \
        ["v_and_b32 v18, 15, v1", "v_lshrrev_b32 v19, 4, v1", "v_lshl_add_u32 v28, v19, 4, s4", f"v_mov_b32 v30, {TROW}",
         f"v_mad_u32_u24 v{vTL}, v18, v30, v28",
         "v_cmp_lt_u32 vcc, 7, v18", "v_and_b32 v55, 7, v18", "v_or_b32 v55, 0x0c0c0c00, v55"]
CLS = [[("R1", 8), ("A", 3), ("B", 3), ("T7", 0)], [("R1", 3), ("R0", 16), ("A", 2), ("T5", 0)], [("R1", 2), ("A", 0), ("T4", 0), ("T6", 0)],
       [("R1", 1), ("R1", 4), ("T4", 1), ("T6", 1)], [("A", 4), ("B", 4), ("T6", 2), ("T7", 1)], [("R1", 5), ("R1", 7), ("B", 0), ("T5", 1)],
       [("R1", 6), ("A", 1), ("B", 1), ("T4", 2)], [("R1", 0), ("B", 2), ("T5", 2), ("T7", 2)]]
ROW = {n: 32 + 8 * j + c for c in range(8) for j, n in enumerate(CLS[c])}
for p in range(16): ROW[("R0", p)] = 16 + p
def rows(dst, tab0, tab1):
    pk = lambda t: [t[4*i] | t[4*i+1] << 8 | t[4*i+2] << 16 | t[4*i+3] << 24 for i in range(4)]
    a, b = pk(tab0), pk(tab1); o = []
    for i, r in enumerate((4, 10, 5, 11)): o += [f"s_mov_b32 s7, {hex(a[i])}", f"s_cselect_b32 s{r}, {hex(b[i])}, s7"]
    return o + ["v_mov_b32 v54, s4", f"v_mov_b32 v{dst}, s5", "v_perm_b32 v54, s10, v54, v55", f"v_perm_b32 v{dst}, s11, v{dst}, v55",
                f"v_cndmask_b32 v54, v54, v{dst}, vcc", f"v_mad_u32_u24 v{dst}, v54, v30, v28"]
B_rows = ["s_bitcmp1_b32 s6, 0"] + \
    rows(vTR, [16 + m for m in range(16)], [ROW[("AB"[q >> 1], 2*(q&1) + min(i, 2))] for q in range(4) for i in range(4)]) + \
    rows(vTR+1, [ROW[("R1", 2*q+i)] if i < 3 else ROW[("R0", 4*q+4)] for q in range(4) for i in range(4)], [ROW[(f"T{4+q}", min(i, 2))] for q in range(4) for i in range(4)])
B_pad = [f"v_mov_b32 v{64+r}, 0" for r in range(4)] + \
    [f"s_mul_i32 s4, s{sCH}, {USZ}", f"s_add_u32 s4, s4, {UB}", "v_add_u32 v28, s4, v2", f"s_mul_i32 s4, s6, {KCOPY}", f"s_add_u32 s4, s4, {KB+4096}", "v_add_u32 v29, s4, v2",
     "s_mov_b64 exec, 0x3fffffff\nds_write_b128 v28, v[64:67]\ns_mov_b64 exec, 15\nds_write_b128 v29, v[64:67]\ns_mov_b64 exec, -1"]
B_conv = ["s_and_b32 s5, s6, 1", f"v_lshlrev_b32 v{vUW}, 3, v0", "s_lshl_b32 s5, s5, 8", f"v_add_u32 v{vUW}, {UB+480}, v{vUW}",
          f"s_mul_i32 s4, s{sCH}, {USZ}", "v_lshlrev_b32 v28, 4, v19", f"s_add_u32 s4, s4, {UB+256}", f"v_lshl_add_u32 v{vB}, v18, 5, v28",
          "s_sub_u32 s4, s4, s5", f"v_add_u32 v{vB}, s4, v{vB}",
          f"s_mul_i32 s7, s{sCH}, {KSZ}", "v_lshlrev_b32 v29, 1, v18", f"s_add_u32 s7, s7, {KB}", "v_sub_u32 v28, v28, v29",
          "s_sub_u32 s4, s7, s5", "v_and_b32 v29, 1, v18", f"s_add_u32 s4, s4, {2*(2031-256*7-96) + KCOPY+2}", f"v_mul_u32_u24 v29, {KCOPY+2}, v29",
          "v_add_u32 v28, s4, v28", f"v_sub_u32 v{vA+3}, v28, v29"] + [f"v_add_u32 v{vA+b2}, {1024*(3-b2)}, v{vA+3}" for b2 in range(3)] + \
         ["v_lshlrev_b32 v29, 5, v18", "v_sub_u32 v29, s7, v29",
          "v_lshlrev_b32 v28, 3, v19", f"v_sub_u32 v{vKW-1}, v29, v28",
          "v_lshlrev_b32 v28, 9, v19", f"v_sub_u32 v{vKW+1}, v29, v28",
          "v_and_b32 v28, 2, v19", "v_lshlrev_b32 v28, 8, v28", "v_and_b32 v30, 1, v19", "v_lshl_add_u32 v28, v30, 4, v28", f"v_sub_u32 v{vKW}, v29, v28"]
B_w2 = ["v_and_b32 v30, 3, v1", "v_and_b32 v61, 1, v19", "v_bfe_u32 v60, v1, 2, 2", "v_lshrrev_b32 v26, 5, v1",
        "v_xor_b32 v28, s6, v60", "v_lshlrev_b32 v28, 6, v28", "v_lshl_add_u32 v28, v60, 8, v28",
        "v_lshl_add_u32 v29, v30, 3, v28", "v_lshl_add_u32 v29, v61, 5, v29", f"v_lshl_add_u32 v{vT1}, v26, 11, v29",
        "v_lshl_add_u32 v28, v26, 10, v28", "v_lshl_add_u32 v28, v61, 4, v28", "v_and_b32 v29, 1, v1", "v_lshl_add_u32 v28, v29, 5, v28",
        "v_bfe_u32 v29, v1, 1, 1", f"v_lshl_add_u32 v{vT2}, v29, 3, v28",
        f"s_mov_b32 s{RW2}, s{SW2}", f"s_mov_b32 s{RW2+1}, s{SW2+1}", f"s_mov_b32 s{RW2+2}, {1792*512*2}", f"s_mov_b32 s{RW2+3}, 0x20000",
        f"s_lshl_b32 s{sM8}, s6, 13", f"s_lshl_b32 s{sM4}, s6, 12", f"s_lshl_b32 s4, s{sJ}, 8", f"s_mul_i32 s5, s{sK}, {448*1024}", "s_add_u32 s4, s4, s5",
        f"s_lshl2_add_u32 s{sW2}, s{sM4}, s4",
        "v_and_b32 v63, 7, v1", "v_lshrrev_b32 v62, 3, v1"] + [f"v_add_u32 v{vDMA+i}, {3072*i}, v{vDMA}" for i in range(1, 4)]
B_x2 = ["s_lshl_b32 s4, s6, 4", "v_add_u32 v60, s4, v62", f"v_lshlrev_b32 v{vAG}, 2, v63", f"v_lshl_add_u32 v{vAG}, v60, 15, v{vAG}",
        "s_lshl_b32 s4, s3, 13", f"v_lshl_add_u32 v{vXR}, v60, 4, s4", f"v_lshl_add_u32 v{vXR}, v63, 10, v{vXR}",
        f"s_lshl2_add_u32 s5, s{sJ}, s6", f"s_mul_i32 s4, s{sK}, 14", "s_add_u32 s4, s4, s5", "s_min_u32 s4, s4, 55", "s_lshl_b32 s4, s4, 6",
        "v_and_b32 v25, 31, v1", "v_lshl_add_u32 v24, v25, 1, s4", It(f"global_load_ushort a112, v24, {S(SB1,2)}", "b1"),
        It(f"global_load_dwordx4 {V(vX,4)}, v{vXR}, {S(SX,2)}", "x2"), It(f"global_load_dwordx4 {V(vX+4,4)}, v{vXR}, {S(SX,2)} offset:128", "x2")]
B_red = ["v_lshl_add_u32 v60, v19, 2, v18", "v_and_b32 v60, 15, v60", "v_lshlrev_b32 v60, 4, v60", f"v_lshl_add_u32 v{vRW}, v19, 8, v60",
         f"s_add_u32 s4, s{sM8}, {RED}", f"v_add_u32 v{vRW}, s4, v{vRW}",
         "v_lshrrev_b32 v60, 2, v1", "v_lshl_add_u32 v60, v30, 2, v60", "v_and_b32 v60, 15, v60", "v_lshlrev_b32 v60, 4, v60", f"v_lshl_add_u32 v{vRR}, v30, 8, v60",
         "s_lshl_b32 s4, s6, 11", f"s_add_u32 s4, s4, {RED}", f"v_add_u32 v{vRR}, s4, v{vRR}",
         "v_lshlrev_b32 v60, 3, v63", f"v_add_u32 v{vS2R}, {RED}, v60", f"v_add_u32 v{vS2W}, s4, v60", f"v_lshl_add_u32 v{vS2W}, v61, 2, v{vS2W}"]
B_post = ["v_mov_b32 v27, 0x60006000", f"v_add_u32 v3, {B0}, v{vL16}", f"v_add_u32 v{vLC}, {CC}, v{vL16}", f"v_mov_b32 v{vFF}, {hx(1/SS)}",
          "v_add_u32 v60, v26, v62", "v_and_b32 v60, 3, v60", f"v_lshl_add_u32 v60, v60, 2, v{vL16}", f"v_add_u32 v{vZC}, s{sM4}, v60",
          "v_xor_b32 v60, v62, v19", "v_and_b32 v60, 1, v60", f"v_lshl_add_u32 v60, v60, 3, v{vL16}", f"v_add_u32 v{vHC}, s{sM7}, v60", f"v_add_u32 v{vHC+1}, 0x10000, v{vHC}",
          f"v_add_u32 v{vZCs[2]}, 0x20000, v{vZC}", f"v_add_u32 v{vT2s[1]}, 0x10000, v{vT2}", f"v_add_u32 v{vT2s[2]}, 0x20000, v{vT2}",
          f"s_xor_b32 s7, s{sK}, 3", f"s_lshl2_add_u32 s7, s{sG}, s7", f"s_lshl2_add_u32 s5, s{sJ}, s6", "s_lshl_b32 s4, s5, 6", "v_lshl_add_u32 v24, v26, 5, s4",
          "s_lshl_b32 s4, s7, 15", f"v_lshl_add_u32 v{vOUT}, v25, 10, v24", f"v_add_u32 v{vOUT}, s4, v{vOUT}",
          "s_lshl_b32 s4, s7, 7", "s_lshl_b32 s5, s5, 17", "s_add_u32 s4, s4, s5", f"v_lshlrev_b32 v{vRA}, 16, v26", f"v_lshl_add_u32 v{vRA}, v25, 2, v{vRA}", f"v_add_u32 v{vRA}, s4, v{vRA}"]
B_posts = ["s_lshl_b32 s10, s3, 5"] + [f"s_add_u32 s{sO8+4*k+i}, s10, {OB2 + (32*k+i)*8192}" for k in range(2) for i in range(4)] + \
          [f"s_lshl2_add_u32 s12, s{sG}, s{sK}",
           f"s_lshl2_add_u32 s10, s12, s{sK}", "s_lshl_b32 s10, s10, 15", f"s_add_u32 s10, s10, {HB}", f"s_lshl_b32 s{sM7}, s6, 12", f"s_min_u32 s{sM7}, s{sM7}, 10240", f"s_add_u32 s{sHL}, s10, s{sM7}",
           f"s_lshl2_add_u32 s11, s{sJ}, s6", "s_cmp_ge_u32 s11, 14\ns_cselect_b32 s11, 0x100000, s11", "s_lshl_b32 s11, s11, 10", f"s_add_u32 s{sHS}, s10, s11",
           f"s_lshl1_add_u32 s10, s12, s{sB}", "s_lshl2_add_u32 s10, s10, s6", "s_lshl_b32 s10, s10, 12", f"s_add_u32 s{sZa}, s10, {ZB}",
           f"s_lshl2_add_u32 s10, s12, s{sJ}", "s_lshl2_add_u32 s10, s10, s6", "s_lshl_b32 s10, s10, 11", f"s_add_u32 s{sPS}, s10, {PB}", f"s_mov_b32 s{sCNT}, 0",
           f"s_mov_b32 s{sLAM}, {hx(1/LAM0)}", f"s_mov_b32 s{sCQ}, {hx(DELTA*LAM0)}", f"s_mov_b32 s{sFIN}, {hx(1/LAM0/SS)}",
           f"s_bitcmp1_b32 s{sHT}, 30\ns_cselect_b32 s{sLAM}, {hx(1/LAM1)}, s{sLAM}\ns_cselect_b32 s{sCQ}, {hx(DELTA*LAM1)}, s{sCQ}\ns_cselect_b32 s{sFIN}, {hx(1/LAM1/SS)}, s{sFIN}",
           f"s_sub_u32 s{sLM}, 0x7f000000, s{sLAM}", f"s_mov_b32 s{sLM+1}, s{sCQ}", f"s_lshr_b32 s80, s{sLAM}, 16"]

SKIP = OPT.get("skip", "").split("+")
def dma_w1(half, n0, n1):
    out = []; tag = ("w1", half)
    for n in range(n0, n1):
        g, i = divmod(n, 4)
        if n == n0 or i == 0:
            out += [It(f"s_add_u32 m0, s{sM0}, {65536*half + 4096*g}"), It(f"s_add_u32 s{sTD}, s{sW1a+half}, {57344*g}")]
        out.append(It(f"buffer_load_dwordx4 v{20+i}, {S(RW1,4)}, s{sTD} offen offset:{1024*i} lds", tag))
    return out
W1F = lambda s: 128 + 4 * s
def tr_w1(half):
    o = [It(f"v_add_u32 v{vT1}, 0x10000, v{vT1}")] if half else []
    return o + [It(f"ds_read_b64_tr_b16 {V(W1F(16*half+s)+2*hf,2)}, v{vT1} offset:{4096*s+1024*hf}", ("t1", half)) for s in range(16) for hf in range(2)]
iv = lambda k, d: [int(x) for x in str(OPT.get(k, d)).split("-") if x]
T1IN = OPT.get("t1in", 0); DEPTH = OPT.get("depth", 6); CKD = OPT.get("ckd", 4); DL = OPT.get("dl", 4)
NU = [int(c) for c in "%04d" % OPT.get("nu", 2101)]
PH = []; u = 0
for n in NU: PH.append(list(range(u, u + n))); u += n
PH.append(list(range(u, 7)))
X0 = lambda x: 16 * x if x <= 8 else 128 + 14 * (x - 8)
DX = [-10] * 3 + iv("dz", "0-5-11-34-41") + iv("gh", "84-100-114-130-146-162-176-190")
DY = dict(zip(PH[4], iv("dy", "17-25-50-58-66")))
BG = [[int(c, 16) for c in g] for g in OPT.get("bg", "0.1.23.45.67.8.9.a.b.c.d.e.f").split(".")]
BT = dict(zip(iv("bi", ""), iv("bt", "")))
BAR = [(-1, BG[0])] + [(min(X0(g[0]) - 1 - DEPTH, BT.get(g[0], 999)), g) for g in BG[1:]]
ckw = lambda g: 2 + (g[0] >= 8 and len(g) > 1)
ck0 = lambda b: b[0] - CKD - ckw(b[1]) - 2
YR = {y: -1 for y in PH[2] + PH[3]}
for y in PH[4]: YR[y] = next(b[0] for b in BAR[1:] if ck0(b) >= DY[y] + DL + OPT.get("yl", 14))
YT = {}; g = 0
for y in PH[2] + PH[3] + PH[4]:
    g = max(g, YR[y] + 1); YT[y] = (g, g + OPT.get("tl", 6)); g = YT[y][1]; assert g <= 128 + 2 * y - DEPTH
objs = [(t, ("y", y), -1 if p < 2 else next(b[0] for b in BAR[1:] if ck0(b) >= YT[y][1])) for p, t in enumerate((-59, -50, -30, -20)) for y in PH[p]]
objs += [(DY[y], ("y", y), next(b[0] for b in BAR[1:] if ck0(b) >= YT[y][1])) for y in PH[4]]
objs += [(DX[x], ("x", x), next((b[0] for b in BAR if b[0] >= X0(x + 1) - 1), 999)) for x in range(16)]
free = [-60] * 4 + [-58 if T1IN else -25] * 4 + [-1, -25 if T1IN else -45]
SLOT = {}
for t, o, f in sorted(objs, key=lambda q: q[0]):
    k = next((k for k in range(10) if free[k] < t), None)
    assert k is not None, ("no LDS for", o, t, free)
    SLOT[o] = 16384 * k; free[k] = f
ts = sorted(t for t, o, f in objs if t >= 0)
assert all(b - a >= DL for a, b in zip(ts, ts[1:])), ts
assert all(DX[x] + DL <= ck0(b) for b in BAR[1:] for x in b[1] if DX[x] >= 0) and all(a[0] < ck0(b) for a, b in zip(BAR[1:], BAR[2:]))
def dma_w2(u):
    if f"u{u}" in SKIP: return []
    return [It(f"s_add_u32 m0, s{sM4}, {SLOT['y', u]}"), It(f"s_add_u32 s{sTD}, s{sW2}, {65536*u}")] + \
           [It(f"buffer_load_dwordx4 v{vDMA+i}, {S(RW2,4)}, s{sTD} offen offset:{1024*i} lds", ("u", u)) for i in range(4)]
def tr_w2(u):
    hi, o = divmod(SLOT["y", u], 65536)
    return [It(f"ds_read_b64_tr_b16 {A(16*u+4*x+2*hf,2)}, v{vT2s[hi]} offset:{o+4096*x+2048*hf}", ("t2", u)) for x in range(4) for hf in range(2)]
WV = lambda tag: It(lambda: wvm(tag))
WL = lambda tag: It(lambda: wlg(tag))

st_pool += [60, 62, 64, 66]
e("s_cmpk_ge_u32 s2, 256"); e("s_cbranch_scc1 L_end")
e("s_load_dwordx16 s[8:23], s[0:1], 0")
e(f"s_load_dwordx2 {S(SWS,2)}, s[0:1], 112")
e("s_load_dwordx8 s[24:31], s[0:1], 64")
stamp("start")
if OPT.get("diag"): e("s_memrealtime s[76:77]")
e("v_lshlrev_b32 v10, 7, v0")
e("s_getpc_b64 s[40:41]"); lab("L_pc")
e("s_lshr_b32 s7, s2, 3"); e("s_lshl_b32 s4, s7, 10"); e("s_add_u32 s42, s4, 1024"); e("s_min_u32 s42, s42, L_end-L_pc"); e("s_mov_b32 s43, 0x20000")
vm("buffer_load_dword a113, v10, s[40:43], s4 offen", "pf")
e("s_and_b32 s3, s2, 7"); e("v_lshrrev_b32 v13, 5, v0"); e("s_lshl_b32 s3, s3, 5"); e("v_and_b32 v14, 31, v0")
e("s_add_u32 s3, s3, s7"); e("v_lshlrev_b32 v13, 10, v13")
e("s_lshl_b32 s7, s3, 13"); e("v_lshlrev_b32 v14, 4, v14")
e("s_lshl_b32 s4, s3, 9"); e("v_add3_u32 v13, v13, v14, s7")
e("v_lshl_add_u32 v27, v0, 1, s4")
e("s_lshl_b32 s5, s3, 2")
if OPT["stamps"]: e("v_mov_b32 v31, 0")
wlg0()
if OPT.get("diag"): e("v_mov_b32 v31, s76")
stamp("karg")
par = [It(f"global_load_ushort v{48+i}, v27, {S(p,2)}", "par") for i, p in enumerate((SLA, SAI, SCR, SCI))]
PF = OPT.get("pf", 1)
e(f"s_load_dword s{sLDT}, {S(SLDT,2)}, s5")
if PF == 1: run(par)
vm(f"global_load_dwordx4 v[32:35], v13, {S(SX,2)}", "xs")
vm(f"global_load_dwordx4 v[36:39], v13, {S(SX,2)} offset:512", "xs")
if PF == 2: run(par)
e("v_lshrrev_b32 v14, 1, v0"); e("v_and_b32 v15, 1, v0"); e("v_lshrrev_b32 v12, 6, v0")
e("v_lshlrev_b32 v16, 3, v14"); e("v_lshlrev_b32 v15, 12, v15"); e("v_readfirstlane_b32 s6, v12")
e("v_and_b32 v1, 63, v0"); e("v_lshlrev_b32 v10, 7, v1"); e("v_add3_u32 v16, v16, v15, s7")
e(f"s_load_dwordx8 s[68:75], {S(SWS,2)}, 0")
e(f"s_load_dword s{sDSK}, {S(SDSK,2)}, s5")
e(f"s_load_dwordx2 {S(SOUT,2)}, s[0:1], 96")
for i in range(4): vm(f"global_load_dwordx2 {V(40+2*i,2)}, v16, {S(SX,2)} offset:{1024*i}", "xg")
if PF == 0: run(par)
if OPT.get("touch", 1):
    run([f"s_cmp_lt_u32 s6, 2", f"s_cselect_b32 s44, s{SW1}, s{SW2}", f"s_cselect_b32 s45, s{SW1+1}, s{SW2+1}", "s_and_b32 s4, s6, 1", "s_lshl_b32 s5, s2, 1",
         "s_add_u32 s4, s4, s5", "s_mul_i32 s4, s4, 3584", "s_add_u32 s46, s4, 3584", "s_mov_b32 s47, 0x20000", It("buffer_load_dword a113, v10, s[44:47], s4 offen", "pf")])
e("v_lshlrev_b32 v2, 4, v1"); e("v_lshl_add_u32 v3, v12, 11, v2")
for i in range(4): e(f"v_mov_b32 v{60+i}, -1")
e(f"s_add_u32 s{sOB1}, s7, {OB1}"); e(f"s_add_u32 s{sOB2}, s7, {OB2}"); e(f"s_mov_b32 s{RWS+2}, {WS_SIZE}"); e(f"s_mov_b32 s{RWS+3}, 0x20000")
NW1 = OPT.get("nw1", 0); NW2 = OPT.get("nw2", 0); NW3 = max(NW2, OPT.get("nw3", 4))
run(B_role)
run([f"s_mov_b32 s{RW1+2}, {512*1792*2}", f"s_mov_b32 s{RW1}, s{SW1}", f"s_mov_b32 s{RW1+1}, s{SW1+1}"] + dma_w1(0, 0, NW1))
run(B_ln1 + B_ln1s + B_tab + B_rows + B_pad)
stamp("setup")
warm("wx")

tg = [f"s_add_u32 s{sE}, s68, 1", f"s_mov_b32 s{sE+1}, s{sE}"]
maj = [f"s_mov_b32 s12, {hex(HTAG)}", "s_mov_b32 s13, s12"] + [x for r in (70, 72, 74) for x in (f"s_and_b64 s[{r}:{r+1}], s[{r}:{r+1}], s[12:13]", f"s_bcnt1_i32_b64 s{r}, s[{r}:{r+1}]")] + \
      ["s_add_u32 s70, s70, s72", "s_add_u32 s70, s70, s74", f"s_cmp_lt_u32 s70, 6\ns_cselect_b32 s{sHT}, s12, 0x20002000", None,
       f"s_lshl_b32 s{sDSK}, s{sDSK}, s101", f"s_and_b32 s{sDSK}, s{sDSK}, 0xffff0000"]
for j, r in enumerate((4, 7, 10, 13)): tg += [f"s_lshr_b64 s[4:5], s[{sE}:{sE+1}], {r}", f"s_and_b32 s{sTAG+j}, s4, {hex(MASK)}"]
tg += [f"s_cmp_eq_u32 s{sTAG}, s{sTAG+1}\ns_cselect_b32 s4, 0x1000, 0", f"s_xor_b32 s{sTAG+1}, s{sTAG+1}, s4", f"s_mov_b32 s{sONES}, 0x3f803f80"]
ZP = lambda p: 128 + 2 * p
ZT = lambda t: 160 + 2 * t
CE, CO, T0, T1 = 176, 178, 188, 190
kg = [f"s_cmp_eq_u32 s{sCH}, 0\ns_cselect_b32 s101, 16, 0", f"s_lshl_b32 s{sLDT}, s{sLDT}, s101", f"s_and_b32 s{sLDT}, s{sLDT}, 0xffff0000",
      f"v_mov_b32 v80, {hx(LOG2E)}", f"v_mul_f32 v81, s{sLDT}, v80", "v_exp_f32 v81, v81", WV("par")] + [f"v_lshlrev_b32 v{48+i}, 16, v{48+i}" for i in range(2)] + \
     ["v_mul_f32 v82, v48, v80", "v_exp_f32 v82, v82"] + [f"v_lshlrev_b32 v{48+i}, 16, v{48+i}" for i in range(2, 4)] + \
     ["v_cvt_pk_bf16_f32 v81, v81, v82", "v_and_b32 v82, 0xffff0000, v81", "v_lshlrev_b32 v81, 16, v81",
      "v_mul_f32 v82, v82, v81", "v_mul_f32 v83, v49, v81", f"v_mul_f32 v82, {hx(-LOG2E)}, v82", "v_mul_f32 v83, 0.15915494, v83",
      f"v_mul_f32 v84, {hx(32.0)}, v81", f"v_pk_mul_f32 {V(CE,2)}, v[50:51], v[84:85] op_sel_hi:[1,0]"]
anch = ((1, ZP(1)), (16, ZP(16)), (256, ZT(1)))
for k, (p, d) in enumerate(anch):
    if p == 1: kg += [f"v_exp_f32 v{86+k}, v82", f"v_fract_f32 v{90+k}, v83"]
    else: kg += [f"v_mul_f32 v{86+k}, {hx(p)}, v82", f"v_mul_f32 v{90+k}, {hx(p)}, v83", f"v_exp_f32 v{86+k}, v{86+k}", f"v_fract_f32 v{90+k}, v{90+k}"]
for k, (p, d) in enumerate(anch): kg += [f"v_cos_f32 v{d}, v{90+k}", f"v_sin_f32 v{d+1}, v{90+k}"]
for k, (p, d) in enumerate(anch):
    s0 = 86 + k
    kg.append(f"v_pk_mul_f32 {V(d,2)}, {V(d,2)}, {V(s0 & ~1,2)} op_sel:[0,{s0&1}] op_sel_hi:[1,{s0&1}]")
def cmuls(lst):
    for d, a, b in lst:
        kg.append(f"v_pk_mul_f32 {V(d,2)}, {V(a,2)}, {V(b,2)} op_sel_hi:[1,0]")
        kg.append(f"v_pk_fma_f32 {V(d,2)}, {V(a,2)}, {V(b,2)}, {V(d,2)} op_sel:[1,1,0] op_sel_hi:[0,1,1] neg_lo:[1,0,0]")
rot = [0]
h1_loads = [It(f"buffer_load_dwordx4 v[32:35], v{vH1}, {S(RWS,4)}, s{sG1a} offen sc1", "h1"),
            It(f"buffer_load_dwordx4 v[36:39], v{vH1}, {S(RWS,4)}, s{sG1b} offen sc1", "h1")]
H1AT = OPT.get("h1at", 12)
KBT = 4; pend = []
kbg = [It(f"buffer_store_dwordx4 v[60:63], v{vZS}, {S(RWS,4)}, s{sr} offen sc1", "clr2") for sr in (sZ0, sZ1)]
pre2 = [It(f"buffer_store_dwordx4 v[60:63], v3, {S(RWS,4)}, s{sOB2} offen offset:{1024*k} sc1", "clr2") for k in range(2)]
PRE2 = OPT.get("pre2", 1)
if PRE2 == 1: kbg += pre2
if PRE2 == 4: run(pre2)
if PRE2 == 5: run(pre2 + kbg); kbg = []
if PRE2 == 2: kbg += [It(f"buffer_load_dword a113, v10, {S(RWS,4)}, s{sOB2} offen", "clr2")]
kbg += dma_w1(0, NW1, NW2)
KB0 = OPT.get("kb0", 4); KB1 = OPT.get("kb1", 7)
def put(r, jj, a, b, neg=False):
    t = 192 + 2 * (rot[0] % 8); rot[0] += 1
    n = "-" if neg else ""
    kg.append(f"v_cvt_pk_bf16_f32 v{t}, v{a}, {n}v{a+1}" if a is not None else f"v_mov_b32 v{t}, 0x3f80")
    kg.append(f"v_cvt_pk_bf16_f32 v{t+1}, v{b}, {n}v{b+1}")
    pend.append(f"ds_write2st64_b32 v{vTW+r}, v{t}, v{t+1} offset0:{17*jj} offset1:{17*(jj+1)}")
    if rot[0] % KBT: return
    bt = rot[0] // KBT
    kg.append("\n".join([x for x in maj[:2] if x] + pend)); del maj[:2]; pend.clear()
    if KB0 <= bt < KB1: kg.extend(kbg[(bt - KB0) * len(kbg) // (KB1 - KB0): (bt + 1 - KB0) * len(kbg) // (KB1 - KB0)])
    if bt == H1AT: kg.extend(h1_loads)
cmuls([(T0, ZP(16), ZP(16)), (T1, T0, T0), (T0, T1, T1), (CO, CE, T0)])
put(0, 0, CE, CO, True)
cur = (CE, CO)
for r in range(1, 8):
    nx = (184, 186) if cur[0] == CE else (CE, CO)
    cmuls([(nx[0], cur[0], ZP(16)), (nx[1], cur[1], ZP(16))]); put(r, 0, nx[0], nx[1], True); cur = nx
cmuls([(ZP(2), ZP(1), ZP(1)), (ZP(4), ZP(2), ZP(2)), (ZP(8), ZP(4), ZP(4))])
put(0, 2, None, ZP(8))
more = {1: (ZT(2), ZT(1), ZT(1)), 2: (ZT(3), ZT(2), ZT(1)), 3: (ZP(3), ZP(2), ZP(1)), 4: (ZT(4), ZT(2), ZT(2)),
        5: (ZP(5), ZP(4), ZP(1)), 6: (ZP(6), ZP(4), ZP(2)), 7: (ZP(7), ZP(4), ZP(3))}
for r in range(1, 8): cmuls([more[r], (ZP(8+r), ZP(8), ZP(r))]); put(r, 2, ZP(r), ZP(8+r))
have = {1, 2, 3, 4}
def rowval(n, tmp):
    k, i = n
    if k == "R0": return ZP(16)
    t, st = {"R1": (1, 2), "A": (2, 4), "B": (3, 4)}.get(k) or (int(k[1]), 8)
    if t not in have: cmuls([(ZT(t), ZT(4), ZT(t - 4))]); have.add(t)
    if i == 0: return ZT(t)
    cmuls([(tmp, ZT(t), ZP(st * i))]); return tmp
for j in (0, 2):
    for c in range(8): put(c, 4 + j, rowval(CLS[c][j], T0), rowval(CLS[c][j+1], T1))
assert rot[0] == 32 and not maj
kg = items(kg)
def kgen(n):
    while kg and n > 0:
        assert not (kg[0].tag in ("clr2", "h1") and "ob1" not in vmq)
        n -= kg[0].cost; kg.pop(0)()
KS = [int(x) for x in OPT.get("ks", "60-80-0-0").split("-")]

wlg0()
st_pool[:] = [14, 16, 18, 20]
kgen(KS[0])
stamp2("k_pro")
e("s_mov_b32 s7, 0x3f803f80")
wvm("xs")
stamp("x_in")
for i in range(8):
    e(f"v_dot2c_f32_bf16 v52, s7, v{32+i}"); e(f"v_dot2c_f32_bf16 v53, v{32+i}, v{32+i}")
unp = []
for d in range(8): unp += [f"v_lshlrev_b32 v{64+2*d}, 16, v{40+d}", f"v_and_b32 v{65+2*d}, 0xffff0000, v{40+d}"]
run(tg[:2])
k = 2
for d in ("quad_perm:[1,0,3,2]", "quad_perm:[2,3,0,1]", "row_half_mirror", "row_mirror", "row_bcast:15 row_mask:0xa"):
    e(f"v_add_f32 v52, v52, v52 {d}"); e(f"v_add_f32 v53, v53, v53 {d}")
    if k < 6: run(tg[k:k+1]); k += 1
e(f"v_mul_f32 v52, {hx(1/512)}, v52")
e(f"v_mul_f32 v53, {hx(1/512)}, v53")
e("v_fma_f32 v53, -v52, v52, v53")
e("v_max_f32 v53, 0, v53")
e(f"v_add_f32 v53, {hx(EPS)}, v53")
e("v_rsq_f32 v53, v53")
run(tg[6:7])
e(f"v_mul_f32 v54, {hx(1/16)}, v53")
e(f"v_mul_f32 v52, v52, v54"); e(f"v_sub_f32 v55, {hx(C0)}, v52")
run(tg[7:9])
ds(f"ds_write_b64 v{vS1W}, v[54:55]")
run(tg[9:])
kgen(KS[1])
stamp2("l_st")
wlg0()
e("s_barrier")
stamp2("l_bar")
ds(f"ds_read_b128 v[208:211], v{vS1R}", "st"); ds(f"ds_read_b128 v[212:215], v{vS1R} offset:16", "st")
kgen(KS[2])
wvm("xg")
run(unp)
kgen(KS[3])
e(f"s_mov_b32 s4, {hx(-C0)}")
wlg("st")
stamp2("l_rd")
for par in range(2):
    for i in range(4): e(f"v_pk_fma_f32 {V(64+2*(2*i+par),2)}, {V(64+2*(2*i+par),2)}, {V(208+2*i,2)}, {V(208+2*i,2)} op_sel:[0,0,1] op_sel_hi:[1,0,1]")
    for i in range(4): e(f"v_pk_add_f32 {V(64+2*(2*i+par),2)}, {V(64+2*(2*i+par),2)}, s[4:5] op_sel_hi:[1,0]")
    for i in range(4): e(f"v_cvt_pk_bf16_f32 v{40+4*par+i}, v{64+2*(2*i+par)}, v{65+2*(2*i+par)}")
    for i in range(4): e(f"v_bfi_b32 v{40+4*par+i}, v{vMASK}, s{sTAG+i}, v{40+4*par+i}")
for par in range(2): vm(f"buffer_store_dwordx4 {V(40+4*par,4)}, v3, {S(RWS,4)}, s{sOB1} offen offset:{1024*par} sc1", "ob1")
stamp("u_out")
kgen(9999)
stamp2("k_tab")
wlg0(); e("s_barrier")
stamp("tables")
def rdK(ks):
    if ks < 8:
        ds(f"ds_read_b128 {V(128+12*ks,4)}, v{vTL} offset:{64*ks}")
        for t in range(2): ds(f"ds_read_b128 {V(132+12*ks+4*t,4)}, v{vTR+t} offset:{64*ks}", ("ka", ks))
for ks in range(4): rdK(ks)
kf = B_conv + ["v_and_b32 v30, 127, v0", "v_cmp_eq_u32 vcc, 0, v30", f"v_mov_b32 v30, {hx(16.0)}", f"v_mul_f32 v30, s{sDSK}, v30", f"v_cndmask_b32 v{vD}, 0, v30, vcc"]
run(kf[:8])
kw = dma_w1(0, NW2, NW3); K0 = max(H1AT - 9, 0); KN_ = 9 - K0
def kmem(ks):
    if H1AT == 9 + ks: run(h1_loads)
    if ks >= K0: run(kw[(ks - K0) * len(kw) // KN_:(ks + 1 - K0) * len(kw) // KN_])
def kstep(ks):
    wlg(("ka", ks))
    if ks == 0: stamp2("k_rd")
    for t in range(2): e(f"v_mfma_f32_16x16x32_bf16 {V(64+4*t,4)}, {V(132+12*ks+4*t,4)}, {V(128+12*ks,4)}, {V(64+4*t,4) if ks else 0}")
    rdK(ks + 4); kmem(ks)
sched([lambda ks=ks: kstep(ks) for ks in range(8)], (kf[8:],))
stamp2("k_mf")
e("s_bitcmp1_b32 s6, 0")
e("s_nop 2")
e("s_cbranch_scc1 L_kw1")
cv = lambda d, lo, hi: e(f"v_cvt_pk_bf16_f32 v{d}, v{lo}, v{hi}")
o0 = 2 * (2044 - 256)
e(f"v_add_f32 v64, v64, v{vD}")
cv(40, 67, 66); cv(41, 65, 64); cv(42, 71, 67); cv(43, 66, 65); cv(44, 70, 69); cv(45, 68, 68); cv(46, 70, 70); cv(47, 69, 68)
e("s_mov_b64 exec, 1"); ds(f"ds_write_b16_d16_hi v{vKW-1}, v41 offset:{o0+512+KCOPY+8}"); e("s_mov_b64 exec, -1")
for r, o in ((40, o0 + 512), (42, o0 + 512 + KCOPY), (44, o0), (46, o0 + KCOPY)): ds(f"ds_write_b64 v{vKW-1}, {V(r,2)} offset:{o}")
e("s_branch L_kw2")
lab("L_kw1")
o1 = 2 * (2040 - 512); o2 = 2 * (2032 - 1024)
cv(72, 70, 70); cv(73, 70, 70); cv(74, 69, 69); cv(75, 69, 69); cv(76, 69, 69); cv(77, 69, 68); cv(78, 68, 68); cv(79, 68, 68)
cv(40, 66, 66); cv(41, 65, 65); cv(42, 65, 64); cv(43, 64, 64)
e(f"ds_write_b128 v{vKW+1}, v[72:75] offset:{o2}"); e(f"ds_write_b128 v{vKW+1}, v[76:79] offset:{o2+16}"); e(f"ds_write_b128 v{vKW}, v[40:43] offset:{o1}")
cv(74, 70, 69); cv(77, 69, 69); cv(41, 66, 65); cv(42, 65, 65)
e(f"ds_write_b128 v{vKW+1}, v[72:75] offset:{o2+KCOPY}"); e(f"ds_write_b128 v{vKW+1}, v[76:79] offset:{o2+KCOPY+16}"); e(f"ds_write_b128 v{vKW}, v[40:43] offset:{o1+KCOPY}")
lab("L_kw2")
kmem(8)
stamp("K_out")

warm("wh")
wvm("h1")
stamp2("h1w")
lab("L_h1chk")
for d in range(8): e(f"v_xor_b32 v{32+d}, s{sTAG+(d&3)}, v{32+d}")
e("v_or3_b32 v40, v32, v33, v34"); e("v_or3_b32 v41, v35, v36, v37"); e("v_or3_b32 v40, v40, v38, v39")
e(f"v_bitop3_b32 v40, v40, v41, v{vMASK} bitop3:0xa8")
e("v_cmp_ne_u32 vcc, 0, v40")
e("s_mov_b32 s4, 0x30003000")
e("s_cbranch_vccnz L_h1retry")
lab("L_h1ok")
retry("h1", h1_loads)
for g in range(2):
    b = 32 + 4 * g; o = 40 + 4 * g
    e(f"v_perm_b32 v{o}, v{b+1}, v{b}, s{sPERMLO}"); e(f"v_perm_b32 v{o+1}, v{b+3}, v{b+2}, s{sPERMLO}")
    e(f"v_perm_b32 v{o+2}, v{b+1}, v{b}, s{sPERMHI}"); e(f"v_perm_b32 v{o+3}, v{b+3}, v{b+2}, s{sPERMHI}")
    for i in range(4): e(f"v_or_b32 v{o+i}, s4, v{o+i}")
    ds(f"ds_write_b64 v{vUW}, {V(o,2)} offset:{2048*g}"); ds(f"ds_write_b64 v{vUW}, {V(o+2,2)} offset:{2048*g+USZ}")
count("h1")
stamp2("u_wr")
TA0 = OPT.get("ta0", 0)
if TA0: assert NW3 == 16; wvm(("w1", 0))
wlg0(); e("s_barrier")
stamp("u_in")

FA = lambda st, d1: 128 + 64 * (st & 1) + 4 * d1
FB = lambda st, sg: 160 + 64 * (st & 1) + 4 * sg
def rdC(st):
    out = []
    for t in range(8):
        for hf in range(2):
            o = 128 * (1 - (t & 1)) + 16 * (3 - st) + 2 * hf
            out.append(It(f"ds_read2_b32 {A(FA(st,t)+2*hf,2)}, v{vA+(t>>1)} offset0:{o} offset1:{o+1}", ("c", st, t)))
        out.append(It(f"ds_read_b128 {A(FB(st,t),4)}, v{vB} offset:{512*t+64*(3-st)}", ("c", st, t)))
    return out
first = rdC(0)
run(first[:12])
e("s_cmp_lg_u32 s2, 0"); e("s_cbranch_scc1 L_noepoch")
e(f"v_mov_b32 v32, s{sHT}"); e(f"v_writelane_b32 v32, s{sE}, 0"); e("v_lshlrev_b32 v28, 2, v1"); e("s_mov_b64 exec, 0xff")
e(f"buffer_store_dword v32, v28, {S(RWS,4)}, 0 offen sc1"); e("s_mov_b64 exec, -1")
lab("L_noepoch")
ACC = lambda t: 64 + 4 * t
seq = [(t, d1, t - d1) for t in range(8) for d1 in range(t + 1)]
def cmf(st, t, d1, sg):
    if OPT.get("fine") and t == 0 and st > 0: stamp(f"s{st}")
    e(f"v_mfma_f32_16x16x32_bf16 {V(ACC(t),4)}, {A(FA(st,d1),4)}, {A(FB(st,sg),4)}, {0 if (st == 0 and d1 == 0) else V(ACC(t),4)}")
main = [lambda st=st, q=q: cmf(st, *q) for st in range(4) for q in seq]
cw = [(36 * st + t * (t + 1) // 2 - 1, It(lambda st=st, t=t: wlg(("c", st, t)))) for st in range(3) for t in range(8) if st or t]
cw.append((107, It(lambda: (wlg0(), e("s_barrier")))))
xun = []
for d in range(8): xun += [f"v_lshlrev_b32 v{32+2*d}, 16, v{vX+d}", f"v_and_b32 v{33+2*d}, 0xffff0000, v{vX+d}"]
if OPT.get("red64", 0):
    redw = [(min(143, 108 + t*(t+1)//2 + t + 6 + 2 * hf), It(f"ds_write_b64 v{vRW}, {V(ACC(t)+2*hf,2)} offset:{1024*t+8*hf}")) for t in range(8) for hf in range(2)]
else:
    redw = [(min(143, 108 + t*(t+1)//2 + t + 6), It(f"ds_write_b128 v{vRW}, {V(ACC(t),4)} offset:{1024*t}")) for t in range(8)]
WA = OPT.get("wa", 24); WB = OPT.get("wb", 60 if T1IN else 106); TA = OPT.get("ta", 36 if T1IN else 60); TB_ = OPT.get("tb", 72); WE = OPT.get("we", 143)
dmas = lambda us: [x for u in us for x in dma_w2(u)]
trs_ = lambda us: [x for u in us for x in tr_w2(u)]
wlg(("c", 0, 0))
wst = [] if TA0 else at([(TA - 1, [WV(("w1", 0)), It("s_barrier")])])
if T1IN:
    wst += at([(TB_ - 1, [WV(("w1", 1)), WL(("t1", 0)), It("s_barrier")])]) + \
          [(tr_w1(0), TA, TB_ - 4), (tr_w1(1), TB_ - 2, 104), (dmas(PH[0]), TB_, WE)]
else:
    wst += [(tr_w1(0), TA, 104), (dmas(PH[0]), 108, WE)]
sched(main, *at(cw), (first[12:], 0, 6), (rdC(1), 6, 34), (rdC(2), 36, 69), (rdC(3), 72, 104), *wst,
      (B_posts, 36, 140), (pre2 * (PRE2 == 3), 0, 4), (dma_w1(0, NW3, 16), 0, max(WA, 1)), (dma_w1(1, 0, 16), WA, WB),
      (B_w2, 8, TA - 1), (B_red + B_x2, TA, 106), *at(redw), cap=2)
stamp("conv")
wlg0()
e("s_barrier")
stamp2("c_bar")
for k in range(2):
    for src in range(4): ds(f"ds_read_b128 {V(64+16*k+4*src,4)}, v{vRR} offset:{8192*src+1024*k}", ("red", k))
for k in range(2):
    b = 64 + 16 * k
    wlg(("red", k))
    for c in range(2):
        for hf in range(2): e(f"v_pk_add_f32 {V(b+8*c+2*hf,2)}, {V(b+8*c+2*hf,2)}, {V(b+8*c+4+2*hf,2)}")
    for c in range(2):
        for hf in range(2): e(f"v_pk_fma_f32 {V(b+8*c+2*hf,2)}, {V(b+8*c+2*hf,2)}, {S(sLM,2)}, {S(sLM,2)} op_sel:[0,0,1] op_sel_hi:[1,0,1]")
    for i in range(4): e(f"v_cvt_pk_bf16_f32 v{48+4*k+i}, v{b+i}, v{b+8+i}")
    vm(f"buffer_store_dwordx4 {V(48+4*k,4)}, v3, {S(RWS,4)}, s{sOB2} offen offset:{1024*k} sc1", "ob2")
stamp("a_out")

h2_loads = [It(f"buffer_load_dword v{80+d}, v{vAG}, {S(RWS,4)}, s{sO8+d} offen sc1", "h2") for d in range(8)]
AW = OPT.get("aw", 1)
run(dmas(PH[1]))
if AW == 2: run(h2_loads)
if not T1IN:
    t1 = tr_w1(1); run(t1[:1]); wvm(("w1", 1)); e("s_barrier"); run(t1[1:])
run(B_post)
wvm("x2")
run(xun)
stamp("r0")
if AW == 1: wvm("ob2")
if AW == 3: e("s_waitcnt vmcnt(%d)" % (cnt(vmq, "ob2") + 1))
if AW != 2: run(h2_loads)
stamp("poll2")
warm("wb2")
e("v_mov_b32 v52, 0"); e("v_mov_b32 v53, 0")
wvm("h2")
lab("L_h2chk")
for g in range(4): e(f"v_bitop3_b32 v{60+g}, v{80+2*g}, v{81+2*g}, s{sHT} bitop3:0x7e")
e("v_or3_b32 v60, v60, v61, v62"); e("v_bitop3_b32 v60, v60, v63, v27 bitop3:0xa8"); e("v_cmp_ne_u32 vcc, 0, v60")
for d in range(4):
    e(f"v_lshlrev_b32 v{64+2*d}, 16, v{80+d}"); e(f"v_and_b32 v{65+2*d}, 0xffff0000, v{80+d}")
e("s_cbranch_vccnz L_h2retry")
lab("L_h2ok")
retry("h2", h2_loads)
count("h2")
stamp("a_in")
run(dmas(PH[2]))
for d in range(4, 8):
    e(f"v_lshlrev_b32 v{64+2*d}, 16, v{80+d}"); e(f"v_and_b32 v{65+2*d}, 0xffff0000, v{80+d}")
for d in range(8): e(f"v_pk_fma_f32 {V(64+2*d,2)}, {V(64+2*d,2)}, s[{sHT}:{sLAM}], {V(32+2*d,2)} op_sel:[0,1,0] op_sel_hi:[1,1,1]")
for d in range(8): e(f"v_cvt_pk_bf16_f32 v{40+d}, v{64+2*d}, v{65+2*d}")
for d in range(8):
    e(f"v_dot2c_f32_bf16 v52, s{sONES}, v{40+d}"); e(f"v_dot2c_f32_bf16 v53, v{40+d}, v{40+d}")
run(unp[:2])
e("v_add_f32 v52, v52, v52 row_ror:8"); e("v_add_f32 v53, v53, v53 row_ror:8")
run(unp[2:4])
e("v_permlane16_swap_b32 v52, v53")
e("v_add_f32 v52, v52, v53")
e("v_mov_b32 v53, v52")
run(unp[4:6])
e("v_permlane32_swap_b32 v52, v53")
e("v_add_f32 v52, v52, v53")
ds(f"ds_write_b32 v{vS2W}, v52")
run(unp[6:10])
stamp2("z_st")
wlg0(); e("s_barrier")
stamp2("z_bar")
ds(f"ds_read2st64_b64 v[32:35], v{vS2R} offset0:0 offset1:4"); ds(f"ds_read2st64_b64 v[36:39], v{vS2R} offset0:8 offset1:12")
e(f"s_mov_b32 s4, {hx(1/512)}")
run(unp[10:])
wlg0()
e("v_pk_add_f32 v[32:33], v[32:33], v[34:35]"); e("v_pk_add_f32 v[36:37], v[36:37], v[38:39]"); e("v_pk_add_f32 v[32:33], v[32:33], v[36:37]")
e("v_pk_mul_f32 v[32:33], v[32:33], s[4:5] op_sel_hi:[1,0]")
e("v_fma_f32 v33, -v32, v32, v33"); e("v_max_f32 v33, 0, v33")
e(f"v_add_f32 v34, {hx(EPS)}, v33"); e("v_rsq_f32 v34, v34")
e("v_mul_f32 v33, v33, v34"); e(f"v_fmaak_f32 v33, v33, v34, {hx(EPS)}"); e("v_rsq_f32 v33, v33")
e(f"v_mul_f32 v34, {hx(SS)}, v34"); e("v_mul_f32 v34, v34, v33"); e("v_mul_f32 v35, -v32, v34")
for k in range(2):
    for d in range(4 * k, 4 * k + 4): e(f"v_pk_fma_f32 {V(64+2*d,2)}, {V(64+2*d,2)}, v[34:35], v[34:35] op_sel:[0,0,1] op_sel_hi:[1,0,1]")
    for d in range(4 * k, 4 * k + 4): e(f"v_cvt_pk_bf16_f32 v{48+d}, v{64+2*d}, v{65+2*d}")
    vm(f"buffer_store_dwordx4 {V(48+4*k,4)}, v{vZS}, {S(RWS,4)}, s{sZ0+k} offen sc1", "zst")
stamp("z_out")

G1 = lambda t: 64 + 16 * (t & 1)
BIAS = 112
sh = bf16_rne(SS); sl = bf16_rne(SS - bf16_val(sh))
adr = ["v_accvgpr_read_b32 v32, a112", "v_mov_b32 v33, 0", "v_mov_b32 v34, 0", "v_mov_b32 v35, 0", "v_lshl_or_b32 v32, v32, 16, v32",
       "v_cmp_gt_u32 vcc, 32, v1", f"v_mov_b32 v36, {hex(sh | (sl << 16))}", "v_mov_b32 v37, 0", "v_mov_b32 v38, 0", "v_mov_b32 v39, 0", "v_cndmask_b32 v36, 0, v36, vcc",
       f"s_mov_b32 s{sCNT}, 0", f"s_mov_b32 s10, {hx(GC)}", f"v_mfma_f32_32x32x16_bf16 {V(BIAS,16)}, v[32:35], v[36:39], 0"]
run(dmas(PH[3]))
run(trs_(PH[0] + PH[1]))
run(adr + [f"v_add_u32 v{vZC+1}, 0x10000, v{vZC}"] + [f"s_mov_b32 s{sO8+d}, {OB2 + 8192*d}" for d in range(8)])
warm("wz")
stamp("w1b")
if OPT.get("zw", 1) == 1: wvm("zst")
if OPT.get("zw", 1) == 2: e("s_waitcnt vmcnt(%d)" % (cnt(vmq, "zst") + 1))

T0_ = lambda t: X0(2 * t)
def tile_of(n): return (n // 32, n % 32) if n < 128 else (4 + (n - 128) // 28, (n - 128) % 28)
def x_dma(x, tmp=None):
    tmp = tmp or sTD
    return [It(f"s_add_u32 m0, s{sM4 if x < 8 else sM7}, {SLOT['x', x]}"),
            It(f"s_xor_b32 s{tmp}, s{sZa}, {16384*x}" if x < 8 else f"s_xor_b32 s{tmp}, s{sHL}, {131072*(x//2-4) + 16384*(x&1)}")] + \
           [It(f"buffer_load_dwordx4 v{vL16}, {S(RWS,4)}, s{tmp} offen offset:{1024*i} sc1 lds", ("x", x)) for i in range(4)]
def x_check(xs):
    name = f"x{xs[0]}"; rd = []
    for k, x in enumerate(xs):
        o = SLOT["x", x]; hi = o >= 65536
        if x < 8: rd += [f"ds_read2st64_b32 {V(48+4*k+2*i,2)}, v{vZCs[o//65536]} offset0:{o%65536//256+8*i} offset1:{o%65536//256+8*i+4}" for i in range(2)]
        else: rd += [f"ds_read2st64_b64 {V(44+8*k+4*i,4)}, v{vHC+hi} offset0:{o//512-128*hi+4*i} offset1:{o//512-128*hi+4*i+2}" for i in range(2)]
    if xs[0] < 8:
        ck = ["v_max3_u32 v48, v48, v49, v50"]
        ck += ["v_max3_u32 v52, v52, v53, v54", "v_max3_u32 v48, v48, v51, v55", "v_max_u32 v48, v48, v52"] if len(xs) == 2 else ["v_max_u32 v48, v48, v51"]
        ck += ["v_cmp_eq_u32 vcc, -1, v48"]
    else:
        ck = [f"v_bitop3_b32 v{44+2*i}, v{44+2*i}, v{45+2*i}, s{sHT} bitop3:0x7e" for i in range(4 * len(xs))]
        ck += ["v_or3_b32 v44, v44, v46, v48"] + ["v_or3_b32 v50, v50, v52, v54", "v_or3_b32 v44, v44, v56, v58"] * (len(xs) - 1)
        ck += ["v_bitop3_b32 v44, v44, v50, v27 bitop3:0xa8", "v_cmp_ne_u32 vcc, 0, v44"]
    br = f"s_cbranch_vccnz L_{name}retry"
    def fin():
        again = sorted({q[1] for q in vmq if isinstance(q, tuple) and q[0] == "x" and q[1] >= xs[0]})
        retry(name, [It("s_mov_b32 s4, m0")] + [i for q in again for i in x_dma(q, 5)] + [It("s_mov_b32 m0, s4")], 0, rd + ["s_waitcnt lgkmcnt(0)"] + ck + [br])
        e(br); lab(f"L_{name}ok"); e("s_barrier")
    return (items(rd, ("zc", name)), [WL(("zc", name))] + ck, [It(fin, cost=2)])
ZR = lambda n: 224 + 4 * (n % 8)
def rdZ(n):
    x = max(x for x in range(16) if X0(x) <= n); hi, o = divmod(SLOT["x", x], 65536)
    return [It(f"ds_read_b128 {A(ZR(n),4)}, v{(vL16, 3, vLC)[hi]} offset:{o + 1024*(n - X0(x))}", ("zr", n))]
run(x_dma(0) + x_dma(1) + x_dma(2))
stamp("zpoll")
wvm(("x", BG[0][-1]))
for x in x_check(BG[0]): run(x)
count("z0")
stamp("z_in")
for n in range(DEPTH): run(rdZ(n))
G2 = lambda t: 96 + 16 * (t & 1)
def g_mfma(n):
    t, s = tile_of(n)
    if s == 0 and t == 4: count("z"); stamp("g1b")
    elif OPT.get("fine") and s == 0 and t: stamp(f"t{t-1}")
    elif OPT.get("f8") and n % 8 == 0 and n: stamp(f"n{n}")
    if t < 4: e(f"v_mfma_f32_32x32x16_bf16 {V(G1(t),16)}, {V(W1F(s),4)}, {A(ZR(n),4)}, {V(G1(t) if s else BIAS,16)}")
    else: e(f"v_mfma_f32_32x32x16_bf16 {V(G2(t),16)}, {A(8*(s%14)+4*(s//14),4)}, {A(ZR(n),4)}, {V(G2(t),16) if s else 0}")
def chk_at(b):
    c = x_check(b[1]); tags = [("x", x) for x in b[1]] + [("u", y) for y in PH[4] if YR[y] == b[0]]
    w = It(lambda: wvm(min((t for t in tags if t in vmq), key=lambda t: cnt(vmq, t))))
    return at([(b[0], c[2])]), [([w] + c[0], ck0(b), ck0(b) + 2), (c[1], b[0] - 1 - ckw(b[1]), b[0] - 1)]
def gelu(r):
    a = G1(r); out = []
    for i in range(0, 16, 2):
        t = 40 + (i & 2); b = a + i
        if OPT.get("nog"): out.append(f"v_mov_b32 v{32+i//2}, s{sHT}")
        else:
            for k in range(2): out += [f"v_fma_f32 v{t+k}, v{b+k}, v{b+k}, s10", f"v_mul_f32 v{t+k}, v{t+k}, v{b+k}", f"v_exp_f32 v{t+k}, v{t+k}"]
            for k in range(2): out += [f"v_fma_f32 v{t+k}, v{t+k}, s{sLAM}, s{sLAM}", f"v_rcp_f32 v{t+k}, v{t+k}"]
            for k in range(2): out += [f"v_fma_f32 v{t+k}, v{t+k}, v{b+k}, s{sCQ}"]
            out.append(f"v_cvt_pk_bf16_f32 v{32+i//2}, v{t}, v{t+1}")
        if i in (2, 10): out.append(f"s_xor_b32 s{sHD}, s{sHS}, {131072*r + 16384*(i//8)}")
        if i in (6, 14): out.append(It(f"buffer_store_dwordx4 {V(32+4*(i//8),4)}, v{vL16}, {S(RWS,4)}, s{sHD} offen sc1", ("hst", r, i // 8)))
    return items(out)

cks = [chk_at(b) for b in BAR[1:]]
plan = [([WV(("hst", x // 2 - 4, x & 1))] * (OPT.get("pace", 1) and x >= 8) + x_dma(x), DX[x], DX[x] + DL) for x in range(3, 16)]
plan += [(dma_w2(y), DY[y], DY[y] + DL) for y in PH[4]] + [(tr_w2(y), *YT[y]) for y in YT]
PR = lambda s: 128 + 8 * s
PS = lambda s: 152 + 8 * s
def p_pack(s):
    a = G2(s)
    return [x for i in range(8) for x in (f"v_fma_f32 v{a+2*i}, v{a+2*i}, v{vFF}, s{sCQ}", f"v_fma_f32 v{a+2*i+1}, v{a+2*i+1}, v{vFF}, s{sCQ}", f"v_cvt_pk_bf16_f32 v{PS(s)+i}, v{a+2*i}, v{a+2*i+1}")]
def p_store(s, i):
    return [f"s_xor_b32 s{sPD}, s{sPS}, {(s << 21) | ((3 ^ s) << 15)}"] * (1 - i) + [It(f"buffer_store_dwordx4 {V(PS(s)+4*i,4)}, v{vL16}, {S(RWS,4)}, s{sPD} offen offset:{1024*i} sc1", ("pst", s))]
def p_load(s):
    return [It(f"s_add_u32 s79, s{sPS}, {s << 21}")] + [It(f"buffer_load_dwordx4 {V(PR(s)+4*i,4)}, v{vL16}, {S(RWS,4)}, s79 offen offset:{1024*i} sc1", ("p", s)) for i in range(2)]
def p_check(s):
    name = f"p{s}"; a = PR(s)
    ck = [f"v_bitop3_b32 v60, v{a+1}, v{a+3}, s{sHT} bitop3:0x7e", f"v_bitop3_b32 v61, v{a+5}, v{a+7}, s{sHT} bitop3:0x7e", "v_bitop3_b32 v60, v60, v61, v27 bitop3:0xa8", "v_cmp_ne_u32 vcc, 0, v60"]
    br = f"s_cbranch_vccnz L_{name}retry"
    retry(name, p_load(s), 0, ck + [br])
    return [WV(("p", s))] + ck, [It(lambda: (e(br), lab(f"L_{name}ok")))]
p_add = lambda s, d: [f"v_dot2c_f32_bf16 v{d+i}, s{sLAM if i & 1 else 80}, v{PR(s)+i//2}" for i in range(16)]
RX, RA_, RB, RS = (20, 21, 22, 23, 60, 61, 62, 63), (4, 5, 6, 7, 18, 19, 25, 26), 192, 200
r_load = [It(f"global_load_dwordx4 {V(RX[4*i],4)}, v{vOUT}, {S(SX,2)} offset:{16*i}", "rl") for i in range(2)] + \
         [It(f"buffer_load_dword v{RA_[d]}, v{vRA}, {S(RWS,4)}, s{sO8+d} offen sc1", "rl") for d in range(8)] + \
         [It(f"global_load_dwordx4 {V(RB+4*i,4)}, v24, {S(SB2,2)} offset:{16*i}", "rl") for i in range(2)]
resid = [WV("rl")]
for d in range(8):
    resid += [f"v_lshlrev_b32 v216, 16, v{RA_[d]}", f"v_and_b32 v217, 0xffff0000, v{RA_[d]}", f"v_lshlrev_b32 v218, 16, v{RX[d]}", f"v_and_b32 v219, 0xffff0000, v{RX[d]}",
              f"v_fma_f32 v216, v216, s{sLAM}, v218", f"v_fma_f32 v217, v217, s{sLAM}, v219", "v_cvt_pk_bf16_f32 v216, v216, v217",
              f"v_lshlrev_b32 v218, 16, v{RB+d}", f"v_and_b32 v219, 0xffff0000, v{RB+d}", "v_and_b32 v217, 0xffff0000, v216", "v_lshlrev_b32 v216, 16, v216",
              f"v_add_f32 v{RS+2*d}, v216, v218", f"v_add_f32 v{RS+2*d+1}, v217, v219"]
GP = iv("gp", "166-176-192-200-217-219"); GL = iv("gl", "210-234-228-240"); GR = iv("gr", "68-76-99-111-136-172-204")
PK = [OPT.get("pk0", 160), T0_(6) + 2, T0_(7) + 2]
plan += [(p_pack(s), PK[s], PK[s] + 5) for s in range(3)] + at([(GP[x], p_store(x // 2, x & 1)) for x in range(6)])
assert all(PK[s] + 3 <= GP[2*s] and PK[s] + 5 <= GP[2*s+1] for s in range(3)) and GL[1] > BAR[-1][0] and not GL[2] - 2 <= GL[1] <= GL[2] and GR[6] <= GL[1]
assert GR[2] > max(b[0] for b in BAR if 7 in b[1]) and GR[2] >= max([0] + list(DY.values())) + DL and GR[4] >= 128
pc = [p_check(s) for s in range(3)]
plan += [(r_load[:2], GR[0], GR[1]), (r_load[2:10], GR[2], GR[3]), (r_load[10:], GR[4], GR[4] + 2), (p_load(0), GL[0], GL[0] + 2), (p_load(1), GL[2], GL[2] + 2)]
if GL[1] < 240: plan += [(pc[0][0], GL[1], GL[1] + 1), (p_add(0, RS), GL[1] + 3, min(GL[1] + 8, 240))]
if GL[3] < 240: plan.append((p_load(2), GL[3], GL[3] + 1))
G3E = OPT.get("g3e", 160)
wlg(("zr", 0))
sched([lambda n=n: g_mfma(n) for n in range(240)], *[x for c in cks for x in c[0]], *at([(GL[1] + 2, pc[0][1])] * (GL[1] < 240)),
      *at([(n, rdZ(n + DEPTH)) for n in range(240 - DEPTH)]), *[x for c in cks for x in c[1]], *plan,
      waits=lambda n: WL(("zr", n)), fill=[(gelu(0), 33, 64), (gelu(1), 65, 96), (gelu(2), 97, 128), (gelu(3), 129, G3E), (resid, GR[5], GR[6])])
count("h")
stamp("g2m")
if GL[1] == 240: run(pc[0][0] + pc[0][1] + p_add(0, RS))
if GL[3] == 240: wvm(("pst", 2)); run(p_load(2))
b = G2(3)
run(pc[1][0])
for i in range(0, 16, 2): e(f"v_pk_fma_f32 {V(b+i,2)}, {V(b+i,2)}, s[{sCQ}:{sFIN}], {V(RS+i,2)} op_sel:[0,1,0] op_sel_hi:[1,1,1]")
run(pc[1][1] + p_add(1, b))
stamp("pst")
run(pc[2][0] + pc[2][1])
count("p")
stamp("p_in")
run(p_add(2, b))
for i in range(8): e(f"v_cvt_pk_bf16_f32 v{32+i}, v{b+2*i}, v{b+2*i+1}")
for k in range(2): vm(f"global_store_dwordx4 v{vOUT}, {V(32+4*k,4)}, {S(SOUT,2)} offset:{16*k}", "out")
if OPT["stamps"]:
    stamp("end"); wlg0()
    e("s_lshl_b32 s4, s2, 2"); e("s_add_u32 s4, s4, s6"); e("s_lshl_b32 s4, s4, 8"); e(f"s_add_u32 s4, s4, {STAMP}")
    e("v_lshlrev_b32 v30, 2, v1")
    e(f"buffer_store_dword v31, v30, {S(RWS,4)}, s4 offen")
if OPT.get("pc"):
    e("s_load_dwordx2 s[4:5], s[0:1], 104"); e("s_getpc_b64 s[10:11]"); lab("L_pc2"); e(f"s_sub_u32 s10, s10, L_pc2-L_pc+40")
    e("v_mov_b32 v32, s10"); e("v_mov_b32 v33, s11"); e("v_mov_b32 v30, 0"); e("s_waitcnt lgkmcnt(0)"); e("global_store_dwordx2 v30, v[32:33], s[4:5]")
if OPT.get("diag"):
    e("v_readfirstlane_b32 s10, v31")
    lab("L_diag")
    e("s_memrealtime s[14:15]"); e("s_waitcnt lgkmcnt(0)"); e("s_sub_u32 s14, s14, s10"); e(f"s_cmp_lt_u32 s14, {OPT['diag']}"); e("s_cbranch_scc1 L_diag")
e("s_endpgm")
i = 0
while i < len(tail): tail[i](); i += 1
lab("L_end")
e("s_endpgm")

body, added = hz.fix(L, verbose=OPT.get("hz", False))
if OPT.get("align", 1): body, pads = hz.align(body, hops=hops, step=STEP)
if OPT["stamps"]:
    pen = []; sim = hz.simulate(body, pen)
    print("model:", " ".join("%s %d(%d)" % x for x in zip([n for n in stamp_names if n[0] != "#"], sim, pen)))
post = f""".section .rodata,"a"
.p2align 6
.amdhsa_kernel {lab_name}
  .amdhsa_next_free_vgpr 512
  .amdhsa_next_free_sgpr 102
  .amdhsa_accum_offset 256
  .amdhsa_group_segment_fixed_size 0
  .amdhsa_kernarg_size 120
  .amdhsa_user_sgpr_count 2
  .amdhsa_user_sgpr_kernarg_segment_ptr 1
  .amdhsa_system_sgpr_workgroup_id_x 1
.end_amdhsa_kernel
"""
open(sys.argv[1], "w").write(pre + "\n".join(body) + "\n" + post)
if OPT["stamps"]: open(sys.argv[1] + ".stamps", "w").write(" ".join(stamp_names))
if OPT.get("plan"):
    sz = hz.sizes(body); ad = 0; nm = 0
    for l, z in zip(body, sz):
        if z and (ad + z) // 4096 > ad // 4096: print("page", (ad + z) // 4096, "after mfma", nm)
        if l.startswith("L_") and "retry" not in l: print(l, ad, end=" ")
        nm += "v_mfma" in l; ad += z or 0
if OPT.get("plan"): print(BAR, YR, YT, {k: v // 16384 for k, v in SLOT.items()})
print("instructions:", sum(1 for x in body if hz.Ins(x).is_ins), "nop states added:", added)
```
